```python
import torch

def _softmax(x, axis=-1):
    return torch.softmax(x, dim=axis)
def _gelu(x):
    return torch.nn.functional.gelu(x, approximate="tanh")
def _silu(x):
    return torch.nn.functional.silu(x)
def _sigmoid(x):
    return torch.sigmoid(x)
def _layernorm(x, axis=-1, eps=1e-5):
    m = x.mean(dim=axis, keepdim=True)
    v = x.var(dim=axis, keepdim=True, unbiased=False)
    return (x - m) / torch.sqrt(v + eps)
def _scatter_add(tgt, idx, src, axis=0):
    return tgt.clone().index_add_(axis, idx, src)
def _segment_sum(src, seg, n):
    out = torch.zeros((n,) + src.shape[1:], dtype=src.dtype)
    return out.index_add_(0, seg, src)
def _pad(x, pw):
    flat = tuple(v for pair in reversed(pw) for v in pair)
    return torch.nn.functional.pad(x, flat)

kernel_name = 'gated_mix__grouped_kv_mqa__moe_arch_mod__prompt'

def setup_inputs():

    _w = (lambda a: (lambda t: t.to(torch.bfloat16) if t.is_floating_point() else t)(torch.as_tensor(a)))
    def _A_setup():
        B, S, D, H = 1, 2048, 640, 32
        Dh = D // H
        return {
            "x": _w((lambda *s: torch.randn(*s, dtype=torch.bfloat16) * 0.05)(B, S, D)),
            "wq": _w((lambda *s: torch.randn(*s, dtype=torch.bfloat16) * 0.8)(D, H * Dh)),
            "wk": _w((lambda *s: torch.randn(*s, dtype=torch.bfloat16) * 0.8)(D, Dh)),
            "wv": _w((lambda *s: torch.randn(*s, dtype=torch.bfloat16) * 0.2)(D, Dh)),
            "wo": _w((lambda *s: torch.randn(*s, dtype=torch.bfloat16) * 0.2)(H * Dh, D)),
        }
    _A_in = _A_setup()

    def _B_setup():
        B, S, D, F, C = 1, 2048, 640, 1536, 1
        return {
            "x": _w((lambda *s: torch.randn(*s, dtype=torch.bfloat16) * 0.05)(B, S, D)),
            "w_r": _w((lambda *s: torch.randn(*s, dtype=torch.bfloat16) * 1.6)(D)),
            "w_gate": _w((lambda *s: torch.randn(*s, dtype=torch.bfloat16) * 0.2)(D, F)),
            "w_up": _w((lambda *s: torch.randn(*s, dtype=torch.bfloat16) * 0.2)(D, F)),
            "w_down": _w((lambda *s: torch.randn(*s, dtype=torch.bfloat16) * 0.2)(F, D)),
        }
    _B_in = _B_setup()

    return {
        "A_x": _A_in["x"],
        "A_wq": _A_in["wq"],
        "A_wk": _A_in["wk"],
        "A_wv": _A_in["wv"],
        "A_wo": _A_in["wo"],
        "B_x": _B_in["x"],
        "B_w_r": _B_in["w_r"],
        "B_w_gate": _B_in["w_gate"],
        "B_w_up": _B_in["w_up"],
        "B_w_down": _B_in["w_down"],
        "gate_w": _w((lambda *s: torch.randn(*s, dtype=torch.bfloat16) * 0.05)(640) * 16.0),
    }

def reference(A_x, A_wq, A_wk, A_wv, A_wo, B_x, B_w_r, B_w_gate, B_w_up, B_w_down, gate_w):
    def _A_ref(x, wq, wk, wv, wo):
        B, S, D = x.shape
        H = 32
        Dh = D // H
        q = (lambda x, *d: x.permute(*d))((x @ wq).reshape(B, S, H, Dh), 0, 2, 1, 3)
        k = x @ wk
        v = x @ wv
        scores = torch.einsum("bhqd,bkd->bhqk", q, k) * (Dh ** -0.5)
        p = _softmax(scores, axis=-1)
        o = torch.einsum("bhqk,bkd->bhqd", p, v)
        return (lambda x, *d: x.permute(*d))(o, 0, 2, 1, 3).reshape(B, S, H * Dh) @ wo

    def _B_ref(x, w_r, w_gate, w_up, w_down):
        B, S, D = x.shape
        C = 1
        r = x @ w_r
        idx = torch.argsort(-r, axis=-1)[:, :C]
        idx_e = (lambda x, n, axis: torch.repeat_interleave(x, n, dim=axis))(idx.reshape(B, C, 1), D, axis=2)
        x_sel = (lambda x, i, axis: torch.take_along_dim(x, i, dim=axis))(x, idx_e, axis=1)
        g = _silu(x_sel @ w_gate)
        u = x_sel @ w_up
        y = (g * u) @ w_down
        r_sel = _sigmoid((lambda x, i, axis: torch.take_along_dim(x, i, dim=axis))(r, idx, axis=1))
        y = y * r_sel.reshape(B, C, 1)
        b_off = (torch.arange(B) * S).reshape(B, 1)
        flat_idx = (idx + b_off).reshape(B * C)
        zero = (x * 0.0).reshape(B * S, D)
        upd = _scatter_add(zero, flat_idx, y.reshape(B * C, D), axis=0)
        return x + upd.reshape(B, S, D)

    x = A_x
    g = _sigmoid((x * gate_w).sum(-1, keepdims=True))
    a = _A_ref(x, A_wq, A_wk, A_wv, A_wo)
    b = _B_ref(x, B_w_r, B_w_gate, B_w_up, B_w_down)
    return g * a + (1 - g) * b
```

```python
class Asm:
    def __init__(self):
        self.lines = []
        self.uid = 0
    def __call__(self, s):
        for ln in s.strip("\n").split("\n"):
            self.lines.append("    " + ln.strip())
    def label(self, name):
        self.lines.append(f"{name}:")
    def raw(self, s):
        self.lines.append(s)
    def newlabel(self, base):
        self.uid += 1
        return f"L_{base}_{self.uid}"
    def text(self):
        return "\n".join(self.lines) + "\n"

def v(a, n=1):
    return f"v{a}" if n == 1 else f"v[{a}:{a+n-1}]"
def s(a, n=1):
    return f"s{a}" if n == 1 else f"s[{a}:{a+n-1}]"

class RegAlloc:
    def __init__(self, start=0, limit=256):
        self.next = start
        self.limit = limit
        self.names = {}
    def alloc(self, name, n=1, align=1):
        a = (self.next + align - 1) // align * align
        self.next = a + n
        assert self.next <= self.limit, f"out of regs at {name}"
        self.names[name] = a
        return a

def kernel_header(name):
    return f""".globl {name}
.p2align 8
.type {name},@function
{name}:
"""

def kernel_desc(name, nvgpr, nsgpr=102, accum=None):
    if accum is None:
        accum = (nvgpr + 3) // 4 * 4
    return f""".p2align 6
.amdhsa_kernel {name}
  .amdhsa_next_free_vgpr {nvgpr}
  .amdhsa_next_free_sgpr {nsgpr}
  .amdhsa_accum_offset {accum}
  .amdhsa_group_segment_fixed_size 0
  .amdhsa_kernarg_size 112
  .amdhsa_user_sgpr_count 2
  .amdhsa_user_sgpr_kernarg_segment_ptr 1
  .amdhsa_system_sgpr_workgroup_id_x 1
.end_amdhsa_kernel
"""
```

```python
from asmlib import *
from layout import *
import math, struct

def fbits(x):
    return struct.unpack("<I", struct.pack("<f", x))[0]

LDS_EXTRA = 102400

def gen_gemm(name, kind):
    A = Asm()
    R = RegAlloc(1)
    vT = R.alloc("T", 11)
    vX = R.alloc("X", 80, 4)
    vAcc = R.alloc("acc", 28, 4)
    vW = [R.alloc(f"W{i}", 28, 4) for i in range(2)]
    vDma = R.alloc("dma", 5)
    vTr = R.alloc("tr", 2); vTrE = R.alloc("trE")
    vXO = R.alloc("xo"); vLane = R.alloc("lane"); vTok = R.alloc("tok"); vG = R.alloc("g")
    vEp = R.alloc("ep", 12, 4)
    vY = R.alloc("y", 20, 4)
    P = name[:2]
    sAct = 4; sWp = 6; sWS = 8; sE1 = 10; sE2 = 12; sOut = 14; sXp = 16
    sAD = 20; sWD = 24; sSD = 28; sED = 32; sOD = 36; sXD = 40
    sWave = 44; sTg = 45; sCg = 46; sTmp = 47; sTmp2 = 48; sSel = 50
    sM = 52
    A.raw(kernel_header(name))
    A(f"""
    s_cmp_ge_u32 s2, 256
    s_cbranch_scc1 L_{P}_end
    s_load_dwordx2 s[{sWS}:{sWS+1}], s[0:1], {KA_WS}
    s_load_dwordx2 s[{sXp}:{sXp+1}], s[0:1], {KA_X}
    s_load_dwordx2 s[{sWp}:{sWp+1}], s[0:1], {KA_WQ if kind == 'qkv' else KA_WO}
    """)
    if kind == 'qkv':
        A(f"""
        s_load_dwordx4 s[{60}:{63}], s[0:1], {KA_WK}
        s_load_dwordx2 s[{64}:{65}], s[0:1], {KA_WR}
        s_load_dwordx2 s[{66}:{67}], s[0:1], {KA_GW}
        """)
    else:
        A(f"s_load_dwordx2 s[{sOut}:{sOut+1}], s[0:1], {KA_OUT}")
    A(f"""
    v_lshrrev_b32 v{vT}, 6, v0
    v_and_b32 v{vLane}, 63, v0
    v_readfirstlane_b32 s{sWave}, v{vT}
    v_and_b32 v{vTok}, 15, v0
    v_lshrrev_b32 v{vG}, 4, v{vLane}
    s_and_b32 s{sTg}, s2, 31
    s_lshr_b32 s{sCg}, s2, 5
    """)
    for ph in range(5):
        d = vDma + ph
        A(f"""
        v_add_u32 v{vT}, {64*ph}, v{vLane}          ; c
        v_mul_u32_u24 v{vT+1}, 205, v{vT}
        v_lshrrev_b32 v{vT+1}, 11, v{vT+1}          ; rho = c/10
        v_mul_u32_u24 v{vT+2}, 10, v{vT+1}
        v_sub_u32 v{vT+2}, v{vT}, v{vT+2}           ; cc
        v_lshrrev_b32 v{vT+3}, 4, v{vT+1}           ; s
        v_bfe_u32 v{vT+4}, v{vT+1}, 2, 2            ; g
        v_and_b32 v{vT+5}, 3, v{vT+1}               ; j
        v_lshl_add_u32 v{vT+5}, v{vT+3}, 2, v{vT+5}
        v_lshl_add_u32 v{vT+5}, v{vT+4}, 3, v{vT+5} ; row
        v_mul_u32_u24 v{vT+5}, 1280, v{vT+5}
        v_lshl_add_u32 v{d}, v{vT+2}, 4, v{vT+5}
        """)
        if 0 < ph < 4:
            A(f"v_subrev_u32 v{d}, {1024*ph}, v{d}")
    A(f"""
    ; tr-read base: (4g + r)*160 + c*8, r=(l%16)/4, c=l%4
    v_lshrrev_b32 v{vT}, 2, v{vLane}                ; 4g + r
    v_mul_u32_u24 v{vT}, 160, v{vT}
    v_and_b32 v{vT+1}, 3, v{vLane}
    v_lshl_add_u32 v{vTr}, v{vT+1}, 3, v{vT}
    v_add_u32 v{vTr+1}, 51200, v{vTr}
    s_lshl_b32 s{sTmp}, s{sWave}, 4
    v_add_u32 v{vT+2}, s{sTmp}, v{vTok}
    v_mul_u32_u24 v{vT+2}, 1280, v{vT+2}
    v_lshl_add_u32 v{vT+3}, v{vG}, 4, v{vT+2}
    v_lshl_add_u32 v{vXO}, v{vG}, 3, v{vT+2}
    s_mul_i32 s{sTmp2}, s{sTg}, {64*1280}
    s_waitcnt lgkmcnt(0)
    s_mov_b32 s{sSD}, s{sWS}
    s_mov_b32 s{sSD+1}, s{sWS+1}
    s_mov_b32 s{sSD+2}, {WS_SIZE}
    s_mov_b32 s{sSD+3}, 0x00020000
    s_mov_b32 s{sXD}, s{sXp}
    s_mov_b32 s{sXD+1}, s{sXp+1}
    s_mov_b32 s{sXD+2}, {2048*1280}
    s_mov_b32 s{sXD+3}, 0x00020000
    s_mov_b32 s{sWD}, s{sWp}
    s_mov_b32 s{sWD+1}, s{sWp+1}
    s_mov_b32 s{sWD+2}, {640*1280}
    s_mov_b32 s{sWD+3}, 0x00020000
    """)
    if kind == 'qkv':
        actD = s(sXD, 4); actOff = 0
    else:
        actD = s(sSD, 4); actOff = WS_O
        A(f"""
        s_mov_b32 s{sOD}, s{sOut}
        s_mov_b32 s{sOD+1}, s{sOut+1}
        s_mov_b32 s{sOD+2}, {2048*1280}
        s_mov_b32 s{sOD+3}, 0x00020000
        s_add_u32 s{sE1}, s{sWS}, {WS_SEL}
        s_addc_u32 s{sE1+1}, s{sWS+1}, 0
        s_load_dwordx2 s[{sSel}:{sSel+1}], s[{sE1}:{sE1+1}], 0
        """)
    sActS = 54; sWsrc = 55; sLds = 56
    A(f"""
    s_add_u32 s{sActS}, s{sTmp2}, {actOff}
    s_mul_i32 s{sWsrc}, s{sCg}, 160
    s_mul_i32 s{sTmp}, s{sWave}, {32*1280}
    s_add_u32 s{sWsrc}, s{sWsrc}, s{sTmp}
    s_mul_i32 s{sLds}, s{sWave}, 5120
    """)
    nExtra = 0
    if kind == 'qkv':
        A(f"""
        s_mov_b32 s{sED+2}, 25600
        s_mov_b32 s{sED+3}, 0x00020000
        s_mov_b32 s{sED}, s60
        s_mov_b32 s{sED+1}, s61
        s_cmp_eq_u32 s{sCg}, 1
        s_cselect_b32 s{sED}, s62, s{sED}
        s_cselect_b32 s{sED+1}, s63, s{sED+1}
        v_lshlrev_b32 v{vT+4}, 4, v{vLane}
        s_cmp_ge_u32 s{sCg}, 2
        s_cbranch_scc1 L_{P}_noKV
        s_lshl_b32 s{sTmp}, s{sWave}, 10
        """)
        for i in range(7):
            A(f"s_add_u32 s{sTmp2}, s{sTmp}, {i*4096}")
            A(f"s_add_u32 m0, s{sTmp2}, {LDS_EXTRA}")
            A("s_nop 0")
            A(f"buffer_load_dwordx4 v{vT+4}, {s(sED,4)}, s{sTmp2} offen lds")
        A(f"s_branch L_{P}_exdone")
        A.label(f"L_{P}_noKV")
        A(f"""
        s_cmp_lg_u32 s{sCg}, 2
        s_cbranch_scc1 L_{P}_exdone
        s_mov_b32 s{sED+2}, 1280
        s_mov_b32 s{sED}, s64
        s_mov_b32 s{sED+1}, s65
        s_cmp_ge_u32 s{sWave}, 2
        s_cselect_b32 s{sED}, s66, s{sED}
        s_cselect_b32 s{sED+1}, s67, s{sED+1}
        s_and_b32 s{sTmp2}, s{sWave}, 1
        s_lshl_b32 s{sTmp2}, s{sTmp2}, 10
        s_lshl_b32 s{sTmp}, s{sWave}, 10
        s_add_u32 m0, s{sTmp}, {LDS_EXTRA}
        s_nop 0
        buffer_load_dwordx4 v{vT+4}, {s(sED,4)}, s{sTmp2} offen lds
        """)
        A.label(f"L_{P}_exdone")
    for j in range(5):
        A(f"s_add_u32 m0, s{sLds}, {j*20480}")
        A(f"s_add_u32 s{sTmp}, s{sWsrc}, {j*128*1280}")
        for ph in range(4):
            A(f"buffer_load_dwordx4 v{vDma+ph}, {s(sWD,4)}, s{sTmp} offen offset:{ph*1024} lds")
        A(f"s_add_u32 m0, s{sLds}, {j*20480+4096}")
        A("s_nop 0")
        A(f"buffer_load_dwordx4 v{vDma+4}, {s(sWD,4)}, s{sTmp} offen lds")
        for i in range(4):
            ks = 4*j + i
            A(f"buffer_load_dwordx4 {v(vX+4*ks,4)}, v{vT+3}, {actD}, s{sActS} offen offset:{ks*64}")
    nEp = 0
    if kind == 'out':
        A(f"""
        s_mul_i32 s{sTmp}, s{sCg}, 160
        s_mul_i32 s{sTmp2}, s{sTg}, {64*1280}
        s_add_u32 s{sE2}, s{sTmp}, s{sTmp2}          ; row-major tile base (x / out)
        s_lshl_b32 s{sTmp}, s{sTg}, 8
        s_lshl_b32 s{sTmp2}, s{sWave}, 6
        s_add_u32 s{sTmp}, s{sTmp}, s{sTmp2}
        s_add_u32 s{sTmp}, s{sTmp}, {WS_G}
        v_lshlrev_b32 v{vT+4}, 2, v{vTok}
        """)
        for nt in range(5):
            A(f"buffer_load_dwordx2 {v(vEp+2*nt,2)}, v{vXO}, {s(sXD,4)}, s{sE2} offen offset:{nt*32}")
        A(f"buffer_load_dword v{vEp+10}, v{vT+4}, {s(sSD,4)}, s{sTmp} offen")
        nEp = 6
    for i in range(28):
        A(f"v_mov_b32 v{vAcc+i}, 0")
    if kind == 'qkv':
        A(f"""
        v_bfe_u32 v{vT}, v{vLane}, 2, 2
        v_lshl_add_u32 v{vT}, v{vG}, 3, v{vT}
        v_mul_u32_u24 v{vT}, 40, v{vT}
        v_and_b32 v{vT+1}, 3, v{vLane}
        v_lshl_add_u32 v{vTrE}, v{vT+1}, 3, v{vT}
        v_add_u32 v{vTrE}, {LDS_EXTRA}, v{vTrE}
        s_cmp_lg_u32 s{sCg}, 2
        s_cbranch_scc1 L_{P}_tre
        v_cmp_eq_u32 vcc, 1, v{vTok}
        v_mov_b32 v{vT}, 0
        v_mov_b32 v{vT+1}, 2048
        v_cndmask_b32 v{vT}, v{vT}, v{vT+1}, vcc
        v_lshl_add_u32 v{vTrE}, v{vG}, 4, v{vT}
        v_add_u32 v{vTrE}, {LDS_EXTRA}, v{vTrE}
        """)
        A.label(f"L_{P}_tre")

    def reads(ks, mode):
        buf = vW[ks % 2]
        base = vTr if ks < 10 else vTr + 1
        off0 = (ks % 10) * 5120
        n = 0
        for nt in range(5):
            for sidx in range(2):
                A(f"ds_read_b64_tr_b16 {v(buf+4*nt+2*sidx,2)}, v{base} offset:{off0 + sidx*2560 + nt*32}")
                n += 1
        if mode in ('k', 'v'):
            for nt in range(2):
                for sidx in range(2):
                    A(f"ds_read_b64_tr_b16 {v(buf+20+4*nt+2*sidx,2)}, v{vTrE} offset:{ks*1280 + sidx*160 + nt*32}")
                    n += 1
        elif mode == 'r':
            A(f"ds_read_b128 {v(buf+20,4)}, v{vTrE} offset:{ks*64}")
            n += 1
        return n
    def mfmas(ks, mode):
        buf = vW[ks % 2]
        x = v(vX + 4*ks, 4)
        for nt in range(5):
            A(f"v_mfma_f32_16x16x32_bf16 {v(vAcc+4*nt,4)}, {v(buf+4*nt,4)}, {x}, {v(vAcc+4*nt,4)}")
        if mode == 'k':
            for nt in range(2):
                A(f"v_mfma_f32_16x16x32_bf16 {v(vAcc+20+4*nt,4)}, {v(buf+20+4*nt,4)}, {x}, {v(vAcc+20+4*nt,4)}")
        elif mode == 'v':
            for nt in range(2):
                A(f"v_mfma_f32_16x16x32_bf16 {v(vAcc+20+4*nt,4)}, {x}, {v(buf+20+4*nt,4)}, {v(vAcc+20+4*nt,4)}")
        elif mode == 'r':
            A(f"v_mfma_f32_16x16x32_bf16 {v(vAcc+20,4)}, {v(buf+20,4)}, {x}, {v(vAcc+20,4)}")
    def mainloop(mode):
        for j in range(5):
            A(f"s_waitcnt vmcnt({9*(4-j) + nEp})")
            A("s_barrier")
            reads(4*j, mode)
            for i in range(4):
                ks = 4*j + i
                if i < 3:
                    n = reads(ks + 1, mode)
                    A(f"s_waitcnt lgkmcnt({n})")
                else:
                    A("s_waitcnt lgkmcnt(0)")
                mfmas(ks, mode)
    if kind == 'qkv':
        A(f"""
        s_cmp_eq_u32 s{sCg}, 0
        s_cbranch_scc1 L_{P}_mk
        s_cmp_eq_u32 s{sCg}, 1
        s_cbranch_scc1 L_{P}_mv
        s_cmp_eq_u32 s{sCg}, 2
        s_cbranch_scc1 L_{P}_mr
        """)
        mainloop(None)
        A(f"""
        s_cmp_lg_u32 s2, 96
        s_cbranch_scc1 L_{P}_epi
        v_lshlrev_b32 v{vT}, 4, v0
        v_mov_b32 v{vEp}, 0
        v_mov_b32 v{vEp+1}, 0
        v_mov_b32 v{vEp+2}, 0
        v_mov_b32 v{vEp+3}, 0
        """)
        for i in range(5):
            A(f"s_mov_b32 s{sTmp}, {WS_Y + i*4096}")
            A(f"buffer_store_dwordx4 {v(vEp,4)}, v{vT}, {s(sSD,4)}, s{sTmp} offen")
        A(f"s_branch L_{P}_epi")
        A.label(f"L_{P}_mk")
        mainloop('k')
        A(f"""
        s_lshr_b32 s{sTmp}, s{sWave}, 1
        s_lshl_b32 s{sTmp2}, s{sTg}, 1
        s_add_u32 s{sTmp}, s{sTmp}, s{sTmp2}
        s_mul_i32 s{sTmp}, s{sTmp}, {TILE}
        s_add_u32 s{sTmp}, s{sTmp}, {WS_KV}
        s_and_b32 s{sTmp2}, s{sWave}, 1
        s_lshl_b32 s{sTmp2}, s{sTmp2}, 4
        v_add_u32 v{vT}, s{sTmp2}, v{vTok}            ; kk
        v_lshrrev_b32 v{vT+1}, 1, v{vG}               ; g/2
        v_lshl_add_u32 v{vT+2}, v{vT+1}, 5, v{vT}
        v_lshlrev_b32 v{vT+2}, 4, v{vT+2}
        v_and_b32 v{vT+1}, 1, v{vG}
        v_lshl_add_u32 v{vT+2}, v{vT+1}, 3, v{vT+2}   ; K1 offset
        v_lshlrev_b32 v{vT+3}, 2, v{vT}               ; K2 offset
        v_cvt_pk_bf16_f32 v{vEp}, v{vAcc+20}, v{vAcc+21}
        v_cvt_pk_bf16_f32 v{vEp+1}, v{vAcc+22}, v{vAcc+23}
        v_cvt_pk_bf16_f32 v{vEp+2}, v{vAcc+24}, v{vAcc+25}
        v_cvt_pk_bf16_f32 v{vEp+3}, v{vAcc+26}, v{vAcc+27}
        buffer_store_dwordx2 {v(vEp,2)}, v{vT+2}, {s(sSD,4)}, s{sTmp} offen
        s_mov_b64 exec, 0xffff
        buffer_store_dword v{vEp+2}, v{vT+3}, {s(sSD,4)}, s{sTmp} offen offset:{OFF_K2}
        buffer_store_dword v{vEp+3}, v{vT+3}, {s(sSD,4)}, s{sTmp} offen offset:{OFF_K2+128}
        s_mov_b64 exec, -1
        s_branch L_{P}_epi
        """)
        A.label(f"L_{P}_mv")
        mainloop('v')
        A(f"""
        s_lshr_b32 s{sTmp}, s{sWave}, 1
        s_lshl_b32 s{sTmp2}, s{sTg}, 1
        s_add_u32 s{sTmp}, s{sTmp}, s{sTmp2}
        s_mul_i32 s{sTmp}, s{sTmp}, {TILE}
        s_and_b32 s{sTmp2}, s{sWave}, 1
        s_mul_i32 s{sTmp2}, s{sTmp2}, 672
        s_add_u32 s{sTmp}, s{sTmp}, s{sTmp2}
        s_add_u32 s{sTmp}, s{sTmp}, {WS_KV + OFF_VA}
        v_lshrrev_b32 v{vT+1}, 1, v{vG}
        v_mul_u32_u24 v{vT+2}, 336, v{vT+1}
        v_lshl_add_u32 v{vT+2}, v{vTok}, 4, v{vT+2}
        v_and_b32 v{vT+1}, 1, v{vG}
        v_lshl_add_u32 v{vT+2}, v{vT+1}, 3, v{vT+2}   ; ha*336 + dv*16 + (g%2)*8
        v_cvt_pk_bf16_f32 v{vEp}, v{vAcc+20}, v{vAcc+21}
        v_cvt_pk_bf16_f32 v{vEp+1}, v{vAcc+22}, v{vAcc+23}
        v_cvt_pk_bf16_f32 v{vEp+2}, v{vAcc+24}, v{vAcc+25}
        v_cvt_pk_bf16_f32 v{vEp+3}, v{vAcc+26}, v{vAcc+27}
        v_mov_b32 v{vT+4}, 0x3f803f80
        v_cmp_eq_u32 vcc, 4, v{vTok}
        buffer_store_dwordx2 {v(vEp,2)}, v{vT+2}, {s(sSD,4)}, s{sTmp} offen
        s_nop 0
        v_cndmask_b32 v{vEp+2}, v{vEp+2}, v{vT+4}, vcc
        v_cndmask_b32 v{vEp+3}, v{vEp+3}, v{vT+4}, vcc
        v_cmp_gt_u32 vcc, 5, v{vTok}
        s_and_saveexec_b64 s[{sM}:{sM+1}], vcc
        buffer_store_dwordx2 {v(vEp+2,2)}, v{vT+2}, {s(sSD,4)}, s{sTmp} offen offset:256
        s_mov_b64 exec, -1
        s_branch L_{P}_epi
        """)
        A.label(f"L_{P}_mr")
        mainloop('r')
        A(f"""
        s_lshl_b32 s{sTmp}, s{sTg}, 6
        s_lshl_b32 s{sTmp2}, s{sWave}, 4
        s_add_u32 s{sTmp}, s{sTmp}, s{sTmp2}
        v_add_u32 v{vT}, s{sTmp}, v{vTok}             ; token
        v_sub_u32 v{vT+1}, 2047, v{vT}
        v_lshlrev_b32 v{vT}, 2, v{vT}
        s_nop 4
        v_ashrrev_i32 v{vT+2}, 31, v{vAcc+20}
        v_or_b32 v{vT+2}, 0x80000000, v{vT+2}
        v_xor_b32 v{vT+2}, v{vT+2}, v{vAcc+20}
        v_and_b32 v{vT+2}, 0xfffff800, v{vT+2}
        v_or_b32 v{vT+2}, v{vT+2}, v{vT+1}
        v_cvt_pk_bf16_f32 v{vT+3}, v{vAcc+21}, v{vAcc+21}
        s_nop 0
        v_max_u32_dpp v{vT+2}, v{vT+2}, v{vT+2} row_shr:1 row_mask:0xf bank_mask:0xf
        v_and_b32 v{vT+3}, 0xffff0000, v{vT+3}
        v_mul_f32 v{vT+3}, {hex(fbits(-math.log2(math.e)))}, v{vT+3}
        v_max_u32_dpp v{vT+2}, v{vT+2}, v{vT+2} row_shr:2 row_mask:0xf bank_mask:0xf
        v_exp_f32 v{vT+3}, v{vT+3}
        s_nop 0
        v_max_u32_dpp v{vT+2}, v{vT+2}, v{vT+2} row_shr:4 row_mask:0xf bank_mask:0xf
        v_add_f32 v{vT+3}, 1.0, v{vT+3}
        v_rcp_f32 v{vT+3}, v{vT+3}
        v_max_u32_dpp v{vT+2}, v{vT+2}, v{vT+2} row_shr:8 row_mask:0xf bank_mask:0xf
        v_cvt_pk_bf16_f32 v{vT+3}, v{vT+3}, v{vT+3}
        v_and_b32 v{vT+3}, 0xffff0000, v{vT+3}
        s_mov_b32 s{sTmp2}, {WS_G}
        s_mov_b64 exec, 0xffff
        buffer_store_dword v{vT+3}, v{vT}, {s(sSD,4)}, s{sTmp2} offen
        s_lshr_b32 s{sTmp}, s{sTmp}, 2                ; (token0/16)*4
        s_add_u32 s{sTmp}, s{sTmp}, {WS_KEY}
        v_mov_b32 v{vT+4}, 0
        s_mov_b64 exec, 0x8000
        buffer_store_dword v{vT+2}, v{vT+4}, {s(sSD,4)}, s{sTmp} offen
        s_mov_b64 exec, -1
        """)
        A.label(f"L_{P}_epi")
        cq = math.log2(math.e) / math.sqrt(20.0)
        A(f"""
        s_mul_i32 s{sTmp}, s{sCg}, 160
        s_mul_i32 s{sTmp2}, s{sTg}, {64*1280}
        s_add_u32 s{sTmp}, s{sTmp}, s{sTmp2}
        s_add_u32 s{sTmp}, s{sTmp}, {WS_Q}
        s_mov_b32 s{sTmp2}, {hex(fbits(cq))}
        s_nop 4
        """)
        for i in range(20):
            A(f"v_mul_f32 v{vAcc+i}, s{sTmp2}, v{vAcc+i}")
        for nt in range(5):
            A(f"v_cvt_pk_bf16_f32 v{vY+2*nt}, v{vAcc+4*nt}, v{vAcc+4*nt+1}")
            A(f"v_cvt_pk_bf16_f32 v{vY+2*nt+1}, v{vAcc+4*nt+2}, v{vAcc+4*nt+3}")
            A(f"buffer_store_dwordx2 {v(vY+2*nt,2)}, v{vXO}, {s(sSD,4)}, s{sTmp} offen offset:{nt*32}")
    else:
        A("s_waitcnt lgkmcnt(0)")
        mainloop(None)
        vB = vX
        A("s_waitcnt vmcnt(0) lgkmcnt(0)")
        for nt in range(5):
            A(f"v_lshlrev_b32 v{vB+4*nt}, 16, v{vEp+2*nt}")
            A(f"v_and_b32 v{vB+4*nt+1}, 0xffff0000, v{vEp+2*nt}")
            A(f"v_lshlrev_b32 v{vB+4*nt+2}, 16, v{vEp+2*nt+1}")
            A(f"v_and_b32 v{vB+4*nt+3}, 0xffff0000, v{vEp+2*nt+1}")
        A(f"""
        s_lshr_b32 s{sTmp}, s{sSel}, 4               ; idx/16
        s_lshl_b32 s{sTmp2}, s{sTg}, 2
        s_add_u32 s{sTmp2}, s{sTmp2}, s{sWave}
        s_cmp_lg_u32 s{sTmp}, s{sTmp2}
        s_cbranch_scc1 L_{P}_nosel
        """)
        for nt in range(5):
            A(f"""
            s_mul_i32 s{sTmp}, s{sCg}, 80
            v_lshlrev_b32 v{vT}, 2, v{vG}
            v_add_u32 v{vT}, s{sTmp}, v{vT}
            v_add_u32 v{vT}, {nt*16}, v{vT}             ; n0
            v_lshrrev_b32 v{vT+1}, 7, v{vT}             ; i
            v_and_b32 v{vT+2}, 127, v{vT}
            v_lshlrev_b32 v{vT+2}, 1, v{vT+2}           ; l*4 bytes = (n0%128)/2*4
            v_lshl_add_u32 v{vT+2}, v{vT+1}, 9, v{vT+2} ; + i*512
            v_and_b32 v{vT+1}, 7, v{vLane}
            v_mul_u32_u24 v{vT+1}, 2560, v{vT+1}
            v_add_u32 v{vT+2}, v{vT+2}, v{vT+1}
            s_mov_b32 s{sTmp}, {WS_Y}
            buffer_load_dwordx2 {v(vY+4*nt,2)}, v{vT+2}, {s(sSD,4)}, s{sTmp} offen            ; cols n0, n0+2
            buffer_load_dwordx2 {v(vY+4*nt+2,2)}, v{vT+2}, {s(sSD,4)}, s{sTmp} offen offset:256 ; cols n0+1, n0+3
            """)
        A("s_waitcnt vmcnt(0)")
        for step in ("quad_perm:[1,0,3,2]", "quad_perm:[2,3,0,1]", "row_half_mirror"):
            for i in range(20):
                A(f"v_add_f32_dpp v{vY+i}, v{vY+i}, v{vY+i} {step} row_mask:0xf bank_mask:0xf")
        A(f"""
        s_and_b32 s{sTmp}, s{sSel}, 15
        v_cmp_eq_u32 vcc, s{sTmp}, v{vTok}
        s_and_saveexec_b64 s[{sM}:{sM+1}], vcc
        """)
        for nt in range(5):
            for (yi, bi) in ((0, 0), (1, 2), (2, 1), (3, 3)):
                y = vY + 4*nt + yi; b = vB + 4*nt + bi
                A(f"""
                v_cvt_pk_bf16_f32 v{y}, v{y}, v{y}
                v_and_b32 v{y}, 0xffff0000, v{y}
                v_mul_f32 v{y}, s{sSel+1}, v{y}
                v_cvt_pk_bf16_f32 v{y}, v{y}, v{y}
                v_and_b32 v{y}, 0xffff0000, v{y}
                v_add_f32 v{b}, v{b}, v{y}
                v_cvt_pk_bf16_f32 v{b}, v{b}, v{b}
                v_and_b32 v{b}, 0xffff0000, v{b}
                """)
        A("s_mov_b64 exec, -1")
        A.label(f"L_{P}_nosel")
        g = vEp + 10; omg = vEp + 11
        A(f"""
        v_sub_f32 v{omg}, 1.0, v{g}
        v_cvt_pk_bf16_f32 v{omg}, v{omg}, v{omg}
        v_and_b32 v{omg}, 0xffff0000, v{omg}
        """)
        for i in range(20):
            A(f"v_mul_f32 v{vB+i}, v{omg}, v{vB+i}")
        for i in range(20):
            A(f"v_fma_f32 v{vB+i}, v{g}, v{vAcc+i}, v{vB+i}")
        for nt in range(5):
            A(f"v_cvt_pk_bf16_f32 v{vY+2*nt}, v{vB+4*nt}, v{vB+4*nt+1}")
            A(f"v_cvt_pk_bf16_f32 v{vY+2*nt+1}, v{vB+4*nt+2}, v{vB+4*nt+3}")
            A(f"buffer_store_dwordx2 {v(vY+2*nt,2)}, v{vXO}, {s(sOD,4)}, s{sE2} offen offset:{nt*32}")
    A.label(f"L_{P}_end")
    A("s_endpgm")
    return A.text(), R.next
```

```python
from asmlib import *
from layout import *

def gen_attn(name="attn_kernel", with_helper=False, stamp=False):
    A = Asm()
    R = RegAlloc(1)
    vT = R.alloc("T", 7)
    vQ1 = R.alloc("Q1", 4, 4); vQ2 = R.alloc("Q2", 2, 2)
    vIdx = R.alloc("idx"); vLane = R.alloc("lane")
    vK1 = [R.alloc(f"K1{i}", 4, 4) for i in range(2)]
    vK2 = [R.alloc(f"K2{i}", 2, 2) for i in range(2)]
    vVa = [R.alloc(f"Va{i}", 4, 4) for i in range(2)]
    vVb = [R.alloc(f"Vb{i}", 4, 4) for i in range(2)]
    vS = [R.alloc(f"S{i}", 16, 4) for i in range(2)]
    vO = R.alloc("O", 16, 4)
    vAK1 = R.alloc("AK1"); vAK2 = R.alloc("AK2"); vAV = R.alloc("AV"); vQO = R.alloc("QO")
    vM = R.alloc("M")
    sWS = 4
    sSRD = 8
    sKVD = 12
    sWave = 16; sIter = 17; sRetry = 18; sKVoff = 19; sTmp = 20; sHead = 21
    sLo32 = 22

    A.raw(kernel_header(name))
    A(f"""
    s_cmp_ge_u32 s2, 256
    s_cbranch_scc1 L_attn_end
    s_load_dwordx2 s[{sWS}:{sWS+1}], s[0:1], {KA_WS}
    {"s_memtime s[40:41]" if stamp else ""}
    {"s_memrealtime s[48:49]" if stamp else ""}
    v_lshrrev_b32 v{vT}, 6, v0
    v_and_b32 v{vLane}, 63, v0
    v_readfirstlane_b32 s{sWave}, v{vT}
    v_and_b32 v{vT+1}, 31, v0                 ; l%32
    v_lshrrev_b32 v{vT+2}, 5, v{vLane}        ; half
    v_lshlrev_b32 v{vAK1}, 4, v{vLane}
    v_lshlrev_b32 v{vAK2}, 2, v{vLane}
    v_min_u32 v{vT+3}, 20, v{vT+1}
    v_lshlrev_b32 v{vT+3}, 4, v{vT+3}
    v_mul_u32_u24 v{vAV}, 336, v{vT+2}
    v_add_u32 v{vAV}, v{vAV}, v{vT+3}
    s_lshr_b32 s{sTmp}, s2, 2
    s_and_b32 s{sHead}, s2, 3
    s_lshl_b32 s{sHead}, s{sHead}, 3
    s_add_u32 s{sHead}, s{sHead}, s{sWave}    ; head
    s_mul_i32 s{sTmp}, s{sTmp}, {32*1280}
    s_mul_i32 s{sHead}, s{sHead}, 40
    s_add_u32 s{sTmp}, s{sTmp}, s{sHead}
    v_mul_u32_u24 v{vQO}, 1280, v{vT+1}
    v_add_u32 v{vQO}, s{sTmp}, v{vQO}
    v_lshlrev_b32 v{vT+4}, 4, v{vT+2}
    v_add_u32 v{vT+4}, v{vQO}, v{vT+4}        ; + 16*half  (Q1)
    v_lshlrev_b32 v{vT+5}, 2, v{vT+2}
    v_add_u32 v{vT+5}, v{vQO}, v{vT+5}
    v_lshlrev_b32 v{vT+6}, 3, v{vT+2}
    v_add_u32 v{vQO}, v{vQO}, v{vT+6}
    s_mov_b32 s{sKVoff}, {WS_KV}
    s_mov_b32 s{sRetry}, 0
    s_mov_b32 s{sLo32}, -1
    s_mov_b32 s{sLo32+1}, 0
    s_waitcnt lgkmcnt(0)
    s_mov_b32 s{sSRD}, s{sWS}
    s_mov_b32 s{sSRD+1}, s{sWS+1}
    s_mov_b32 s{sSRD+2}, {WS_SIZE}
    s_mov_b32 s{sSRD+3}, 0x00020000
    s_add_u32 s{sKVD}, s{sWS}, {WS_KV + LDS_SKIP}
    s_addc_u32 s{sKVD+1}, s{sWS+1}, 0
    s_mov_b32 s{sKVD+2}, {KV_BYTES - LDS_SKIP}
    s_mov_b32 s{sKVD+3}, 0x00020000
    """)
    srd = s(sSRD, 4)
    if with_helper:
        A(f"s_cmp_eq_u32 s{sWave}, 8\ns_cbranch_scc1 L_ffn")
        A("s_setprio 1")
    def direct_loads():
        A(f"""
        buffer_load_dwordx4 {v(vK1[0],4)}, v{vAK1}, {srd}, s{sKVoff} offen offset:{OFF_K1}
        buffer_load_dword v{vK2[0]}, v{vAK2}, {srd}, s{sKVoff} offen offset:{OFF_K2}
        buffer_load_dwordx4 {v(vK1[1],4)}, v{vAK1}, {srd}, s{sKVoff} offen offset:{TILE+OFF_K1}
        buffer_load_dword v{vK2[1]}, v{vAK2}, {srd}, s{sKVoff} offen offset:{TILE+OFF_K2}
        buffer_load_dwordx4 {v(vVa[0],4)}, v{vAV}, {srd}, s{sKVoff} offen offset:{OFF_VA}
        buffer_load_dwordx4 {v(vVb[0],4)}, v{vAV}, {srd}, s{sKVoff} offen offset:{OFF_VB}
        buffer_load_dwordx4 {v(vVa[1],4)}, v{vAV}, {srd}, s{sKVoff} offen offset:{TILE+OFF_VA}
        """)
    A(f"""
    buffer_load_dwordx4 {v(vQ1,4)}, v{vT+4}, {srd}, 0 offen
    buffer_load_dword v{vQ2}, v{vT+5}, {srd}, 0 offen offset:32
    """)
    direct_loads()
    A(f"s_lshl_b32 s{sTmp}, s{sWave}, 12")
    for r in range(5):
        A(f"s_add_u32 m0, s{sTmp}, {r*32768}")
        A("s_nop 0")
        for j in range(4):
            A(f"buffer_load_dwordx4 v{vAK1}, {s(sKVD,4)}, m0 offen offset:{j*1024} lds")
    A(f"""
    v_mov_b32 v{vIdx}, 0xdddddddd
    v_mov_b32 v{vK2[0]+1}, 0x3f803f80
    v_mov_b32 v{vK2[1]+1}, 0x3f803f80
    v_mov_b32 v{vQ2+1}, 0
    """)
    def qk(dst, kb):
        return (f"v_mfma_f32_32x32x16_bf16 {v(dst,16)}, {v(vK1[kb],4)}, {v(vQ1,4)}, 0",
                f"v_mfma_f32_32x32x8_bf16 {v(dst,16)}, {v(vK2[kb],2)}, {v(vQ2,2)}, {v(dst,16)}")
    def set_m():
        A(f"""
        v_mov_b32 v{vT}, v{vM}
        s_nop 1
        v_permlane32_swap_b32 v{vM}, v{vT}
        s_nop 1
        v_max_f32 v{vM}, v{vM}, v{vT}
        v_xor_b32 v{vM}, 0x80000000, v{vM}
        v_and_b32 v{vT}, 0xffff0000, v{vM}         ; hi
        v_sub_f32 v{vT+1}, v{vM}, v{vT}            ; r1
        v_and_b32 v{vT+2}, 0xffff0000, v{vT+1}     ; mid
        v_sub_f32 v{vT+1}, v{vT+1}, v{vT+2}        ; r2
        v_lshrrev_b32 v{vT}, 16, v{vT}
        v_or_b32 v{vT}, v{vT}, v{vT+2}
        v_lshrrev_b32 v{vT+1}, 16, v{vT+1}         ; lo
        v_cndmask_b32 v{vQ2+1}, v{vT+1}, v{vT}, s[{sLo32}:{sLo32+1}]
        """)
    A(f"s_waitcnt vmcnt({5+20})")
    a, b = qk(vS[0], 0)
    A(a); A(b)
    A("s_nop 15")
    A(f"v_max3_f32 v{vM}, v{vS[0]}, v{vS[0]+1}, v{vS[0]+2}")
    for i in range(3, 15, 2):
        A(f"v_max3_f32 v{vM}, v{vM}, v{vS[0]+i}, v{vS[0]+i+1}")
    A(f"v_max_f32 v{vM}, v{vM}, v{vS[0]+15}")
    set_m()
    A(f"s_waitcnt vmcnt(16)")
    A("s_barrier")
    A.label("L_attn_start")
    if stamp: A("s_memtime s[42:43]\ns_waitcnt lgkmcnt(0)")
    for i in range(16):
        A(f"v_mov_b32 v{vO+i}, 0")
    for i in range(8, 16):
        A(f"v_mov_b32 v{vS[1]+i}, 0")
    for i in range(4):
        A(f"v_mov_b32 v{vVb[1]+i}, 0")
    a, b = qk(vS[0], 0)
    A(a); A(b)
    A(f"s_mov_b32 s{sIter}, 0")
    A("s_nop 9")
    A("s_nop 0")
    A.raw(".p2align 6")
    A.label("L_attn_loop")
    for u in range(8):
        X = vS[u % 2]; Y = vS[(u + 1) % 2]
        e = lambda i: A(f"v_exp_f32 v{X+i}, v{X+i}")
        e(0); e(1)
        A(f"v_smfmac_f32_32x32x32_bf16 {v(vO,16)}, {v(vVb[(u+1)%2],4)}, {v(Y+8,8)}, v{vIdx}")
        e(2); e(3); e(4); e(5)
        A("s_waitcnt lgkmcnt(0)")
        a, b = qk(Y, (u + 1) % 2)
        A(a)
        e(6); e(7)
        A(b)
        A(f"ds_read_b128 {v(vK1[u%2],4)}, v{vAK1} offset:{(u+2)*TILE+OFF_K1-LDS_SKIP}")
        e(8)
        A(f"ds_read_b32 v{vK2[u%2]}, v{vAK2} offset:{(u+2)*TILE+OFF_K2-LDS_SKIP}")
        e(9)
        A(f"ds_read_b128 {v(vVb[(u+1)%2],4)}, v{vAV} offset:{(u+1)*TILE+OFF_VB-LDS_SKIP}")
        e(10); e(11)
        A(f"v_smfmac_f32_32x32x32_bf16 {v(vO,16)}, {v(vVa[u%2],4)}, {v(X,8)}, v{vIdx}")
        e(12)
        A(f"ds_read_b128 {v(vVa[u%2],4)}, v{vAV} offset:{(u+2)*TILE+OFF_VA-LDS_SKIP}")
        e(13); e(14); e(15)
    A(f"""
    v_add_u32 v{vAK1}, {8*TILE}, v{vAK1}
    v_add_u32 v{vAK2}, {8*TILE}, v{vAK2}
    v_add_u32 v{vAV}, {8*TILE}, v{vAV}
    s_add_u32 s{sIter}, s{sIter}, 1
    s_add_u32 s{sTmp}, s{sIter}, s{sRetry}
    s_cmp_eq_u32 s{sTmp}, 1
    s_cbranch_scc1 L_attn_b2
    s_cmp_eq_u32 s{sTmp}, 4
    s_cbranch_scc1 L_attn_b3
    s_cmp_lt_u32 s{sIter}, 8
    s_cbranch_scc1 L_attn_loop
    s_branch L_attn_fin
    """)
    A.label("L_attn_b2")
    A("s_waitcnt vmcnt(8)\ns_barrier\ns_branch L_attn_loop")
    A.label("L_attn_b3")
    A("s_waitcnt vmcnt(0)\ns_barrier\ns_branch L_attn_loop")
    A.label("L_attn_fin")
    if stamp: A("s_memtime s[44:45]")
    A("s_waitcnt lgkmcnt(0)")
    A(f"v_smfmac_f32_32x32x32_bf16 {v(vO,16)}, {v(vVb[1],4)}, {v(vS[1]+8,8)}, v{vIdx}")
    A(f"""
    v_subrev_u32 v{vAK1}, {64*TILE}, v{vAK1}
    v_subrev_u32 v{vAK2}, {64*TILE}, v{vAK2}
    v_subrev_u32 v{vAV}, {64*TILE}, v{vAV}
    s_mov_b32 s{sTmp}, 0x5f800000             ; 2^64
    s_nop 8
    v_mul_f32 v{vT}, 0, v{vO}
    """)
    for i in range(1, 12):
        A(f"v_fma_f32 v{vT}, 0, v{vO+i}, v{vT}")
    A(f"""
    v_add_f32 v{vT}, v{vT}, v{vO+12}
    v_cmp_nge_f32 vcc, s{sTmp}, v{vT}         ; !(2^64 >= l)
    s_cmp_lg_u32 s{sRetry}, 0
    s_cbranch_scc1 L_attn_store
    s_cbranch_vccnz L_attn_fallback
    """)
    A.label("L_attn_store")
    A(f"v_rcp_f32 v{vT}, v{vO+12}")
    A("s_nop 0")
    for i in range(12):
        A(f"v_mul_f32 v{vO+i}, v{vO+i}, v{vT}")
    for i in range(6):
        A(f"v_cvt_pk_bf16_f32 v{vS[0]+i}, v{vO+2*i}, v{vO+2*i+1}")
    A(f"""
    s_mov_b32 s{sTmp}, {WS_O}
    buffer_store_dwordx2 {v(vS[0],2)}, v{vQO}, {srd}, s{sTmp} offen
    buffer_store_dwordx2 {v(vS[0]+2,2)}, v{vQO}, {srd}, s{sTmp} offen offset:16
    s_mov_b64 exec, s[{sLo32}:{sLo32+1}]
    buffer_store_dwordx2 {v(vS[0]+4,2)}, v{vQO}, {srd}, s{sTmp} offen offset:32
    """)
    if stamp:
        A(f"""
        s_waitcnt vmcnt(0)
        s_memtime s[46:47]
        s_memrealtime s[50:51]
        s_waitcnt lgkmcnt(0)
        s_sub_u32 s42, s42, s40
        s_sub_u32 s44, s44, s40
        s_sub_u32 s46, s46, s40
        s_sub_u32 s50, s50, s48
        v_mov_b32 v{vS[1]}, s42
        v_mov_b32 v{vS[1]+1}, s44
        v_mov_b32 v{vS[1]+2}, s46
        v_mov_b32 v{vS[1]+3}, s50
        v_mov_b32 v{vS[1]+4}, s48
        v_mov_b32 v{vS[1]+5}, s49
        v_mov_b32 v{vS[1]+6}, 0
        v_mov_b32 v{vS[1]+7}, 0
        s_lshl_b32 s{sTmp}, s2, 3
        s_add_u32 s{sTmp}, s{sTmp}, s{sWave}
        s_lshl_b32 s{sTmp}, s{sTmp}, 5
        s_add_u32 s{sTmp}, s{sTmp}, 0x780000
        v_mov_b32 v{vT}, 0
        s_mov_b64 exec, 1
        buffer_store_dwordx4 {v(vS[1],4)}, v{vT}, {srd}, s{sTmp} offen
        buffer_store_dwordx4 {v(vS[1]+4,4)}, v{vT}, {srd}, s{sTmp} offen offset:16
        """)
    A.label("L_attn_end")
    A("s_endpgm")
    A.label("L_attn_fallback")
    A(f"""
    s_mov_b32 s{sRetry}, 16
    v_mov_b32 v{vQ2+1}, 0
    v_mov_b32 v{vM}, 0xff800000
    s_mov_b32 s{sTmp}, {WS_KV}
    """)
    A.label("L_attn_fb_loop")
    A(f"""
    buffer_load_dwordx4 {v(vK1[0],4)}, v{vAK1}, {srd}, s{sTmp} offen offset:{OFF_K1}
    buffer_load_dword v{vK2[0]}, v{vAK2}, {srd}, s{sTmp} offen offset:{OFF_K2}
    s_waitcnt vmcnt(0)
    """)
    a, b = qk(vS[0], 0)
    A(a); A(b)
    A("s_nop 15")
    for i in range(0, 16, 2):
        A(f"v_max3_f32 v{vM}, v{vM}, v{vS[0]+i}, v{vS[0]+i+1}")
    A(f"""
    s_add_u32 s{sTmp}, s{sTmp}, {TILE}
    s_cmp_lt_u32 s{sTmp}, {WS_KV + KV_BYTES}
    s_cbranch_scc1 L_attn_fb_loop
    """)
    set_m()
    direct_loads()
    A("s_waitcnt vmcnt(0)")
    A("s_branch L_attn_start")
    nv = R.next
    if with_helper:
        nv = max(nv, gen_ffn(A, sSRD, vLane))
    return A.text(), nv

import math, struct
def fbits(x):
    return struct.unpack("<I", struct.pack("<f", x))[0]

def gen_ffn(A, sSRD, vLane_in, nbar=3):
    R = RegAlloc(1)
    vT = R.alloc("T", 7)
    vLane = R.alloc("lane")
    vKey = R.alloc("key", 2, 2)
    vG = R.alloc("G", 40, 4); vU = R.alloc("U", 40, 4); vD = R.alloc("D", 40, 4)
    vXs = R.alloc("xs", 10); vAc = R.alloc("ac", 16);
    srd = s(sSRD, 4)
    sX = 24; sG = 28; sU = 32; sD = 36
    sP = 60
    sF = 40; sT = 41; sT2 = 42; sIdx = 43; sKey = 44; sH = 70
    A.label("L_ffn")
    A(f"""
    v_mov_b32 v{vLane}, v{vLane_in}
    s_cmp_ge_u32 s2, 192
    s_cbranch_scc1 L_attn_end
    s_load_dwordx2 s[{sP}:{sP+1}], s[0:1], {KA_X}
    s_load_dwordx2 s[{sP+2}:{sP+3}], s[0:1], {KA_WG}
    s_load_dwordx4 s[{sP+4}:{sP+7}], s[0:1], {KA_WU}
    s_and_b32 s{sF}, s2, 7
    s_mul_i32 s{sF}, s{sF}, 24
    s_lshr_b32 s{sT}, s2, 3
    s_add_u32 s{sF}, s{sF}, s{sT}
    v_lshlrev_b32 v{vT}, 3, v{vLane}
    s_mov_b32 s{sT}, {WS_KEY}
    buffer_load_dwordx2 {v(vKey,2)}, v{vT}, {srd}, s{sT} offen
    v_mul_u32_u24 v{vT+1}, 3072, v{vLane}       ; row*3072
    v_lshlrev_b32 v{vT+2}, 2, v{vLane}          ; lane*4
    v_lshlrev_b32 v{vT+3}, 1, v{vLane}          ; lane*2
    s_waitcnt lgkmcnt(0)
    """)
    for (sd, p, sz) in ((sX, sP, 2048*1280), (sG, sP+2, 640*3072), (sU, sP+4, 640*3072), (sD, sP+6, 1536*1280)):
        A(f"""
        s_mov_b32 s{sd}, s{p}
        s_mov_b32 s{sd+1}, s{p+1}
        s_mov_b32 s{sd+2}, {sz}
        s_mov_b32 s{sd+3}, 0x00020000
        """)
    A(f"s_lshl_b32 s{sT}, s{sF}, 4")
    for i in range(10):
        A(f"buffer_load_dwordx4 {v(vG+4*i,4)}, v{vT+1}, {s(sG,4)}, s{sT} offen")
        A(f"buffer_load_dwordx4 {v(vU+4*i,4)}, v{vT+1}, {s(sU,4)}, s{sT} offen")
        A(f"s_add_u32 s{sT}, s{sT}, {64*3072}")
    A("s_barrier")
    A(f"""
    s_waitcnt vmcnt(20)
    v_max_u32 v{vKey}, v{vKey}, v{vKey+1}
    s_nop 1
    v_max_u32_dpp v{vKey}, v{vKey}, v{vKey} row_shr:1 row_mask:0xf bank_mask:0xf
    s_nop 1
    v_max_u32_dpp v{vKey}, v{vKey}, v{vKey} row_shr:2 row_mask:0xf bank_mask:0xf
    s_nop 1
    v_max_u32_dpp v{vKey}, v{vKey}, v{vKey} row_shr:4 row_mask:0xf bank_mask:0xf
    s_nop 1
    v_max_u32_dpp v{vKey}, v{vKey}, v{vKey} row_shr:8 row_mask:0xf bank_mask:0xf
    s_nop 1
    v_readlane_b32 s{sKey}, v{vKey}, 15
    v_readlane_b32 s{sT}, v{vKey}, 31
    v_readlane_b32 s{sT2}, v{vKey}, 47
    v_readlane_b32 s{sIdx}, v{vKey}, 63
    s_nop 3
    s_max_u32 s{sKey}, s{sKey}, s{sT}
    s_max_u32 s{sT2}, s{sT2}, s{sIdx}
    s_max_u32 s{sKey}, s{sKey}, s{sT2}
    s_and_b32 s{sIdx}, s{sKey}, 0x7ff
    s_sub_u32 s{sIdx}, 2047, s{sIdx}
    s_mul_i32 s{sT}, s{sIdx}, 1280
    """)
    for i in range(10):
        A(f"buffer_load_ushort v{vXs+i}, v{vT+3}, {s(sX,4)}, s{sT} offen offset:{128*i}")
    A(f"s_mul_i32 s{sT}, s{sF}, {8*1280}")
    for j in range(8):
        for i in range(5):
            A(f"buffer_load_dword v{vD+5*j+i}, v{vT+2}, {s(sD,4)}, s{sT} offen offset:{256*i}")
        A(f"s_add_u32 s{sT}, s{sT}, 1280")
    A(f"""
    s_cmp_lg_u32 s2, 0
    s_cbranch_scc1 L_ffn_nosel
    s_and_b32 s{sT}, s{sKey}, 0xfffff800
    s_not_b32 s{sT2}, s{sT}
    s_and_b32 s{sT}, s{sT}, 0x7fffffff
    s_cmp_lt_i32 s{sKey}, 0
    s_cselect_b32 s{sT}, s{sT}, s{sT2}          ; r bits
    v_mov_b32 v{vT+5}, s{sT}
    v_cvt_pk_bf16_f32 v{vT+5}, v{vT+5}, v{vT+5}
    v_and_b32 v{vT+5}, 0xffff0000, v{vT+5}
    v_mul_f32 v{vT+5}, {hex(fbits(-math.log2(math.e)))}, v{vT+5}
    v_exp_f32 v{vT+5}, v{vT+5}
    s_nop 0
    v_add_f32 v{vT+5}, 1.0, v{vT+5}
    v_rcp_f32 v{vT+5}, v{vT+5}
    s_nop 0
    v_cvt_pk_bf16_f32 v{vT+5}, v{vT+5}, v{vT+5}
    v_and_b32 v{vKey+1}, 0xffff0000, v{vT+5}
    v_mov_b32 v{vKey}, s{sIdx}
    v_mov_b32 v{vT+4}, 0
    s_mov_b32 s{sT}, {WS_SEL}
    s_mov_b64 exec, 1
    buffer_store_dwordx2 {v(vKey,2)}, v{vT+4}, {srd}, s{sT} offen
    s_mov_b64 exec, -1
    """)
    A.label("L_ffn_nosel")
    for b in range(nbar - 1):
        A("s_barrier")
    for i in range(16):
        A(f"v_mov_b32 v{vAc+i}, 0")
    A("s_waitcnt vmcnt(0)")
    for i in range(10):
        A(f"v_lshlrev_b32 v{vT+4}, 16, v{vXs+i}")
        for c in range(4):
            A(f"v_dot2_f32_bf16 v{vAc+2*c}, v{vG+4*i+c}, v{vXs+i}, v{vAc+2*c}")
            A(f"v_dot2_f32_bf16 v{vAc+8+2*c}, v{vU+4*i+c}, v{vXs+i}, v{vAc+8+2*c}")
        for c in range(4):
            A(f"v_dot2_f32_bf16 v{vAc+2*c+1}, v{vG+4*i+c}, v{vT+4}, v{vAc+2*c+1}")
            A(f"v_dot2_f32_bf16 v{vAc+8+2*c+1}, v{vU+4*i+c}, v{vT+4}, v{vAc+8+2*c+1}")
    A("s_nop 2")
    for step in ("row_shr:1 row_mask:0xf", "row_shr:2 row_mask:0xf", "row_shr:4 row_mask:0xf", "row_shr:8 row_mask:0xf",
                 "row_bcast:15 row_mask:0xa", "row_bcast:31 row_mask:0xc"):
        for i in range(16):
            A(f"v_add_f32_dpp v{vAc+i}, v{vAc+i}, v{vAc+i} {step} bank_mask:0xf")
    for f in range(8):
        g = vAc + f; u = vAc + 8 + f
        A(f"""
        v_cvt_pk_bf16_f32 v{g}, v{g}, v{u}
        v_and_b32 v{u}, 0xffff0000, v{g}
        v_lshlrev_b32 v{g}, 16, v{g}
        v_mul_f32 v{vT+4}, {hex(fbits(-math.log2(math.e)))}, v{g}
        v_exp_f32 v{vT+4}, v{vT+4}
        s_nop 0
        v_add_f32 v{vT+4}, 1.0, v{vT+4}
        v_rcp_f32 v{vT+4}, v{vT+4}
        s_nop 0
        v_mul_f32 v{g}, v{g}, v{vT+4}
        v_cvt_pk_bf16_f32 v{g}, v{g}, v{g}
        v_and_b32 v{g}, 0xffff0000, v{g}
        v_mul_f32 v{g}, v{g}, v{u}
        v_cvt_pk_bf16_f32 v{g}, v{g}, v{g}
        v_and_b32 v{g}, 0xffff0000, v{g}
        s_nop 0
        v_readlane_b32 s{sH+2*f+1}, v{g}, 63
        """)
    A("s_nop 3")
    for f in range(8):
        A(f"s_lshr_b32 s{sH+2*f}, s{sH+2*f+1}, 16")
    for i in range(10):
        A(f"v_mov_b32 v{vAc+i}, 0")
    for j in range(8):
        for i in range(5):
            A(f"v_dot2_f32_bf16 v{vAc+2*i}, v{vD+5*j+i}, s{sH+2*j}, v{vAc+2*i}")
            A(f"v_dot2_f32_bf16 v{vAc+2*i+1}, v{vD+5*j+i}, s{sH+2*j+1}, v{vAc+2*i+1}")
    A(f"""
    s_and_b32 s{sT}, s2, 7
    s_mul_i32 s{sT}, s{sT}, 2560
    s_add_u32 s{sT}, s{sT}, {WS_Y}
    s_nop 1
    """)
    for i in range(10):
        A(f"buffer_atomic_add_f32 v{vAc+i}, v{vT+2}, {srd}, s{sT} offen offset:{256*i}")
    A("s_endpgm")
    return R.next
```

```python
WS_Q   = 0x000000
WS_O   = 0x300000
WS_KV  = 0x600000
WS_G   = 0x700000
WS_KEY = 0x710000
WS_Y   = 0x720000
WS_SEL = 0x730000
WS_SIZE = 0x800000
TILE = 2624
OFF_K1, OFF_K2, OFF_VA, OFF_VB = 0, 1024, 1280, 1952
LDS_SKIP = 4576
KV_BYTES = 64 * TILE
KA_X, KA_WQ, KA_WK, KA_WV, KA_WO, KA_BX, KA_WR, KA_WG, KA_WU, KA_WD, KA_GW, KA_OUT, KA_DBG, KA_WS = [8 * i for i in range(14)]
```

```python
import sys
sys.path.insert(0, "gen")
from asmlib import *
import k2, k13
NAME = "gated_mix__grouped_kv_mqa__moe_arch_mod__prompt"
def build(stamp=False):
    b1, n1 = k13.gen_gemm("qkv_kernel", "qkv")
    b2, n2 = k2.gen_attn("attn_kernel", with_helper=True, stamp=stamp)
    b3, n3 = k13.gen_gemm("out_kernel", "out")
    txt = "; generated by gen/gen.py\n"
    txt += "; @launch kernel=qkv_kernel grid=(256,1,1) block=(256,1,1) lds=131072\n"
    txt += "; @launch kernel=attn_kernel grid=(256,1,1) block=(576,1,1) lds=163840\n"
    txt += "; @launch kernel=out_kernel grid=(256,1,1) block=(256,1,1) lds=102400\n"
    txt += '.amdgcn_target "amdgcn-amd-amdhsa--gfx950"\n.text\n' + b1 + b2 + b3
    txt += '.section .rodata,"a"\n' + kernel_desc("qkv_kernel", n1) + kernel_desc("attn_kernel", n2) + kernel_desc("out_kernel", n3)
    return txt
if __name__ == "__main__":
    open(f"cdna_kernels/{NAME}.s", "w").write(build())
```

```python
class Asm:
    def __init__(self):
        self.lines = []
        self.uid = 0
    def __call__(self, s):
        for ln in s.strip("\n").split("\n"):
            self.lines.append("    " + ln.strip())
    def label(self, name):
        self.lines.append(f"{name}:")
    def raw(self, s):
        self.lines.append(s)
    def newlabel(self, base):
        self.uid += 1
        return f"L_{base}_{self.uid}"
    def text(self):
        return "\n".join(self.lines) + "\n"

def v(a, n=1):
    return f"v{a}" if n == 1 else f"v[{a}:{a+n-1}]"
def s(a, n=1):
    return f"s{a}" if n == 1 else f"s[{a}:{a+n-1}]"

class RegAlloc:
    def __init__(self, start=0, limit=256):
        self.next = start
        self.limit = limit
        self.names = {}
    def alloc(self, name, n=1, align=1):
        a = (self.next + align - 1) // align * align
        self.next = a + n
        assert self.next <= self.limit, f"out of regs at {name}"
        self.names[name] = a
        return a

def kernel_header(name):
    return f""".globl {name}
.p2align 8
.type {name},@function
{name}:
"""

def kernel_desc(name, nvgpr, nsgpr=102, accum=None):
    if accum is None:
        accum = (nvgpr + 3) // 4 * 4
    return f""".p2align 6
.amdhsa_kernel {name}
  .amdhsa_next_free_vgpr {nvgpr}
  .amdhsa_next_free_sgpr {nsgpr}
  .amdhsa_accum_offset {accum}
  .amdhsa_group_segment_fixed_size 0
  .amdhsa_kernarg_size 112
  .amdhsa_user_sgpr_count 2
  .amdhsa_user_sgpr_kernarg_segment_ptr 1
  .amdhsa_system_sgpr_workgroup_id_x 1
.end_amdhsa_kernel
"""

class Stamps:
    def __init__(self, A, enabled, base=70, off=0x780000):
        self.A, self.en, self.base, self.off, self.n = A, enabled, base, off, 0
    def start(self):
        if self.en:
            self.A(f"s_memrealtime s[{self.base}:{self.base+1}]")
            self.n = 1
            self.mark()
    def mark(self, idx=None):
        if self.en:
            i = self.n if idx is None else idx
            self.A(f"s_memtime s[{self.base+2*i}:{self.base+2*i+1}]")
            self.n = max(self.n, i + 1)
    def dump(self, srd, sWave, sTmp, vT, nw):
        if not self.en: return
        A = self.A
        A("s_waitcnt vmcnt(0)")
        self.mark()
        i = self.n
        A(f"s_memrealtime s[{self.base+2*i}:{self.base+2*i+1}]")
        A("s_waitcnt lgkmcnt(0)")
        A(f"s_mul_i32 s{sTmp}, s2, {nw}")
        A(f"s_add_u32 s{sTmp}, s{sTmp}, s{sWave}")
        A(f"s_lshl_b32 s{sTmp}, s{sTmp}, 6")
        A(f"s_add_u32 s{sTmp}, s{sTmp}, {self.off}")
        A(f"v_mov_b32 v{vT}, 0")
        A("s_mov_b64 exec, 1")
        A(f"v_mov_b32 v{vT+1}, s{self.base}")
        A(f"buffer_store_dword v{vT+1}, v{vT}, {srd}, s{sTmp} offen")
        A(f"s_sub_u32 s{self.base+2*i}, s{self.base+2*i}, s{self.base}")
        A(f"v_mov_b32 v{vT+2}, s{self.base+2*i}")
        A(f"buffer_store_dword v{vT+2}, v{vT}, {srd}, s{sTmp} offen offset:4")
        for j in range(2, i):
            A(f"s_sub_u32 s{self.base+2*j}, s{self.base+2*j}, s{self.base+2}")
            A(f"v_mov_b32 v{vT+1+(j%2)}, s{self.base+2*j}")
            A(f"buffer_store_dword v{vT+1+(j%2)}, v{vT}, {srd}, s{sTmp} offen offset:{4*j}")
```

```python
from asmlib import *
from layout import *
import math, struct
def fbits(x):
    return struct.unpack("<I", struct.pack("<f", x))[0]
NLOG2E = hex(fbits(-math.log2(math.e)))
SKIP = 2 * TILE
LDS_IMG = KV_BYTES - SKIP
WS_FLAG = 0x750000
WS_OF = 0x300000
XT, WK, RG, QX, RING, CNT = 0, 40960, 69632, 73728, 83968, 160768
NS = 15
WO_L = 24576
SELA = 162816
RED = 0
SPIN_MAX = 200000

def gen(name, stamp=False):
    A = Asm()
    sWSD, sKVD, sXD, sWD, sDD, sMD = 8, 12, 16, 20, 24, 28
    sWave, sG, sM, sTT, sHG, sFid = 32, 33, 34, 35, 36, 37
    sT, sT2 = 38, 39
    pX, pWQ, pWK, pWV, pWO, pWR, pWG, pWU, pWD, pGW, pOUT, pDBG, pWS = 40, 42, 44, 46, 48, 52, 54, 56, 58, 60, 62, 64, 66
    sA = 68
    sLo32 = 4
    sMask = 6
    wsd, kvd, xd, wd, dd, md = (s(x, 4) for x in (sWSD, sKVD, sXD, sWD, sDD, sMD))
    def srd(d, p, size, add=0):
        if add:
            A(f"s_add_u32 s{d}, s{p}, {add}\ns_addc_u32 s{d+1}, s{p+1}, 0")
        else:
            A(f"s_mov_b32 s{d}, s{p}\ns_mov_b32 s{d+1}, s{p+1}")
        A(f"s_mov_b32 s{d+2}, {size}\ns_mov_b32 s{d+3}, 0x00020000")
    R = RegAlloc(1)
    vT = R.alloc("T", 7)
    vQ1 = [R.alloc(f"Q1{i}", 4, 4) for i in range(2)]
    vQ2 = [R.alloc(f"Q2{i}", 2, 2) for i in range(2)]
    vK1 = [R.alloc(f"K1{i}", 4, 4) for i in range(2)]
    vK2 = [R.alloc(f"K2{i}", 2, 2) for i in range(2)]
    vVa = [R.alloc(f"Va{i}", 4, 4) for i in range(2)]
    vVb = [R.alloc(f"Vb{i}", 4, 4) for i in range(2)]
    vS = [R.alloc(f"S{i}", 16, 4) for i in range(4)]
    vO = [R.alloc(f"O{i}", 16, 4) for i in range(2)]
    vIdx = R.alloc("idx"); vLane = R.alloc("lane")
    vAK1 = R.alloc("AK1"); vAK2 = R.alloc("AK2"); vAV = R.alloc("AV")
    vM = R.alloc("M"); vL16 = R.alloc("L16"); vL4 = R.alloc("L4"); vGV = R.alloc("GV")
    vL32 = R.alloc("l32"); vHalf = R.alloc("half"); vTok = R.alloc("tok"); vG4 = R.alloc("g4")
    NV = R.next
    BIG = vQ1[0]
    BIGN = vO[1] + 16 - BIG

    A.raw(kernel_header(name))
    ST = Stamps(A, stamp, 80, 0x780000)
    ST.start()
    A(f"""
    s_cmp_ge_u32 s2, 256
    s_cbranch_scc1 L_end
    s_load_dwordx16 s[40:55], s[0:1], 0
    s_load_dwordx8 s[56:63], s[0:1], 64
    s_load_dwordx4 s[64:67], s[0:1], 96
    v_lshrrev_b32 v{vT}, 6, v0
    v_and_b32 v{vLane}, 63, v0
    v_readfirstlane_b32 s{sWave}, v{vT}
    v_and_b32 v{vL32}, 31, v0
    v_lshrrev_b32 v{vHalf}, 5, v{vLane}
    v_and_b32 v{vTok}, 15, v0
    v_lshrrev_b32 v{vG4}, 4, v{vLane}
    v_lshlrev_b32 v{vL16}, 4, v{vLane}
    v_lshlrev_b32 v{vL4}, 2, v{vLane}
    s_and_b32 s{sG}, s2, 7
    s_lshl_b32 s{sG}, s{sG}, 2
    s_lshr_b32 s{sT}, s2, 6
    s_add_u32 s{sG}, s{sG}, s{sT}             ; group 0..31
    s_bfe_u32 s{sM}, s2, 0x30003
    s_and_b32 s{sT}, s{sM}, 1
    s_lshl_b32 s{sTT}, s{sG}, 1
    s_add_u32 s{sTT}, s{sTT}, s{sT}
    s_lshr_b32 s{sHG}, s{sM}, 1
    s_lshl_b32 s{sFid}, s{sG}, 3
    s_add_u32 s{sFid}, s{sFid}, s{sM}
    s_mov_b32 s{sLo32}, -1
    s_mov_b32 s{sLo32+1}, 0
    s_lshl_b32 s{sT}, s{sWave}, 2
    v_add_u32 v{vT}, s{sT}, v{vG4}
    v_and_b32 v{vT+1}, 15, v{vT}
    v_xor_b32 v{vT+1}, v{vT+1}, v{vTok}
    v_mul_u32_u24 v{vT}, 1280, v{vT}
    v_lshl_add_u32 v{vT}, v{vT+1}, 4, v{vT}
    s_mul_i32 s{sT2}, s{sTT}, {32*1280}
    s_lshl_b32 s{sT}, s{sWave}, 10
    s_waitcnt lgkmcnt(0)
    """)
    srd(sXD, pX, 2048*1280)
    srd(sWSD, pWS, WS_SIZE)
    A(f"s_cmp_eq_u32 s{sWave}, 8\ns_cbranch_scc1 L_helper")
    for cb in range(5):
        A(f"s_add_u32 m0, s{sT}, {XT + cb*8192 - cb*256}")
        A("s_nop 0")
        A(f"buffer_load_dwordx4 v{vT}, {xd}, s{sT2} offen offset:{cb*256} lds")
    srd(sKVD, pWS, LDS_IMG, WS_KV + SKIP)
    A(f"s_cmp_ge_u32 s{sWave}, 5\ns_cbranch_scc1 L_kvw")

    vXA = BIG
    vTRA = BIG + 8; vSRC = BIG + 9
    vWF = [BIG + 12, BIG + 16]; vXF = [BIG + 20, BIG + 24]
    vAcc = BIG + 28
    sB, sDl, sRing, sSo = sA, sA + 5, sA + 10, sA + 11
    srd(sWD, pWQ, 640*1280)
    A(f"""
    v_lshrrev_b32 v{vSRC}, 2, v{vLane}
    v_mul_u32_u24 v{vSRC}, 1280, v{vSRC}
    v_and_b32 v{vT+1}, 3, v{vLane}
    v_lshl_add_u32 v{vSRC}, v{vT+1}, 4, v{vSRC}      ; (lane/4)*1280 + (lane%4)*16
    ; cb0 = (tt & 7) % 5
    s_and_b32 s{sT}, s{sTT}, 7
    s_sub_u32 s{sT2}, s{sT}, 5
    s_cmp_ge_u32 s{sT}, 5
    s_cselect_b32 s{sT}, s{sT2}, s{sT}
    s_mul_i32 s{sSo}, s{sHG}, 320
    s_lshl_b32 s{sT2}, s{sWave}, 6
    s_add_u32 s{sSo}, s{sSo}, s{sT2}
    s_mul_i32 s{sRing}, s{sWave}, {NS*1024}
    s_add_u32 s{sRing}, s{sRing}, {RING}
    s_lshl_b32 s{sDl}, s{sT}, 13
    s_mov_b32 s{sT2}, 8192
    """)
    for b in range(5):
        A(f"s_mul_i32 s{sB+b}, s{sT}, {128*1280}")
        A(f"s_add_u32 s{sB+b}, s{sB+b}, s{sSo}")
        if b < 4:
            A(f"""
            s_add_u32 s{sT}, s{sT}, 1
            s_cmp_eq_u32 s{sT}, 5
            s_cselect_b32 s{sT}, 0, s{sT}
            s_cselect_b32 s{sDl+b+1}, {(-32768) & 0xffffffff}, s{sT2}
            """)
    def qdma(i):
        b, st = i // 8, i % 8
        A(f"s_add_u32 m0, s{sRing}, {(i % NS)*1024}")
        A(f"s_add_u32 s{sSo}, s{sB+b}, {st*16*1280}")
        A(f"buffer_load_dwordx4 v{vSRC}, {wd}, s{sSo} offen lds")
    for i in range(NS):
        qdma(i)
    A(f"""
    v_and_b32 v{vT+1}, 15, v{vL32}
    v_lshlrev_b32 v{vT+2}, 8, v{vL32}
    v_add_u32 v{vT+2}, s{sDl}, v{vT+2}
    """)
    for st in range(8):
        A(f"v_add_u32 v{vT+3}, {2*st}, v{vHalf}")
        A(f"v_xor_b32 v{vT+3}, v{vT+3}, v{vT+1}")
        A(f"v_lshl_add_u32 v{vXA+st}, v{vT+3}, 4, v{vT+2}")
    A(f"""
    ; tr addr: row = 8*(G/2) + (i/4) ; + (G%2)*32 + (i%4)*8
    v_lshrrev_b32 v{vT+1}, 2, v{vTok}
    v_lshl_add_u32 v{vT+1}, v{vHalf}, 3, v{vT+1}
    v_lshlrev_b32 v{vT+1}, 6, v{vT+1}
    v_and_b32 v{vT+2}, 1, v{vG4}
    v_lshl_add_u32 v{vT+1}, v{vT+2}, 5, v{vT+1}
    v_and_b32 v{vT+2}, 3, v{vLane}
    v_lshl_add_u32 v{vT+1}, v{vT+2}, 3, v{vT+1}
    v_add_u32 v{vTRA}, s{sRing}, v{vT+1}
    s_waitcnt vmcnt({NS})
    s_barrier                                        ; F1
    """)
    ST.mark(2)
    if stamp: A("s_waitcnt lgkmcnt(0)")
    def qreads(i):
        st = i % 8
        if st == 0 and i > 0:
            for k in range(8):
                A(f"v_add_u32 v{vXA+k}, s{sDl + i//8}, v{vXA+k}")
        A(f"ds_read_b64_tr_b16 {v(vWF[i%2],2)}, v{vTRA} offset:{(i%NS)*1024}")
        A(f"ds_read_b64_tr_b16 {v(vWF[i%2]+2,2)}, v{vTRA} offset:{(i%NS)*1024+256}")
        A(f"ds_read_b128 {v(vXF[i%2],4)}, v{vXA+st}")
    A(f"s_waitcnt vmcnt({NS-1})")
    qreads(0)
    for i in range(40):
        if i + 1 < 40:
            A(f"s_waitcnt vmcnt({min(40, NS+i) - (i+2)})")
            qreads(i + 1)
            A("s_waitcnt lgkmcnt(3)")
        else:
            A("s_waitcnt lgkmcnt(0)")
        c = "0" if i == 0 else v(vAcc, 16)
        A(f"v_mfma_f32_32x32x16_bf16 {v(vAcc,16)}, {v(vWF[i%2],4)}, {v(vXF[i%2],4)}, {c}")
        if i + NS < 40:
            qdma(i + NS)
    cq = math.log2(math.e) / math.sqrt(20.0)
    A(f"""
    s_mov_b32 s{sT}, {hex(fbits(cq))}
    v_mul_u32_u24 v{vT}, 320, v{vL32}
    v_lshl_add_u32 v{vT}, v{vHalf}, 3, v{vT}
    s_lshl_b32 s{sT2}, s{sWave}, 6
    s_add_u32 s{sT2}, s{sT2}, {QX}
    v_add_u32 v{vT}, s{sT2}, v{vT}
    s_nop 6
    """)
    for i in range(16):
        A(f"v_mul_f32 v{vAcc+i}, s{sT}, v{vAcc+i}")
    for a in range(4):
        A(f"v_cvt_pk_bf16_f32 v{vWF[0]+2*a}, v{vAcc+4*a}, v{vAcc+4*a+1}")
        A(f"v_cvt_pk_bf16_f32 v{vWF[0]+2*a+1}, v{vAcc+4*a+2}, v{vAcc+4*a+3}")
        A(f"ds_write_b64 v{vT}, {v(vWF[0]+2*a,2)} offset:{16*a}")
    A("s_branch L_f2")

    A.label("L_kvw")
    def wk_dma():
        A(f"""
        s_cmp_ge_u32 s{sHG}, 2
        s_cselect_b32 s{sMD}, s{pWV}, s{pWK}
        s_cselect_b32 s{sMD+1}, s{pWV+1}, s{pWK+1}
        s_mov_b32 s{sMD+2}, 25600
        s_mov_b32 s{sMD+3}, 0x00020000
        s_sub_u32 s{sT}, s{sWave}, 5
        s_lshl_b32 s{sT}, s{sT}, 10
        """)
        for i in range(7):
            A(f"s_add_u32 m0, s{sT}, {WK + i*4096}")
            A(f"s_add_u32 s{sT2}, s{sT}, {i*4096}")
            A(f"buffer_load_dwordx4 v{vL16}, {md}, s{sT2} offen lds")
    wk_dma()
    vXB = BIG
    vTE = BIG + 8
    vAc2 = BIG + 12
    vF = BIG + 20
    A(f"s_cmp_eq_u32 s{sWave}, 7\ns_cbranch_scc1 L_rgw")
    A(f"""
    s_and_b32 s{sT}, s{sHG}, 1
    s_lshl_b32 s{sT}, s{sT}, 12
    v_lshlrev_b32 v{vT+2}, 8, v{vTok}
    v_add_u32 v{vT+2}, s{sT}, v{vT+2}
    """)
    for k in range(4):
        A(f"v_add_u32 v{vT+3}, {4*k}, v{vG4}")
        A(f"v_xor_b32 v{vT+3}, v{vT+3}, v{vTok}")
        A(f"v_lshl_add_u32 v{vXB+k}, v{vT+3}, 4, v{vT+2}")
    A(f"""
    v_lshrrev_b32 v{vT}, 2, v{vTok}
    v_lshl_add_u32 v{vT}, v{vG4}, 3, v{vT}
    v_mul_u32_u24 v{vT}, 40, v{vT}
    v_and_b32 v{vT+1}, 3, v{vLane}
    v_lshl_add_u32 v{vT}, v{vT+1}, 3, v{vT}
    s_sub_u32 s{sT}, s{sWave}, 5
    s_lshl_b32 s{sT}, s{sT}, 5
    s_add_u32 s{sT}, s{sT}, {WK}
    v_add_u32 v{vTE}, s{sT}, v{vT}
    s_waitcnt vmcnt(0)
    s_barrier                                        ; F1
    """)
    ST.mark(2)
    if stamp: A("s_waitcnt lgkmcnt(0)")
    def kv_reads(bt):
        for j in range(5):
            ks = 5*bt + j
            f = vF + (bt % 2)*40 + 8*j
            A(f"ds_read_b64_tr_b16 {v(f,2)}, v{vTE} offset:{ks*1280}")
            A(f"ds_read_b64_tr_b16 {v(f+2,2)}, v{vTE} offset:{ks*1280+160}")
            A(f"ds_read_b128 {v(f+4,4)}, v{vXB + ks%4} offset:{(ks//4)*8192}")
    def kv_main(isV):
        kv_reads(0)
        for bt in range(4):
            A("s_waitcnt lgkmcnt(0)")
            if bt < 3: kv_reads(bt + 1)
            for j in range(5):
                f = vF + (bt % 2)*40 + 8*j
                a, b = (v(f+4,4), v(f,4)) if isV else (v(f,4), v(f+4,4))
                c = "0" if (bt == 0 and j == 0) else v(vAc2, 4)
                A(f"v_mfma_f32_16x16x32_bf16 {v(vAc2,4)}, {a}, {b}, {c}")
    A(f"""
    s_mul_i32 s{sA}, s{sTT}, {TILE}
    s_add_u32 s{sA}, s{sA}, {WS_KV}
    s_and_b32 s{sA+1}, s{sHG}, 1                     ; th
    s_cmp_ge_u32 s{sHG}, 2
    s_cbranch_scc1 L_vw
    """)
    kv_main(False)
    A(f"""
    s_lshl_b32 s{sT2}, s{sA+1}, 4
    v_add_u32 v{vT}, s{sT2}, v{vTok}              ; kk
    v_lshl_add_u32 v{vT+2}, v{vHalf}, 5, v{vT}
    v_lshlrev_b32 v{vT+2}, 4, v{vT+2}
    v_and_b32 v{vT+1}, 1, v{vG4}
    v_lshl_add_u32 v{vT+2}, v{vT+1}, 3, v{vT+2}   ; K1 offset
    v_lshlrev_b32 v{vT+3}, 2, v{vT}               ; K2 offset
    s_nop 1
    v_cvt_pk_bf16_f32 v{vF}, v{vAc2}, v{vAc2+1}
    v_cvt_pk_bf16_f32 v{vF+1}, v{vAc2+2}, v{vAc2+3}
    s_cmp_eq_u32 s{sWave}, 6
    s_cbranch_scc1 L_k2
    buffer_store_dwordx2 {v(vF,2)}, v{vT+2}, {wsd}, s{sA} offen sc1
    s_branch L_pub
    """)
    A.label("L_k2")
    A(f"""
    s_mov_b64 exec, 0xffff
    buffer_store_dword v{vF}, v{vT+3}, {wsd}, s{sA} offen offset:{OFF_K2} sc1
    buffer_store_dword v{vF+1}, v{vT+3}, {wsd}, s{sA} offen offset:{OFF_K2+128} sc1
    s_mov_b64 exec, -1
    s_branch L_pub
    """)
    A.label("L_vw")
    kv_main(True)
    A(f"""
    s_mul_i32 s{sT2}, s{sA+1}, 672
    s_add_u32 s{sA}, s{sA}, s{sT2}
    v_mul_u32_u24 v{vT+2}, 336, v{vHalf}
    v_lshl_add_u32 v{vT+2}, v{vTok}, 4, v{vT+2}
    v_and_b32 v{vT+1}, 1, v{vG4}
    v_lshl_add_u32 v{vT+2}, v{vT+1}, 3, v{vT+2}   ; ha*336 + dv*16 + (g%2)*8
    v_mov_b32 v{vT+4}, 0x3f803f80
    v_cmp_eq_u32 vcc, 4, v{vTok}
    v_cvt_pk_bf16_f32 v{vF}, v{vAc2}, v{vAc2+1}
    v_cvt_pk_bf16_f32 v{vF+1}, v{vAc2+2}, v{vAc2+3}
    s_cmp_eq_u32 s{sWave}, 6
    s_cbranch_scc1 L_v2
    buffer_store_dwordx2 {v(vF,2)}, v{vT+2}, {wsd}, s{sA} offen offset:{OFF_VA} sc1
    s_branch L_pub
    """)
    A.label("L_v2")
    A(f"""
    v_cndmask_b32 v{vF}, v{vF}, v{vT+4}, vcc
    v_cndmask_b32 v{vF+1}, v{vF+1}, v{vT+4}, vcc
    v_cmp_gt_u32 vcc, 5, v{vTok}
    s_and_saveexec_b64 s[{sMask}:{sMask+1}], vcc
    buffer_store_dwordx2 {v(vF,2)}, v{vT+2}, {wsd}, s{sA} offen offset:{OFF_VA+256} sc1
    s_mov_b64 exec, -1
    s_branch L_pub
    """)
    A.label("L_rgw")
    A(f"""
    s_cmp_lg_u32 s{sHG}, 0
    s_cbranch_scc1 L_rg_none
    """)
    for (p, off) in ((pWR, 0), (pGW, 2048)):
        srd(sMD, p, 1280)
        for h in range(2):
            A(f"s_mov_b32 m0, {RG + off}")
            A("s_nop 0")
            A(f"buffer_load_dwordx4 v{vL16}, {md}, 0 offen offset:{1024*h} lds")
    A(f"v_lshlrev_b32 v{vT+2}, 8, v{vTok}")
    for k in range(4):
        A(f"v_add_u32 v{vT+3}, {4*k}, v{vG4}")
        A(f"v_xor_b32 v{vT+3}, v{vT+3}, v{vTok}")
        A(f"v_lshl_add_u32 v{vXB+k}, v{vT+3}, 4, v{vT+2}")
    A(f"""
    v_cmp_eq_u32 vcc, 1, v{vTok}
    v_mov_b32 v{vT}, {RG}
    v_mov_b32 v{vT+1}, {RG+2048}
    v_cndmask_b32 v{vT}, v{vT}, v{vT+1}, vcc
    v_lshl_add_u32 v{vTE}, v{vG4}, 4, v{vT}
    s_cmp_lg_u32 s{sFid}, 0
    s_cbranch_scc1 L_noyz
    v_mov_b32 v{vF}, 0
    v_mov_b32 v{vF+1}, 0
    v_mov_b32 v{vF+2}, 0
    v_mov_b32 v{vF+3}, 0
    s_mov_b32 s{sT}, {WS_Y}
    """)
    A.label("L_yz")
    A(f"""
    buffer_store_dwordx4 {v(vF,4)}, v{vL16}, {wsd}, s{sT} offen sc1
    s_add_u32 s{sT}, s{sT}, 1024
    s_cmp_lt_u32 s{sT}, {WS_Y + 20480}
    s_cbranch_scc1 L_yz
    """)
    A.label("L_noyz")
    A(f"""
    s_waitcnt vmcnt(0)
    s_barrier                                        ; F1
    """)
    ST.mark(2)
    if stamp: A("s_waitcnt lgkmcnt(0)")
    def rg_reads(bt):
        for j in range(4):
            ks = 4*bt + j
            f = vF + (bt % 2)*48 + 12*j
            A(f"ds_read_b128 {v(f,4)}, v{vTE} offset:{ks*64}")
            A(f"ds_read_b128 {v(f+4,4)}, v{vXB + j} offset:{bt*8192}")
            A(f"ds_read_b128 {v(f+8,4)}, v{vXB + j} offset:{bt*8192+4096}")
    rg_reads(0)
    for bt in range(5):
        A("s_waitcnt lgkmcnt(0)")
        if bt < 4: rg_reads(bt + 1)
        for j in range(4):
            f = vF + (bt % 2)*48 + 12*j
            for h in range(2):
                c = "0" if (bt == 0 and j == 0) else v(vAc2+4*h, 4)
                A(f"v_mfma_f32_16x16x32_bf16 {v(vAc2+4*h,4)}, {v(f,4)}, {v(f+4+4*h,4)}, {c}")
    A(f"""
    s_lshl_b32 s{sT}, s{sTT}, 5
    v_add_u32 v{vT}, s{sT}, v{vTok}
    v_sub_u32 v{vT+1}, 2047, v{vT}
    v_lshlrev_b32 v{vT}, 2, v{vT}
    s_mov_b32 s{sT2}, {WS_G}
    s_lshl_b32 s{sT}, s{sTT}, 3
    s_add_u32 s{sT}, s{sT}, {WS_KEY}
    v_mov_b32 v{vT+4}, 0
    s_nop 1
    """)
    for h in range(2):
        r = vAc2 + 4*h; gl = r + 1; k = vT + 2; g = vT + 3
        A(f"""
        v_ashrrev_i32 v{k}, 31, v{r}
        v_or_b32 v{k}, 0x80000000, v{k}
        v_xor_b32 v{k}, v{k}, v{r}
        v_and_b32 v{k}, 0xfffff800, v{k}
        v_or_b32 v{k}, v{k}, v{vT+1}
        v_cvt_pk_bf16_f32 v{g}, v{gl}, v{gl}
        v_subrev_u32 v{vT+1}, 16, v{vT+1}
        v_max_u32_dpp v{k}, v{k}, v{k} row_shr:1 row_mask:0xf bank_mask:0xf
        v_and_b32 v{g}, 0xffff0000, v{g}
        v_mul_f32 v{g}, {NLOG2E}, v{g}
        v_max_u32_dpp v{k}, v{k}, v{k} row_shr:2 row_mask:0xf bank_mask:0xf
        v_exp_f32 v{g}, v{g}
        s_nop 0
        v_max_u32_dpp v{k}, v{k}, v{k} row_shr:4 row_mask:0xf bank_mask:0xf
        v_add_f32 v{g}, 1.0, v{g}
        v_rcp_f32 v{g}, v{g}
        v_max_u32_dpp v{k}, v{k}, v{k} row_shr:8 row_mask:0xf bank_mask:0xf
        v_cvt_pk_bf16_f32 v{g}, v{g}, v{g}
        v_and_b32 v{g}, 0xffff0000, v{g}
        s_mov_b64 exec, 0xffff
        buffer_store_dword v{g}, v{vT}, {wsd}, s{sT2} offen offset:{64*h} sc1
        s_mov_b64 exec, 0x8000
        buffer_store_dword v{k}, v{vT+4}, {wsd}, s{sT} offen offset:{4*h} sc1
        s_mov_b64 exec, -1
        """)
    A.label("L_pub")
    A(f"""
    v_mov_b32 v{vT}, {CNT}
    v_mov_b32 v{vT+1}, 1
    s_waitcnt vmcnt(0)
    s_mov_b64 exec, 1
    ds_add_u32 v{vT}, v{vT+1}
    s_mov_b64 exec, -1
    s_branch L_f2
    """)
    A.label("L_rg_none")
    A(f"""
    s_waitcnt vmcnt(0)
    s_barrier                                        ; F1
    """)
    ST.mark(2)

    A.label("L_f2")
    ST.mark(3)
    sPart, sIter, sKVoff, sBarM, sHl = sA, sA + 1, sA + 2, sA + 3, sA + 4
    A(f"""
    s_lshr_b32 s{sPart}, s{sWave}, 2
    v_lshlrev_b32 v{vT+3}, 4, v{vL32}
    v_mul_u32_u24 v{vGV}, 336, v{vHalf}
    v_add_u32 v{vGV}, v{vGV}, v{vT+3}
    v_cmp_lt_u32 vcc, 20, v{vL32}
    v_mov_b32 v{vT+3}, 0x1000000
    s_mul_i32 s{sT2}, s{sPart}, {TILE}
    v_cndmask_b32 v{vGV}, v{vGV}, v{vT+3}, vcc
    v_add_u32 v{vAK1}, s{sT2}, v{vL16}
    v_add_u32 v{vAK2}, s{sT2}, v{vL4}
    v_add_u32 v{vAV}, s{sT2}, v{vGV}
    s_add_u32 s{sKVoff}, s{sT2}, {WS_KV}
    s_and_b32 s{sHl}, s{sWave}, 3
    s_lshl_b32 s{sHl}, s{sHl}, 1
    s_add_u32 s{sHl}, s{sHl}, s{sPart}
    s_mul_i32 s{sT}, s{sHl}, 40
    s_xor_b32 s{sT2}, s{sHl}, 1
    s_mul_i32 s{sT2}, s{sT2}, 40
    v_mul_u32_u24 v{vT}, 320, v{vL32}
    v_add_u32 v{vT}, {QX}, v{vT}
    v_lshl_add_u32 v{vT+1}, v{vHalf}, 4, v{vT}       ; Q1 part
    v_lshl_add_u32 v{vT+2}, v{vHalf}, 2, v{vT}       ; Q2 part
    v_add_u32 v{vT+3}, s{sT}, v{vT+1}
    v_add_u32 v{vT+4}, s{sT}, v{vT+2}
    v_add_u32 v{vT+5}, s{sT2}, v{vT+1}
    v_add_u32 v{vT+6}, s{sT2}, v{vT+2}
    s_mov_b32 s{sT}, {WS_KV}
    s_add_u32 s{sT2}, s{sKVoff}, {2*TILE}
    s_lshl_b32 m0, s{sWave}, 12
    s_waitcnt lgkmcnt(0)
    s_barrier
    """)
    ST.mark(4)
    A(f"""
    buffer_load_dwordx4 {v(vVa[1],4)}, v{vL16}, {wsd}, s{sT} offen offset:{OFF_K1} sc1
    buffer_load_dword v{vVb[1]}, v{vL4}, {wsd}, s{sT} offen offset:{OFF_K2} sc1
    buffer_load_dwordx4 {v(vK1[0],4)}, v{vL16}, {wsd}, s{sKVoff} offen offset:{OFF_K1} sc1
    buffer_load_dword v{vK2[0]}, v{vL4}, {wsd}, s{sKVoff} offen offset:{OFF_K2} sc1
    buffer_load_dwordx4 {v(vVa[0],4)}, v{vGV}, {wsd}, s{sKVoff} offen offset:{OFF_VA} sc1
    buffer_load_dwordx4 {v(vVb[0],4)}, v{vGV}, {wsd}, s{sKVoff} offen offset:{OFF_VB} sc1
    buffer_load_dwordx4 {v(vK1[1],4)}, v{vL16}, {wsd}, s{sT2} offen offset:{OFF_K1} sc1
    buffer_load_dword v{vK2[1]}, v{vL4}, {wsd}, s{sT2} offen offset:{OFF_K2} sc1
    """)
    for j in range(4):
        A(f"buffer_load_dwordx4 v{vL16}, {kvd}, m0 offen offset:{j*1024} sc1 lds")
    A(f"""
    ds_read2_b64 {v(vQ1[0],4)}, v{vT+3} offset0:0 offset1:1
    ds_read_b32 v{vQ2[0]}, v{vT+4} offset:32
    ds_read2_b64 {v(vQ1[1],4)}, v{vT+5} offset0:0 offset1:1
    ds_read_b32 v{vQ2[1]}, v{vT+6} offset:32
    v_mov_b32 v{vIdx}, 0xdddddddd
    v_mov_b32 v{vK2[0]+1}, 0x3f803f80
    v_mov_b32 v{vK2[1]+1}, 0x3f803f80
    v_mov_b32 v{vVb[1]+1}, 0
    v_mov_b32 v{vQ2[0]+1}, 0
    v_mov_b32 v{vQ2[1]+1}, 0
    """)
    for q in range(2):
        for i in range(16):
            A(f"v_mov_b32 v{vO[q]+i}, 0")
    for i in range(8, 16):
        A(f"v_mov_b32 v{vS[3]+i}, 0")
    def qk(dst, k1, k2, q):
        return (f"v_mfma_f32_32x32x16_bf16 {v(dst,16)}, {v(k1,4)}, {v(vQ1[q],4)}, 0",
                f"v_mfma_f32_32x32x8_bf16 {v(dst,16)}, {v(k2,2)}, {v(vQ2[q],2)}, {v(dst,16)}")
    def set_m(m, q, t):
        A(f"""
        v_mov_b32 v{t}, v{m}
        s_nop 1
        v_permlane32_swap_b32 v{m}, v{t}
        s_nop 1
        v_max_f32 v{m}, v{m}, v{t}
        v_xor_b32 v{m}, 0x80000000, v{m}
        v_and_b32 v{t}, 0xffff0000, v{m}         ; hi
        v_sub_f32 v{t+1}, v{m}, v{t}             ; r1
        v_and_b32 v{t+2}, 0xffff0000, v{t+1}     ; mid
        v_sub_f32 v{t+1}, v{t+1}, v{t+2}         ; r2
        v_lshrrev_b32 v{t}, 16, v{t}
        v_or_b32 v{t}, v{t}, v{t+2}
        v_lshrrev_b32 v{t+1}, 16, v{t+1}
        v_cndmask_b32 v{vQ2[q]+1}, v{t+1}, v{t}, s[{sLo32}:{sLo32+1}]
        """)
    def tile_max(m, S_, init):
        if init:
            A(f"v_max3_f32 v{m}, v{S_}, v{S_+1}, v{S_+2}")
            for i in range(3, 15, 2):
                A(f"v_max3_f32 v{m}, v{m}, v{S_+i}, v{S_+i+1}")
            A(f"v_max_f32 v{m}, v{m}, v{S_+15}")
        else:
            for i in range(0, 16, 2):
                A(f"v_max3_f32 v{m}, v{m}, v{S_+i}, v{S_+i+1}")
    A("s_waitcnt vmcnt(10) lgkmcnt(0)")
    a, b = qk(vS[0], vVa[1], vVb[1], 0); A(a); A(b)
    a, b = qk(vS[1], vVa[1], vVb[1], 1); A(a); A(b)
    A("s_nop 9")
    tile_max(vM, vS[0], True)
    set_m(vM, 0, vT)
    tile_max(vM, vS[1], True)
    set_m(vM, 1, vT)
    for i in range(4):
        A(f"v_mov_b32 v{vVb[1]+i}, 0")
    A("s_waitcnt vmcnt(8)")
    a, b = qk(vS[0], vK1[0], vK2[0], 0); A(a); A(b)
    A(f"s_mov_b32 s{sIter}, 0")
    A(f"s_mov_b32 s{sBarM}, {(1<<1)|(1<<4)|(1<<6)}")
    A("s_waitcnt vmcnt(0)")
    A("s_barrier                                        ; B1")
    ST.mark(5)
    if stamp: A("s_waitcnt lgkmcnt(0)")
    A("s_nop 7")
    A.raw(".p2align 6")
    A.label("L_loop")
    for u in range(8):
        i, q = u // 2, u % 2
        X = vS[u % 4]; Y = vS[(u + 1) % 4]; Z = vS[(u - 1) % 4]
        inx, qn = (u + 1) // 2, (u + 1) % 2
        ip, qp = (u - 1) // 2, (u - 1) % 2
        e = lambda k: A(f"v_exp_f32 v{X+k}, v{X+k}")
        a, b = qk(Y, vK1[inx % 2], vK2[inx % 2], qn)
        e(0); e(1); A(a); e(2); e(3); e(4); e(5); A(b); e(6); e(7); e(8); e(9)
        A(f"v_smfmac_f32_32x32x32_bf16 {v(vO[qp],16)}, {v(vVb[ip%2],4)}, {v(Z+8,8)}, v{vIdx}")
        A("s_waitcnt lgkmcnt(0)")
        if q == 0:
            A(f"ds_read_b128 {v(vVa[(i+1)%2],4)}, v{vAV} offset:{2*i*TILE+OFF_VA}")
            A(f"ds_read_b128 {v(vVb[(i+1)%2],4)}, v{vAV} offset:{2*i*TILE+OFF_VB}")
        else:
            A(f"ds_read_b128 {v(vK1[i%2],4)}, v{vAK1} offset:{(2*i+2)*TILE+OFF_K1}")
            A(f"ds_read_b32 v{vK2[i%2]}, v{vAK2} offset:{(2*i+2)*TILE+OFF_K2}")
        e(10); e(11); e(12); e(13)
        A(f"v_smfmac_f32_32x32x32_bf16 {v(vO[q],16)}, {v(vVa[i%2],4)}, {v(X,8)}, v{vIdx}")
        if u == 7:
            A(f"s_add_u32 s{sIter}, s{sIter}, 1")
            A(f"s_bitcmp1_b32 s{sBarM}, s{sIter}")
        e(14); e(15)
    A(f"""
    v_add_u32 v{vAK1}, {8*TILE}, v{vAK1}
    v_add_u32 v{vAK2}, {8*TILE}, v{vAK2}
    v_add_u32 v{vAV}, {8*TILE}, v{vAV}
    s_cbranch_scc1 L_bar
    s_cmp_lt_u32 s{sIter}, 8
    s_cbranch_scc1 L_loop
    s_branch L_fin
    """)
    A.label("L_bar")
    A("s_waitcnt lgkmcnt(0)\ns_barrier\ns_branch L_loop")
    A.label("L_fin")
    ST.mark(6)
    A(f"v_smfmac_f32_32x32x32_bf16 {v(vO[1],16)}, {v(vVb[1],4)}, {v(vS[3]+8,8)}, v{vIdx}")
    A(f"""
    s_mul_i32 s{sT}, s{sWave}, 3072
    s_xor_b32 s{sT2}, s{sWave}, 4
    s_mul_i32 s{sT2}, s{sT2}, 3072
    v_add_u32 v{vAK1}, s{sT}, v{vL16}
    v_add_u32 v{vAK2}, s{sT2}, v{vL16}
    s_waitcnt lgkmcnt(0)
    s_nop 6
    ds_write_b128 v{vAK1}, {v(vO[1],4)}
    ds_write_b128 v{vAK1}, {v(vO[1]+4,4)} offset:1024
    ds_write_b128 v{vAK1}, {v(vO[1]+8,4)} offset:2048
    ; O fragment store address: tq*20480 + C*256 + (tok%16)*16 ; head = 8hg + hl
    s_lshl_b32 s{sT}, s{sHG}, 3
    s_add_u32 s{sT}, s{sT}, s{sHl}             ; head
    s_lshr_b32 s{sT2}, s{sT}, 1
    s_mul_i32 s{sT2}, s{sT2}, 5                ; 5*(head/2)
    s_and_b32 s{sT}, s{sT}, 1
    s_lshl_b32 s{sIter}, s{sT}, 1
    s_add_u32 s{sIter}, s{sIter}, s{sT2}
    s_lshl_b32 s{sIter}, s{sIter}, 8
    s_add_u32 s{sT2}, s{sT2}, 4
    s_lshl_b32 s{sT2}, s{sT2}, 8
    s_lshl_b32 s{sT}, s{sT}, 3
    s_add_u32 s{sBarM}, s{sT2}, s{sT}
    s_mul_i32 s{sT}, s{sTT}, {2*20480}
    s_add_u32 s{sT}, s{sT}, {WS_OF}
    s_add_u32 s{sIter}, s{sIter}, s{sT}
    s_add_u32 s{sBarM}, s{sBarM}, s{sT}
    v_lshrrev_b32 v{vT+4}, 4, v{vL32}
    v_mul_u32_u24 v{vT+4}, 20480, v{vT+4}
    v_lshl_add_u32 v{vT+4}, v{vTok}, 4, v{vT+4}
    v_lshl_add_u32 v{vT+5}, v{vHalf}, 8, v{vT+4}
    s_waitcnt lgkmcnt(0)
    s_barrier                                        ; E1
    ds_read_b128 {v(vS[0],4)}, v{vAK2}
    ds_read_b128 {v(vS[0]+4,4)}, v{vAK2} offset:1024
    ds_read_b128 {v(vS[0]+8,4)}, v{vAK2} offset:2048
    s_mov_b32 s{sT}, 0x5f800000             ; 2^64
    s_waitcnt lgkmcnt(0)
    """)
    O = vO[0]
    for i in range(12):
        A(f"v_add_f32 v{O+i}, v{O+i}, v{vS[0]+i}")
    def l_bcast():
        A(f"""
        v_mov_b32 v{vT+2}, v{O+8}
        v_mov_b32 v{vT+3}, v{O+8}
        s_nop 1
        v_permlane32_swap_b32 v{vT+2}, v{vT+3}
        """)
    l_bcast()
    A(f"v_mul_f32 v{vT}, 0, v{O}")
    for i in range(1, 12):
        A(f"v_fma_f32 v{vT}, 0, v{O+i}, v{vT}")
    A(f"""
    v_add_f32 v{vT}, v{vT}, v{vT+3}
    v_cmp_nge_f32 vcc, s{sT}, v{vT}           ; !(2^64 >= l)
    s_cbranch_vccnz L_fallback
    """)
    A.label("L_store")
    A(f"v_rcp_f32 v{vT}, v{vT+3}")
    A("s_nop 0")
    for i in range(12):
        A(f"v_mul_f32 v{O+i}, v{O+i}, v{vT}")
    for i in range(6):
        A(f"v_cvt_pk_bf16_f32 v{vS[0]+i}, v{O+2*i}, v{O+2*i+1}")
    A(f"""
    buffer_store_dwordx4 {v(vS[0],4)}, v{vT+5}, {wsd}, s{sIter} offen sc1
    s_mov_b64 exec, s[{sLo32}:{sLo32+1}]
    buffer_store_dwordx2 {v(vS[0]+4,2)}, v{vT+4}, {wsd}, s{sBarM} offen sc1
    s_mov_b64 exec, -1
    """)
    vOF = BIG
    vWB = [BIG + 40, BIG + 60]
    vAcc = BIG + 80
    vTB = BIG + 100
    vEp = BIG + 110
    vXO = BIG + 122
    vRx = BIG + 124
    assert vRx + 12 <= BIG + BIGN
    sE2, sOFs = sA + 5, sA + 6
    srd(sMD, pOUT, 2048*1280)
    A(f"""
    s_and_b32 s{sT}, s{sWave}, 3
    s_lshl_b32 s{sT2}, s{sG}, 2
    s_add_u32 s{sT2}, s{sT2}, s{sT}
    s_mul_i32 s{sE2}, s{sT2}, {16*1280}
    s_mul_i32 s{sOFs}, s{sM}, 160
    s_add_u32 s{sE2}, s{sE2}, s{sOFs}
    s_mul_i32 s{sOFs}, s{sT2}, 20480
    s_mul_i32 s{sT}, s{sPart}, 10240
    s_add_u32 s{sOFs}, s{sOFs}, s{sT}
    s_add_u32 s{sOFs}, s{sOFs}, {WS_OF}
    s_lshl_b32 s{sT2}, s{sT2}, 6
    s_add_u32 s{sT2}, s{sT2}, {WS_G}
    v_mul_u32_u24 v{vXO}, 1280, v{vTok}
    v_lshl_add_u32 v{vXO}, v{vG4}, 3, v{vXO}
    v_lshlrev_b32 v{vT}, 2, v{vTok}
    ; tr base common part: r*160 + (l%4)*8 + WO_L + kh*51200
    v_lshrrev_b32 v{vT+1}, 2, v{vTok}
    v_mul_u32_u24 v{vT+1}, 160, v{vT+1}
    v_and_b32 v{vT+2}, 3, v{vLane}
    v_lshl_add_u32 v{vT+1}, v{vT+2}, 3, v{vT+1}
    s_mul_i32 s{sT}, s{sPart}, 51200
    s_add_u32 s{sT}, s{sT}, {WO_L}
    v_add_u32 v{vT+1}, s{sT}, v{vT+1}
    v_lshlrev_b32 v{vT+2}, 3, v{vG4}
    v_mov_b32 v{vT+3}, 160
    """)
    def rowstart(C, sidx):
        P_, c = C // 5, C % 5
        return (2*P_ + c//2)*20 + 8*sidx + 4*(c % 2) if c < 4 else (2*P_ + sidx)*20 + 16
    for k5 in range(5):
        for sidx in range(2):
            lit = sum(rowstart(4*k5 + g, sidx) << (8*g) for g in range(4))
            A(f"s_mov_b32 s{sT}, {hex(lit)}")
            A(f"v_bfe_u32 v{vT+4}, s{sT}, v{vT+2}, 8")
            A(f"v_mad_u32_u24 v{vTB+2*k5+sidx}, v{vT+4}, v{vT+3}, v{vT+1}")
    A(f"""
    s_waitcnt vmcnt(0)
    s_barrier
    """)
    ST.mark(7)
    for nt in range(5):
        A(f"buffer_load_dwordx2 {v(vEp+2*nt,2)}, v{vXO}, {xd}, s{sE2} offen offset:{nt*32}")
    A(f"buffer_load_dword v{vEp+10}, v{vT}, {wsd}, s{sT2} offen sc1")
    if stamp: A("s_waitcnt lgkmcnt(0)")
    def wreads(k):
        for nt in range(5):
            for sidx in range(2):
                A(f"ds_read_b64_tr_b16 {v(vWB[k%2]+4*nt+2*sidx,2)}, v{vTB+2*(k%5)+sidx} offset:{(k//5)*25600 + nt*32}")
    wreads(0)
    A("s_barrier")
    ST.mark(8)
    for k in range(10):
        if k % 4 == 0 and k > 0:
            A(f"s_add_u32 s{sOFs}, s{sOFs}, 4096")
        A(f"buffer_load_dwordx4 {v(vOF+4*k,4)}, v{vL16}, {wsd}, s{sOFs} offen offset:{(k%4)*1024} sc1")
    if stamp: A("s_waitcnt lgkmcnt(0)")
    for k in range(10):
        if k < 9:
            wreads(k + 1)
            A(f"s_waitcnt vmcnt({9-k}) lgkmcnt(10)")
        else:
            A("s_waitcnt vmcnt(0) lgkmcnt(0)")
        for nt in range(5):
            c = "0" if k == 0 else v(vAcc+4*nt, 4)
            A(f"v_mfma_f32_16x16x32_bf16 {v(vAcc+4*nt,4)}, {v(vWB[k%2]+4*nt,4)}, {v(vOF+4*k,4)}, {c}")
    vB = vOF
    g = vEp + 10; omg = vEp + 11
    for nt in range(5):
        A(f"v_lshlrev_b32 v{vB+4*nt}, 16, v{vEp+2*nt}")
        A(f"v_and_b32 v{vB+4*nt+1}, 0xffff0000, v{vEp+2*nt}")
        A(f"v_lshlrev_b32 v{vB+4*nt+2}, 16, v{vEp+2*nt+1}")
        A(f"v_and_b32 v{vB+4*nt+3}, 0xffff0000, v{vEp+2*nt+1}")
    A(f"""
    v_sub_f32 v{omg}, 1.0, v{g}
    v_cvt_pk_bf16_f32 v{omg}, v{omg}, v{omg}
    v_and_b32 v{omg}, 0xffff0000, v{omg}
    v_mov_b32 v{vT}, {SELA}
    ds_read_b32 v{vT+1}, v{vT}
    v_lshlrev_b32 v{vT+2}, 4, v{vG4}
    v_add_u32 v{vT+2}, {SELA+16}, v{vT+2}
    s_and_b32 s{sT}, s{sWave}, 3
    s_lshl_b32 s{sT}, s{sT}, 4
    v_add_u32 v{vT+3}, s{sT}, v{vTok}
    s_cmp_eq_u32 s{sPart}, 1
    s_cbranch_scc1 L_tail1
    """)
    def finish(keep, send, lab):
        for j, nt in enumerate(send):
            A(f"ds_write_b128 v{vAK1}, {v(vAcc+4*nt,4)} offset:{1024*j}")
        A(f"""
        s_waitcnt lgkmcnt(0)
        v_cmp_eq_u32 vcc, v{vT+1}, v{vT+3}
        s_cbranch_vccz L_nosel{lab}
        """)
        for j, nt in enumerate(keep):
            A(f"ds_read_b128 {v(vRx+4*j,4)}, v{vT+2} offset:{64*nt}")
        A(f"s_and_saveexec_b64 s[{sMask}:{sMask+1}], vcc")
        A("s_waitcnt lgkmcnt(0)")
        for j, nt in enumerate(keep):
            for r in range(4):
                b = vB + 4*nt + r
                A(f"v_add_f32 v{b}, v{b}, v{vRx+4*j+r}")
                A(f"v_cvt_pk_bf16_f32 v{b}, v{b}, v{b}")
                A(f"v_and_b32 v{b}, 0xffff0000, v{b}")
        A("s_mov_b64 exec, -1")
        A.label(f"L_nosel{lab}")
        for nt in keep:
            for r in range(4):
                A(f"v_mul_f32 v{vB+4*nt+r}, v{omg}, v{vB+4*nt+r}")
        A("s_barrier                                        ; E4")
        for j, nt in enumerate(keep):
            A(f"ds_read_b128 {v(vRx+4*j,4)}, v{vAK2} offset:{1024*j}")
        for j, nt in enumerate(keep):
            A(f"s_waitcnt lgkmcnt({len(keep)-1-j})")
            for r in range(4):
                A(f"v_add_f32 v{vAcc+4*nt+r}, v{vAcc+4*nt+r}, v{vRx+4*j+r}")
            for r in range(4):
                A(f"v_fma_f32 v{vB+4*nt+r}, v{g}, v{vAcc+4*nt+r}, v{vB+4*nt+r}")
            A(f"v_cvt_pk_bf16_f32 v{vEp+2*nt}, v{vB+4*nt}, v{vB+4*nt+1}")
            A(f"v_cvt_pk_bf16_f32 v{vEp+2*nt+1}, v{vB+4*nt+2}, v{vB+4*nt+3}")
            A(f"buffer_store_dwordx2 {v(vEp+2*nt,2)}, v{vXO}, {md}, s{sE2} offen offset:{nt*32}")
    finish([0, 1, 2], [3, 4], "0")
    A("s_branch L_done")
    A.label("L_tail1")
    finish([3, 4], [0, 1, 2], "1")
    A.label("L_done")
    ST.n = 9
    ST.dump(wsd, sWave, sT, vT, 9)
    A.label("L_end")
    A("s_endpgm")

    A.label("L_fallback")
    A(f"""
    v_mov_b32 v{vQ2[0]+1}, 0
    v_mov_b32 v{vM}, 0xff800000
    s_mov_b32 s{sT}, {WS_KV}
    """)
    A.label("L_fb1")
    A(f"""
    buffer_load_dwordx4 {v(vK1[0],4)}, v{vL16}, {wsd}, s{sT} offen offset:{OFF_K1} sc1
    buffer_load_dword v{vK2[0]}, v{vL4}, {wsd}, s{sT} offen offset:{OFF_K2} sc1
    s_waitcnt vmcnt(0)
    """)
    a, b = qk(vS[0], vK1[0], vK2[0], 0); A(a); A(b)
    A("s_nop 15")
    tile_max(vM, vS[0], False)
    A(f"""
    s_add_u32 s{sT}, s{sT}, {TILE}
    s_cmp_lt_u32 s{sT}, {WS_KV + KV_BYTES}
    s_cbranch_scc1 L_fb1
    """)
    set_m(vM, 0, vT)
    for i in range(16):
        A(f"v_mov_b32 v{O+i}, 0")
    A(f"s_mov_b32 s{sT}, {WS_KV}")
    A.label("L_fb2")
    A(f"""
    buffer_load_dwordx4 {v(vK1[0],4)}, v{vL16}, {wsd}, s{sT} offen offset:{OFF_K1} sc1
    buffer_load_dword v{vK2[0]}, v{vL4}, {wsd}, s{sT} offen offset:{OFF_K2} sc1
    buffer_load_dwordx4 {v(vVa[0],4)}, v{vGV}, {wsd}, s{sT} offen offset:{OFF_VA} sc1
    buffer_load_dwordx4 {v(vVb[0],4)}, v{vGV}, {wsd}, s{sT} offen offset:{OFF_VB} sc1
    s_waitcnt vmcnt(0)
    """)
    a, b = qk(vS[0], vK1[0], vK2[0], 0); A(a); A(b)
    A("s_nop 15")
    for i in range(16):
        A(f"v_exp_f32 v{vS[0]+i}, v{vS[0]+i}")
    A("s_nop 1")
    A(f"v_smfmac_f32_32x32x32_bf16 {v(O,16)}, {v(vVa[0],4)}, {v(vS[0],8)}, v{vIdx}")
    A(f"v_smfmac_f32_32x32x32_bf16 {v(O,16)}, {v(vVb[0],4)}, {v(vS[0]+8,8)}, v{vIdx}")
    A(f"""
    s_nop 15
    s_add_u32 s{sT}, s{sT}, {TILE}
    s_cmp_lt_u32 s{sT}, {WS_KV + KV_BYTES}
    s_cbranch_scc1 L_fb2
    """)
    l_bcast()
    A("s_nop 1")
    A("s_branch L_store")

    H = RegAlloc(8)
    hSnap = H.alloc("snap", 8, 2)
    hGrp = H.alloc("grp", 4, 4)
    hFA = H.alloc("fa", 4); hGA = H.alloc("ga")
    hKey = H.alloc("key", 2, 2)
    hG = H.alloc("G", 40, 4); hU = H.alloc("U", 40, 4)
    hD = hG
    hXs = H.alloc("xs", 10); hAc = H.alloc("ac", 16, 4)
    assert H.next <= vIdx, (H.next, vIdx)
    NVH = NV
    sF, sIdx, sKey, sSpin, sOwn = sA, sA + 1, sA + 2, sA + 3, sA + 4
    sH = 84
    A.label("L_helper")
    A(f"""
    s_setprio 2
    v_lshlrev_b32 v{hFA}, 6, v{vLane}
    v_add_u32 v{hFA}, {WS_FLAG}, v{hFA}
    v_add_u32 v{hFA+1}, 4096, v{hFA}
    v_add_u32 v{hFA+2}, 8192, v{hFA}
    v_add_u32 v{hFA+3}, 12288, v{hFA}
    v_and_b32 v{hGA}, 7, v{vLane}
    v_lshlrev_b32 v{hGA}, 6, v{hGA}
    s_lshl_b32 s{sT}, s{sG}, 9
    s_add_u32 s{sT}, s{sT}, {WS_FLAG}
    v_add_u32 v{hGA}, s{sT}, v{hGA}
    """)
    for i in range(4):
        A(f"buffer_load_dwordx2 {v(hSnap+2*i,2)}, v{hFA+i}, {wsd}, 0 offen sc1")
    A(f"buffer_load_dwordx4 {v(hGrp,4)}, v{hGA}, {wsd}, 0 offen sc1")
    wk_dma()
    srd(sKVD, pWS, LDS_IMG, WS_KV + SKIP)
    srd(sDD, pDBG, 256)
    A(f"""
    v_mov_b32 v{vT}, {CNT}
    v_mov_b32 v{vT+1}, 0
    ds_write_b32 v{vT}, v{vT+1}
    s_cmp_eq_u32 s{sHG}, 0
    s_cselect_b32 s{sT2}, 3, 2
    s_waitcnt vmcnt(0) lgkmcnt(0)
    s_barrier                                        ; F1
    v_readlane_b32 s{sOwn}, v{hGrp}, s{sM}
    v_readlane_b32 s{sOwn+1}, v{hGrp+1}, s{sM}
    v_readlane_b32 s{sOwn+2}, v{hGrp+2}, s{sM}
    s_lshl_b32 s{sT}, s{sFid}, 6
    s_add_u32 s{sT}, s{sT}, {WS_FLAG}
    v_mov_b32 v{vT+6}, s{sT}
    s_add_u32 s{sOwn}, s{sOwn}, 1
    s_add_u32 s{sOwn+1}, s{sOwn+1}, 1
    s_add_u32 s{sOwn+2}, s{sOwn+2}, 1
    s_mov_b32 s{sSpin}, 0
    """)
    A.label("L_h_cnt")
    A(f"""
    ds_read_b32 v{vT+1}, v{vT}
    s_add_u32 s{sSpin}, s{sSpin}, 1
    s_cmp_gt_u32 s{sSpin}, {SPIN_MAX*8}
    s_cbranch_scc1 L_h_cnt_done
    s_waitcnt lgkmcnt(0)
    v_cmp_ne_u32 vcc, s{sT2}, v{vT+1}
    s_cbranch_vccnz L_h_cnt
    """)
    A.label("L_h_cnt_done")
    def publish(word):
        A(f"""
        v_mov_b32 v{vT+1}, s{sOwn+word}
        s_mov_b64 exec, 1
        buffer_store_dword v{vT+1}, v{vT+6}, {wsd}, 0 offen offset:{4*word} sc1
        s_mov_b64 exec, -1
        """)
    publish(0)
    A(f"""
    s_and_b32 s{sT}, s{sFid}, 3
    s_lshl_b32 s{sT}, s{sT}, 6
    v_mov_b32 v{vT+2}, s{sT}
    v_mov_b32 v{vT+3}, 1
    s_mov_b64 exec, 1
    buffer_atomic_add v{vT+3}, v{vT+2}, {dd}, 0 offen sc1
    s_mov_b64 exec, -1
    v_and_b32 v{vT+2}, 3, v{vLane}
    v_lshlrev_b32 v{vT+2}, 6, v{vT+2}
    s_mov_b32 s{sSpin}, 0
    """)
    def poll_all(word, lab, slow):
        A.label(f"L_poll{lab}")
        for i in range(4):
            A(f"buffer_load_dword v{hAc+i}, v{hFA+i}, {wsd}, 0 offen offset:{4*word} sc1")
        A(f"""
        s_add_u32 s{sSpin}, s{sSpin}, 1
        s_cmp_gt_u32 s{sSpin}, {SPIN_MAX}
        s_cbranch_scc1 L_poll{lab}_done
        """)
        if slow:
            A(f"""
            s_and_b32 s{sT}, s{sSpin}, 15
            s_cmp_lg_u32 s{sT}, 0
            s_cbranch_scc1 L_poll{lab}_fast
            buffer_load_dword v{hAc+4}, v{vT+2}, {dd}, 0 offen sc1
            s_waitcnt vmcnt(0)
            v_cmp_ne_u32 vcc, 64, v{hAc+4}
            s_cbranch_vccz L_poll{lab}_done
            """)
            A.label(f"L_poll{lab}_fast")
        A("s_waitcnt vmcnt(0)")
        A(f"v_cmp_eq_u32 vcc, v{hAc}, v{hSnap+word}")
        for i in range(1, 4):
            A(f"v_cmp_eq_u32 s[{sMask}:{sMask+1}], v{hAc+i}, v{hSnap+2*i+word}")
            A(f"s_or_b64 vcc, vcc, s[{sMask}:{sMask+1}]")
        A(f"s_cbranch_vccnz L_poll{lab}")
        A.label(f"L_poll{lab}_done")
    poll_all(0, "A", True)
    A(f"""
    s_waitcnt vmcnt(0)
    s_barrier                                        ; F2
    v_lshlrev_b32 v{vT}, 3, v{vLane}
    s_mov_b32 s{sT}, {WS_KEY}
    buffer_load_dwordx2 {v(hKey,2)}, v{vT}, {wsd}, s{sT} offen sc1
    s_mov_b32 m0, 32768
    s_barrier                                        ; B1
    """)
    A.label("L_h_dma")
    for j in range(4):
        A(f"buffer_load_dwordx4 v{vL16}, {kvd}, m0 offen offset:{j*1024} sc1 lds")
    A(f"""
    s_add_u32 m0, m0, 4096
    s_cmp_lt_u32 m0, {163840}
    s_cbranch_scc1 L_h_dma
    s_waitcnt vmcnt(60)
    s_barrier                                        ; L0
    v_max_u32 v{hKey}, v{hKey}, v{hKey+1}
    s_nop 1
    v_max_u32_dpp v{hKey}, v{hKey}, v{hKey} row_shr:1 row_mask:0xf bank_mask:0xf
    s_nop 1
    v_max_u32_dpp v{hKey}, v{hKey}, v{hKey} row_shr:2 row_mask:0xf bank_mask:0xf
    s_nop 1
    v_max_u32_dpp v{hKey}, v{hKey}, v{hKey} row_shr:4 row_mask:0xf bank_mask:0xf
    s_nop 1
    v_max_u32_dpp v{hKey}, v{hKey}, v{hKey} row_shr:8 row_mask:0xf bank_mask:0xf
    s_nop 1
    v_readlane_b32 s{sKey}, v{hKey}, 15
    v_readlane_b32 s{sT}, v{hKey}, 31
    v_readlane_b32 s{sT2}, v{hKey}, 47
    v_readlane_b32 s{sIdx}, v{hKey}, 63
    s_nop 3
    s_max_u32 s{sKey}, s{sKey}, s{sT}
    s_max_u32 s{sT2}, s{sT2}, s{sIdx}
    s_max_u32 s{sKey}, s{sKey}, s{sT2}
    s_and_b32 s{sIdx}, s{sKey}, 0x7ff
    s_sub_u32 s{sIdx}, 2047, s{sIdx}
    s_cmp_ge_u32 s2, 192
    s_cbranch_scc1 L_h_ffn_done
    s_and_b32 s{sF}, s2, 7
    s_mul_i32 s{sF}, s{sF}, 24
    s_lshr_b32 s{sT}, s2, 3
    s_add_u32 s{sF}, s{sF}, s{sT}
    v_mul_u32_u24 v{vT+1}, 3072, v{vLane}
    v_lshlrev_b32 v{vT+3}, 1, v{vLane}
    s_mul_i32 s{sT}, s{sIdx}, 1280
    """)
    for i in range(10):
        A(f"buffer_load_ushort v{hXs+i}, v{vT+3}, {xd}, s{sT} offen offset:{128*i}")
    srd(sWD, pWG, 640*3072)
    srd(sMD, pWU, 640*3072)
    A(f"s_lshl_b32 s{sT}, s{sF}, 4")
    for i in range(10):
        A(f"buffer_load_dwordx4 {v(hG+4*i,4)}, v{vT+1}, {wd}, s{sT} offen")
        A(f"buffer_load_dwordx4 {v(hU+4*i,4)}, v{vT+1}, {md}, s{sT} offen")
        A(f"s_add_u32 s{sT}, s{sT}, {64*3072}")
    for i in range(16):
        A(f"v_mov_b32 v{hAc+i}, 0")
    srd(sWD, pWD, 1536*1280)
    A(f"s_mul_i32 s{sT}, s{sF}, {8*1280}")
    for i in range(10):
        A(f"s_waitcnt vmcnt({18 - 2*i + 4*max(0, i-1) if i < 10 else 0})")
        A(f"v_lshlrev_b32 v{vT+4}, 16, v{hXs+i}")
        for c in range(4):
            A(f"v_dot2_f32_bf16 v{hAc+2*c}, v{hG+4*i+c}, v{hXs+i}, v{hAc+2*c}")
            A(f"v_dot2_f32_bf16 v{hAc+8+2*c}, v{hU+4*i+c}, v{hXs+i}, v{hAc+8+2*c}")
        for c in range(4):
            A(f"v_dot2_f32_bf16 v{hAc+2*c+1}, v{hG+4*i+c}, v{vT+4}, v{hAc+2*c+1}")
            A(f"v_dot2_f32_bf16 v{hAc+8+2*c+1}, v{hU+4*i+c}, v{vT+4}, v{hAc+8+2*c+1}")
        if i >= 1:
            for c in range(4):
                n = 4*(i-1) + c
                A(f"buffer_load_dword v{hD+n}, v{vL4}, {wd}, s{sT} offen offset:{(n%15//5)*1280 + 256*(n%5)}")
                if n % 15 == 14: A(f"s_add_u32 s{sT}, s{sT}, {3*1280}")
    for n in range(36, 40):
        A(f"buffer_load_dword v{hD+n}, v{vL4}, {wd}, s{sT} offen offset:{(n%15//5)*1280 + 256*(n%5)}")
    for step in ("row_shr:1 row_mask:0xf", "row_shr:2 row_mask:0xf", "row_shr:4 row_mask:0xf", "row_shr:8 row_mask:0xf",
                 "row_bcast:15 row_mask:0xa", "row_bcast:31 row_mask:0xc"):
        for i in range(16):
            A(f"v_add_f32_dpp v{hAc+i}, v{hAc+i}, v{hAc+i} {step} bank_mask:0xf")
    for f in range(8):
        g_ = hAc + f; u = hAc + 8 + f
        A(f"""
        v_cvt_pk_bf16_f32 v{g_}, v{g_}, v{u}
        v_and_b32 v{u}, 0xffff0000, v{g_}
        v_lshlrev_b32 v{g_}, 16, v{g_}
        v_mul_f32 v{vT+4}, {NLOG2E}, v{g_}
        v_exp_f32 v{vT+4}, v{vT+4}
        s_nop 0
        v_add_f32 v{vT+4}, 1.0, v{vT+4}
        v_rcp_f32 v{vT+4}, v{vT+4}
        s_nop 0
        v_mul_f32 v{g_}, v{g_}, v{vT+4}
        v_cvt_pk_bf16_f32 v{g_}, v{g_}, v{g_}
        v_and_b32 v{g_}, 0xffff0000, v{g_}
        v_mul_f32 v{g_}, v{g_}, v{u}
        v_cvt_pk_bf16_f32 v{g_}, v{g_}, v{g_}
        v_and_b32 v{g_}, 0xffff0000, v{g_}
        s_nop 0
        v_readlane_b32 s{sH+2*f+1}, v{g_}, 63
        """)
    A("s_nop 3")
    for f in range(8):
        A(f"s_lshr_b32 s{sH+2*f}, s{sH+2*f+1}, 16")
    for i in range(10):
        A(f"v_mov_b32 v{hAc+i}, 0")
    A("s_waitcnt vmcnt(0)")
    for j in range(8):
        for i in range(5):
            A(f"v_dot2_f32_bf16 v{hAc+2*i}, v{hD+5*j+i}, s{sH+2*j}, v{hAc+2*i}")
            A(f"v_dot2_f32_bf16 v{hAc+2*i+1}, v{hD+5*j+i}, s{sH+2*j+1}, v{hAc+2*i+1}")
    A(f"""
    s_and_b32 s{sT}, s2, 7
    s_mul_i32 s{sT}, s{sT}, 2560
    s_add_u32 s{sT}, s{sT}, {WS_Y}
    s_nop 1
    """)
    for i in range(10):
        A(f"buffer_atomic_add_f32 v{hAc+i}, v{vL4}, {wsd}, s{sT} offen offset:{256*i} sc1")
    A.label("L_h_ffn_done")
    A("s_waitcnt vmcnt(0)")
    publish(1)
    hP = hG
    for ph in range(5):
        A(f"""
        v_add_u32 v{vT}, {64*ph}, v{vLane}
        v_mul_u32_u24 v{vT+1}, 205, v{vT}
        v_lshrrev_b32 v{vT+1}, 11, v{vT+1}
        v_mul_u32_u24 v{vT+2}, {1280-160}, v{vT+1}
        v_lshl_add_u32 v{hP+ph}, v{vLane}, 4, v{vT+2}
        """)
    A(f"v_add_u32 v{hP+4}, 4096, v{hP+4}")
    srd(sWD, pWO, 640*1280)
    A(f"""
    s_mul_i32 s{sT}, s{sM}, 160
    s_mov_b32 s{sT2}, {WO_L}
    s_barrier                                        ; L3
    """)
    def wo_dma(lab, end):
        A.label(lab)
        A(f"s_mov_b32 m0, s{sT2}")
        A("s_nop 0")
        for ph in range(4):
            A(f"buffer_load_dwordx4 v{hP+ph}, {wd}, s{sT} offen offset:{ph*1024} lds")
        A(f"s_add_u32 m0, s{sT2}, 4096")
        A(f"s_add_u32 s{sT2}, s{sT2}, 5120")
        A(f"buffer_load_dwordx4 v{hP+4}, {wd}, s{sT} offen lds")
        A(f"""
        s_add_u32 s{sT}, s{sT}, {32*1280}
        s_cmp_lt_u32 s{sT2}, {end}
        s_cbranch_scc1 {lab}
        """)
    wo_dma("L_wo1", WO_L + 11*5120)
    A("s_barrier                                        ; L5")
    wo_dma("L_wo2", WO_L + 20*5120)
    A(f"""
    v_mov_b32 v{vT}, {SELA}
    v_mov_b32 v{vT+1}, -1
    s_lshr_b32 s{sT}, s{sIdx}, 6
    s_cmp_lg_u32 s{sT}, s{sG}
    s_cbranch_scc1 L_h_nosel
    s_mov_b32 s{sSpin}, 0
    """)
    poll_all(1, "B", False)
    A(f"""
    s_and_b32 s{sT}, s{sKey}, 0xfffff800
    s_not_b32 s{sT2}, s{sT}
    s_and_b32 s{sT}, s{sT}, 0x7fffffff
    s_cmp_lt_i32 s{sKey}, 0
    s_cselect_b32 s{sT}, s{sT}, s{sT2}          ; r bits
    v_mov_b32 v{vT+5}, s{sT}
    v_cvt_pk_bf16_f32 v{vT+5}, v{vT+5}, v{vT+5}
    v_and_b32 v{vT+5}, 0xffff0000, v{vT+5}
    v_mul_f32 v{vT+5}, {NLOG2E}, v{vT+5}
    v_exp_f32 v{vT+5}, v{vT+5}
    s_nop 0
    v_add_f32 v{vT+5}, 1.0, v{vT+5}
    v_rcp_f32 v{vT+5}, v{vT+5}
    s_nop 0
    v_cvt_pk_bf16_f32 v{vT+5}, v{vT+5}, v{vT+5}
    v_and_b32 v{vT+5}, 0xffff0000, v{vT+5}
    s_mul_i32 s{sT}, s{sM}, 80
    """)
    for rnd in range(2):
        A(f"""
        v_add_u32 v{vT+2}, s{sT}, v{vLane}
        v_add_u32 v{vT+2}, {64*rnd}, v{vT+2}
        v_min_u32 v{vT+2}, 639, v{vT+2}
        v_lshrrev_b32 v{vT+3}, 7, v{vT+2}
        v_lshlrev_b32 v{vT+3}, 9, v{vT+3}           ; i*512
        v_and_b32 v{vT+4}, 1, v{vT+2}
        v_lshl_add_u32 v{vT+3}, v{vT+4}, 8, v{vT+3} ; + p*256
        v_and_b32 v{vT+4}, 126, v{vT+2}
        v_lshl_add_u32 v{vT+3}, v{vT+4}, 1, v{vT+3} ; + l*4
        s_mov_b32 s{sT2}, {WS_Y}
        """)
        for rep in range(8):
            A(f"buffer_load_dword v{hU+8*rnd+rep}, v{vT+3}, {wsd}, s{sT2} offen sc1")
            A(f"s_add_u32 s{sT2}, s{sT2}, 2560")
    A("s_waitcnt vmcnt(0)")
    for rnd in range(2):
        y = hU + 8*rnd
        for rep in range(1, 8):
            A(f"v_add_f32 v{y}, v{y}, v{y+rep}")
        A(f"""
        v_cvt_pk_bf16_f32 v{y}, v{y}, v{y}
        v_and_b32 v{y}, 0xffff0000, v{y}
        v_mul_f32 v{y}, v{vT+5}, v{y}
        v_cvt_pk_bf16_f32 v{y}, v{y}, v{y}
        v_and_b32 v{y}, 0xffff0000, v{y}
        """)
    A(f"""
    v_add_u32 v{vT+2}, {SELA+16}, v{vL4}
    ds_write_b32 v{vT+2}, v{hU}
    ds_write_b32 v{vT+2}, v{hU+8} offset:256
    s_and_b32 s{sT}, s{sIdx}, 63
    v_mov_b32 v{vT+1}, s{sT}
    """)
    A.label("L_h_nosel")
    A(f"""
    ds_write_b32 v{vT}, v{vT+1}
    s_waitcnt vmcnt(0) lgkmcnt(0)
    s_barrier                                        ; E1
    s_barrier                                        ; E2
    """)
    publish(2)
    A(f"s_mov_b32 s{sSpin}, 0")
    A.label("L_pollC")
    A(f"""
    buffer_load_dword v{hAc}, v{hGA}, {wsd}, 0 offen offset:8 sc1
    s_add_u32 s{sSpin}, s{sSpin}, 1
    s_cmp_gt_u32 s{sSpin}, {SPIN_MAX}
    s_cbranch_scc1 L_pollC_done
    s_waitcnt vmcnt(0)
    v_cmp_eq_u32 vcc, v{hAc}, v{hGrp+2}
    s_cbranch_vccnz L_pollC
    """)
    A.label("L_pollC_done")
    A("""
    s_barrier                                        ; E3
    s_endpgm
    """)
    return A.text(), NV

NAME = "gated_mix__grouped_kv_mqa__moe_arch_mod__prompt"
def build(stamp=False):
    b, n = gen(NAME + "_kernel", stamp)
    txt = "; generated by gen/fused.py\n"
    txt += "; @launch grid=(256,1,1) block=(576,1,1) lds=163840\n"
    txt += '.amdgcn_target "amdgcn-amd-amdhsa--gfx950"\n.text\n' + b
    txt += '.section .rodata,"a"\n' + kernel_desc(NAME + "_kernel", n)
    return txt
if __name__ == "__main__":
    import sys
    open(sys.argv[1] if len(sys.argv) > 1 else f"fused.s", "w").write(build())
```

```python
from asmlib import *
from layout import *
import math, struct
def fbits(x):
    return struct.unpack("<I", struct.pack("<f", x))[0]
NLOG2E = hex(fbits(-math.log2(math.e)))
LDS_IMG = 62 * TILE
WS_FLAG = 0x750000
WS_OF = 0x300000
WK, XT, RING, RG, CNT = 0, 32768, 73728, 155648, 163584
QX = RING + 4*16384
EXA = 2 * TILE
WO_L = EXA + 24576
SELA = 162816
GL = SELA + 528
PB = [EXA, WO_L + 102400]
PP = 336
SPIN_MAX = 20000
CPF = False
OPF = False
F2A = True
QST = False
QPRE = 2
F1B = True
LST = False
PSA = 0
QP = 328
XFAST = True
FSE = True
OSPLIT = False

def gen(name, stamp=False):
    A = Asm()
    sWSD, sKVD, sXD, sWD, sDD, sMD = 8, 12, 16, 20, 24, 28
    sWave, sG, sM, sTT, sHG, sFid = 32, 33, 34, 35, 36, 37
    sT, sT2 = 38, 39
    pX, pWQ, pWK, pWV, pWO, pWR, pWG, pWU, pWD, pGW, pOUT, pDBG, pWS = 40, 42, 44, 46, 48, 52, 54, 56, 58, 60, 62, 64, 66
    sA = 68
    sLo32 = 4
    sMask = 6
    wsd, kvd, xd, wd, dd, md = (s(x, 4) for x in (sWSD, sKVD, sXD, sWD, sDD, sMD))
    def srd(d, p, size, add=0):
        if add:
            A(f"s_add_u32 s{d}, s{p}, {add}\ns_addc_u32 s{d+1}, s{p+1}, 0")
        else:
            A(f"s_mov_b32 s{d}, s{p}\ns_mov_b32 s{d+1}, s{p+1}")
        A(f"s_mov_b32 s{d+2}, {size}\ns_mov_b32 s{d+3}, 0x00020000")
    R = RegAlloc(1)
    vT = R.alloc("T", 7)
    vQ1 = [R.alloc(f"Q1{i}", 4, 4) for i in range(2)]
    vQ2 = [R.alloc(f"Q2{i}", 2, 2) for i in range(2)]
    vK1 = [R.alloc(f"K1{i}", 4, 4) for i in range(2)]
    vK2 = [R.alloc(f"K2{i}", 2, 2) for i in range(2)]
    vVa = [R.alloc(f"Va{i}", 4, 4) for i in range(2)]
    vVb = [R.alloc(f"Vb{i}", 4, 4) for i in range(2)]
    vS = [R.alloc(f"S{i}", 16, 4) for i in range(4)]
    vO = [R.alloc(f"O{i}", 16, 4) for i in range(2)]
    vIdx = R.alloc("idx"); vLane = R.alloc("lane")
    vAK1 = R.alloc("AK1"); vAK2 = R.alloc("AK2"); vAV = R.alloc("AV")
    vM = R.alloc("M"); vL16 = R.alloc("L16"); vL4 = R.alloc("L4"); vGV = R.alloc("GV")
    vL32 = R.alloc("l32"); vHalf = R.alloc("half"); vTok = R.alloc("tok"); vG4 = R.alloc("g4")
    vAK1s = R.alloc("AK1s"); vAK2s = R.alloc("AK2s"); vAVs = R.alloc("AVs"); vSt = R.alloc("stamp")
    vEXo = R.alloc("EXo"); vEXp = R.alloc("EXp"); vSM = R.alloc("SM"); vSTl = R.alloc("STl")
    vQA = [vM] + [R.alloc(f"QA{i}") for i in range(3)]
    NV = R.next
    BIG = vQ1[0]
    BIGN = vO[1] + 16 - BIG

    A.raw(kernel_header(name))
    class VSt:
        def start(self):
            if stamp: A(f"s_memrealtime s[100:101]\ns_memtime s[94:95]\ns_waitcnt lgkmcnt(0)\nv_mov_b32 v{vSt}, 0\nv_writelane_b32 v{vSt}, s100, 0")
        def mark(self, i):
            if stamp: A(f"s_memtime s[92:93]\ns_waitcnt lgkmcnt(0)\ns_sub_u32 s92, s92, s94\nv_writelane_b32 v{vSt}, s92, {i}")
        def dump(self):
            if stamp:
                A("s_waitcnt vmcnt(0)")
                self.mark(15)
                A(f"""
                s_memrealtime s[92:93]
                s_waitcnt lgkmcnt(0)
                s_sub_u32 s92, s92, s100
                v_writelane_b32 v{vSt}, s92, 1
                s_mul_i32 s92, s2, 9
                s_add_u32 s92, s92, s{sWave}
                s_lshl_b32 s92, s92, 7
                s_add_u32 s92, s92, 0x780000
                s_mov_b64 exec, 0xffffffff
                buffer_store_dword v{vSt}, v{vL4}, {wsd}, s92 offen
                """)
    ST = VSt()
    ST.start()
    A(f"""
    s_cmp_ge_u32 s2, 256
    s_cbranch_scc1 L_end
    s_load_dwordx16 s[40:55], s[0:1], 0
    s_load_dwordx8 s[56:63], s[0:1], 64
    s_load_dwordx4 s[64:67], s[0:1], 96
    v_lshrrev_b32 v{vT}, 6, v0
    v_and_b32 v{vLane}, 63, v0
    v_readfirstlane_b32 s{sWave}, v{vT}
    v_and_b32 v{vL32}, 31, v0
    v_lshrrev_b32 v{vHalf}, 5, v{vLane}
    v_and_b32 v{vTok}, 15, v0
    v_lshrrev_b32 v{vG4}, 4, v{vLane}
    v_lshlrev_b32 v{vL16}, 4, v{vLane}
    v_lshlrev_b32 v{vL4}, 2, v{vLane}
    s_and_b32 s{sG}, s2, 7
    s_lshl_b32 s{sG}, s{sG}, 2
    s_lshr_b32 s{sT}, s2, 6
    s_add_u32 s{sG}, s{sG}, s{sT}             ; group 0..31
    s_bfe_u32 s{sM}, s2, 0x30003
    s_and_b32 s{sT}, s{sM}, 1
    s_lshl_b32 s{sTT}, s{sG}, 1
    s_add_u32 s{sTT}, s{sTT}, s{sT}
    s_lshr_b32 s{sHG}, s{sM}, 1
    s_lshl_b32 s{sFid}, s{sG}, 3
    s_add_u32 s{sFid}, s{sFid}, s{sM}
    s_mov_b32 s{sLo32}, -1
    s_mov_b32 s{sLo32+1}, 0
    s_lshl_b32 s{sT}, s{sWave}, 2
    v_add_u32 v{vT}, s{sT}, v{vG4}
    v_and_b32 v{vT+1}, 15, v{vT}
    v_xor_b32 v{vT+1}, v{vT+1}, v{vTok}
    v_mul_u32_u24 v{vT}, 1280, v{vT}
    v_lshl_add_u32 v{vT}, v{vT+1}, 4, v{vT}
    s_mul_i32 s{sT2}, s{sTT}, {32*1280}
    s_lshl_b32 s{sT}, s{sWave}, 10
    s_waitcnt lgkmcnt(0)
    """)
    srd(sXD, pX, 2048*1280)
    srd(sWSD, pWS, WS_SIZE)
    A(f"""
    s_cmp_ge_u32 s{sHG}, 2
    s_cselect_b32 s{sMD}, s{pWV}, s{pWK}
    s_cselect_b32 s{sMD+1}, s{pWV+1}, s{pWK+1}
    s_mov_b32 s{sMD+2}, 25600
    s_mov_b32 s{sMD+3}, 0x00020000
    s_cmp_eq_u32 s{sWave}, 8
    s_cbranch_scc1 L_helper
    """)
    for cb in range(5):
        A(f"s_add_u32 m0, s{sT}, {XT + cb*8192 - cb*256}")
        A("s_nop 0")
        A(f"buffer_load_dwordx4 v{vT}, {xd}, s{sT2} offen offset:{cb*256} lds")
    A(f"""
    s_lshl_b32 s{sT}, s{sWave}, 11
    s_add_u32 m0, s{sT}, {WK}
    s_nop 0
    buffer_load_dwordx4 v{vL16}, {md}, s{sT} offen lds
    buffer_load_dwordx4 v{vL16}, {md}, s{sT} offen offset:1024 lds
    """)
    sPart, sHl, sStM, sStT, sOFs, sE2, sGs = 81, 82, 83, 84, 85, 86, 87
    sIter, sDelta = 88, 89
    def zinit():
        for q in range(2):
            for i in range(16):
                A(f"v_mov_b32 v{vO[q]+i}, 0")
        for i in range(8, 16):
            A(f"v_mov_b32 v{vS[3]+i}, 0")
    def setup():
        A(f"""
        s_lshr_b32 s{sPart}, s{sWave}, 2
        v_lshlrev_b32 v{vT+3}, 4, v{vL32}
        v_mul_u32_u24 v{vGV}, 336, v{vHalf}
        v_add_u32 v{vGV}, v{vGV}, v{vT+3}
        v_cmp_lt_u32 vcc, 20, v{vL32}
        v_mov_b32 v{vT+3}, 0x1000000
        s_mul_i32 s{sT2}, s{sPart}, {TILE}
        v_cndmask_b32 v{vGV}, v{vGV}, v{vT+3}, vcc
        v_add_u32 v{vAK1}, s{sT2}, v{vL16}
        v_add_u32 v{vAK2}, s{sT2}, v{vL4}
        v_add_u32 v{vAV}, s{sT2}, v{vGV}
        s_and_b32 s{sHl}, s{sWave}, 3
        s_lshl_b32 s{sHl}, s{sHl}, 1
        s_add_u32 s{sHl}, s{sHl}, s{sPart}
        s_mul_i32 s{sT}, s{sHl}, 40
        s_xor_b32 s{sT2}, s{sHl}, 1
        s_mul_i32 s{sT2}, s{sT2}, 40
        v_mul_u32_u24 v{vT}, {QP}, v{vL32}
        v_add_u32 v{vT}, {QX}, v{vT}
        v_lshl_add_u32 v{vT+1}, v{vHalf}, 4, v{vT}       ; Q1 part
        v_lshl_add_u32 v{vT+2}, v{vHalf}, 2, v{vT}       ; Q2 part
        v_add_u32 v{vQA[0]}, s{sT}, v{vT+1}
        v_add_u32 v{vQA[1]}, s{sT}, v{vT+2}
        v_add_u32 v{vQA[2]}, s{sT2}, v{vT+1}
        v_add_u32 v{vQA[3]}, s{sT2}, v{vT+2}
        v_add_u32 v{vAK1s}, {14*TILE}, v{vAK1}
        v_add_u32 v{vAK2s}, {14*TILE}, v{vAK2}
        v_add_u32 v{vAVs}, {14*TILE}, v{vAV}
        v_mov_b32 v{vIdx}, 0xdddddddd
        s_mul_i32 s{sT}, s{sWave}, 3072
        s_xor_b32 s{sT2}, s{sWave}, 4
        s_mul_i32 s{sT2}, s{sT2}, 3072
        s_add_u32 s{sT}, s{sT}, {EXA}
        s_add_u32 s{sT2}, s{sT2}, {EXA}
        v_add_u32 v{vEXo}, s{sT}, v{vL16}
        v_add_u32 v{vEXp}, s{sT2}, v{vL16}
        ; O fragment store address: tq*20480 + hg*5120 + C*256 + (tok%16)*16 ; C = 2*hl + h, last four dims: 16 + hl/2
        s_mul_i32 s{sT2}, s{sHG}, 5120
        s_lshl_b32 s{sStM}, s{sHl}, 9
        s_add_u32 s{sStM}, s{sStM}, s{sT2}
        s_lshr_b32 s{sT}, s{sHl}, 1
        s_lshl_b32 s{sT}, s{sT}, 8
        s_add_u32 s{sStT}, s{sT2}, s{sT}
        s_and_b32 s{sT}, s{sHl}, 1
        s_lshl_b32 s{sT}, s{sT}, 3
        s_add_u32 s{sStT}, s{sStT}, s{sT}
        s_add_u32 s{sStT}, s{sStT}, 4096
        s_mul_i32 s{sGs}, s{sPart}, 51200
        s_add_u32 s{sGs}, s{sGs}, {WO_L}
        s_mul_i32 s{sT}, s{sTT}, {2*20480}
        s_add_u32 s{sT}, s{sT}, {WS_OF}
        s_add_u32 s{sStM}, s{sStM}, s{sT}
        s_add_u32 s{sStT}, s{sStT}, s{sT}
        v_lshrrev_b32 v{vSTl}, 4, v{vL32}
        v_mul_u32_u24 v{vSTl}, 20480, v{vSTl}
        v_lshl_add_u32 v{vSTl}, v{vTok}, 4, v{vSTl}
        v_lshl_add_u32 v{vSM}, v{vHalf}, 8, v{vSTl}
        s_and_b32 s{sT}, s{sWave}, 3
        s_lshl_b32 s{sT2}, s{sG}, 2
        s_add_u32 s{sT2}, s{sT2}, s{sT}
        s_mul_i32 s{sOFs}, s{sT2}, 20480
        s_mul_i32 s{sT}, s{sPart}, 10240
        s_add_u32 s{sOFs}, s{sOFs}, s{sT}
        s_add_u32 s{sOFs}, s{sOFs}, {WS_OF}
        s_lshl_b32 s{sT}, s{sG}, 3
        s_add_u32 s{sT}, s{sT}, s{sWave}
        s_mul_i32 s{sE2}, s{sT}, {8*1280}
        s_mul_i32 s{sT2}, s{sM}, 160
        s_add_u32 s{sE2}, s{sE2}, s{sT2}
        s_mov_b32 s{sIter}, 0
        """)
        srd(sDD, pOUT, 2048*1280)
    A(f"""
    s_cmp_eq_u32 s{sWave}, 4
    s_cbranch_scc1 L_rgw
    s_sub_u32 s{sT}, s{sWave}, 5
    s_cmp_lt_u32 s{sT}, 2
    s_cbranch_scc1 L_kvw
    """)

    vXA = BIG
    vTRA = BIG + 8; vSRC = BIG + 10
    vAcc = BIG + 16
    sB, sDl, sRing, sSo, sQc = sA, sA + 5, sA + 10, sA + 11, sA + 12
    srd(sWD, pWQ, 640*1280)
    A(f"""
    ; cb0 = ((id>>6)*2 + (m&1)) % 5
    s_lshr_b32 s{sT}, s2, 6
    s_lshl_b32 s{sT}, s{sT}, 1
    s_and_b32 s{sT2}, s{sM}, 1
    s_add_u32 s{sT}, s{sT}, s{sT2}
    s_sub_u32 s{sT2}, s{sT}, 5
    s_cmp_ge_u32 s{sT}, 5
    s_cselect_b32 s{sT}, s{sT2}, s{sT}
    s_min_u32 s{sRing}, s{sWave}, 4
    s_lshl_b32 s{sRing}, s{sRing}, 14
    s_add_u32 s{sRing}, s{sRing}, {RING}
    s_lshl_b32 s{sDl}, s{sT}, 13
    s_add_u32 s{sDl}, s{sDl}, {XT}
    s_and_b32 s{sQc}, s{sHG}, 1
    s_cmp_eq_u32 s{sWave}, 7
    s_cbranch_scc1 L_qn
    """)
    cq = math.log2(math.e) / math.sqrt(20.0)
    def qproj(wide):
        if wide:
            vFR = [BIG + 48 + 24*i for i in range(3)]
            A(f"""
            s_lshl_b32 s{sQc}, s{sQc}, 6
            s_lshr_b32 s{sT2}, s{sWave}, 1
            s_lshl_b32 s{sT2}, s{sT2}, 7
            s_add_u32 s{sQc}, s{sQc}, s{sT2}
            s_mul_i32 s{sSo}, s{sHG}, 320
            s_add_u32 s{sSo}, s{sSo}, s{sQc}
            s_and_b32 s{sT2}, s{sWave}, 1
            s_mul_i32 s{sB}, s{sT2}, 81920
            s_add_u32 s{sSo}, s{sSo}, s{sB}
            s_lshl_b32 s{sT2}, s{sT2}, 6
            s_add_u32 s{sQc}, s{sQc}, s{sT2}
            v_lshrrev_b32 v{vSRC}, 3, v{vLane}
            v_mul_u32_u24 v{vSRC}, 1280, v{vSRC}
            v_and_b32 v{vT+1}, 7, v{vLane}
            v_and_b32 v{vT+2}, 1, v{vG4}
            v_lshlrev_b32 v{vT+2}, 2, v{vT+2}
            v_xor_b32 v{vT+1}, v{vT+1}, v{vT+2}
            v_lshl_add_u32 v{vSRC}, v{vT+1}, 4, v{vSRC}
            """)
            step, half = 8*1280 - 1024, 40960
        else:
            vFR = [BIG + 32 + 32*i for i in range(3)]
            A(f"""
            s_xor_b32 s{sQc}, s{sQc}, 1
            s_lshl_b32 s{sQc}, s{sQc}, 8
            s_mul_i32 s{sSo}, s{sHG}, 320
            s_add_u32 s{sSo}, s{sSo}, s{sQc}
            v_lshrrev_b32 v{vSRC}, 2, v{vLane}
            v_mul_u32_u24 v{vSRC}, 1280, v{vSRC}
            v_and_b32 v{vT+1}, 3, v{vLane}
            v_lshl_add_u32 v{vSRC}, v{vT+1}, 4, v{vSRC}
            """)
            step, half = 16*1280 - 1024, 81920
        assert vFR[2] + (24 if wide else 32) <= BIG + BIGN
        for k in range(1, 4):
            A(f"v_add_u32 v{vSRC+k}, {k*step}, v{vSRC}")
        A(f"s_mov_b32 s{sT2}, 8192")
        for b in range(5):
            A(f"s_mul_i32 s{sB+b}, s{sT}, {128*1280}")
            A(f"s_add_u32 s{sB+b}, s{sB+b}, s{sSo}")
            if b < 4:
                A(f"""
                s_add_u32 s{sT}, s{sT}, 1
                s_cmp_eq_u32 s{sT}, 5
                s_cselect_b32 s{sT}, 0, s{sT}
                s_cselect_b32 s{sDl+b+1}, {(-32768) & 0xffffffff}, s{sT2}
                """)
        def qdma(j):
            A(f"s_add_u32 m0, s{sRing}, {(j % 4)*4096}")
            A(f"s_add_u32 s{sSo}, s{sB + j//2}, {(j % 2)*half}")
            for st in range(4):
                A(f"buffer_load_dwordx4 v{vSRC+st}, {wd}, s{sSo} offen offset:{st*1024} lds")
        A("s_barrier                                        ; F0")
        for j in range(QPRE): qdma(j)
        A(f"""
        v_and_b32 v{vT+1}, 15, v{vL32}
        v_lshlrev_b32 v{vT+2}, 8, v{vL32}
        v_add_u32 v{vT+2}, s{sDl}, v{vT+2}
        """)
        if wide:
            A(f"""
            s_and_b32 s{sT2}, s{sWave}, 1
            s_lshl_b32 s{sT}, s{sT2}, 3
            v_add_u32 v{vT+4}, s{sT}, v{vHalf}
            s_lshl_b32 s{sT2}, s{sT2}, 6
            """)
            for st in range(4):
                A(f"v_add_u32 v{vT+3}, {2*st}, v{vT+4}")
                A(f"v_xor_b32 v{vT+3}, v{vT+3}, v{vT+1}")
                A(f"v_lshl_add_u32 v{vXA+st}, v{vT+3}, 4, v{vT+2}")
            A(f"""
            ; tr addr: (8*(G/2) + r)*128 + ((kh*64 + (G%2)*32 + (i%4)*8) ^ (64*(r>>1)))
            v_lshrrev_b32 v{vT+1}, 2, v{vTok}
            v_lshl_add_u32 v{vT+1}, v{vHalf}, 3, v{vT+1}
            v_lshlrev_b32 v{vT+1}, 7, v{vT+1}
            v_and_b32 v{vT+2}, 1, v{vG4}
            v_lshl_add_u32 v{vT+1}, v{vT+2}, 5, v{vT+1}
            v_and_b32 v{vT+2}, 3, v{vLane}
            v_lshl_add_u32 v{vT+1}, v{vT+2}, 3, v{vT+1}
            v_lshrrev_b32 v{vT+2}, 3, v{vTok}
            v_lshl_add_u32 v{vT+1}, v{vT+2}, 6, v{vT+1}
            v_xor_b32 v{vT+1}, s{sT2}, v{vT+1}
            v_add_u32 v{vTRA}, s{sRing}, v{vT+1}
            v_xor_b32 v{vTRA+1}, 64, v{vTRA}
            """)
        else:
            for st in range(8):
                A(f"v_add_u32 v{vT+3}, {2*st}, v{vHalf}")
                A(f"v_xor_b32 v{vT+3}, v{vT+3}, v{vT+1}")
                A(f"v_lshl_add_u32 v{vXA+st}, v{vT+3}, 4, v{vT+2}")
            A(f"""
            v_lshrrev_b32 v{vT+1}, 2, v{vTok}
            v_lshl_add_u32 v{vT+1}, v{vHalf}, 3, v{vT+1}
            v_lshlrev_b32 v{vT+1}, 6, v{vT+1}
            v_and_b32 v{vT+2}, 1, v{vG4}
            v_lshl_add_u32 v{vT+1}, v{vT+2}, 5, v{vT+1}
            v_and_b32 v{vT+2}, 3, v{vLane}
            v_lshl_add_u32 v{vT+1}, v{vT+2}, 3, v{vT+1}
            v_add_u32 v{vTRA}, s{sRing}, v{vT+1}
            """)
        setup()
        A(f"""
        v_mov_b32 v{vT+5}, {CNT}
        v_mov_b32 v{vT+6}, 256
        s_waitcnt vmcnt({4*QPRE})
        s_barrier                                        ; F1
        """)
        ST.mark(2)
        if F1B: A("s_barrier")
        for j in range(QPRE, 4): qdma(j)
        def qreads(j, st):
            if wide:
                t, tl = st // 2, st % 2
                f = vFR[j % 3] + 12*t
                if tl == 0:
                    xa = vXA + (j % 2)*2 + t
                    if j >= 2: A(f"v_add_u32 v{xa}, s{sDl + j//2}, v{xa}")
                    A(f"ds_read_b128 {v(f+8,4)}, v{xa}")
                A(f"ds_read_b64_tr_b16 {v(f+4*tl,2)}, v{vTRA+tl} offset:{(j%4)*4096 + t*2048}")
                A(f"ds_read_b64_tr_b16 {v(f+4*tl+2,2)}, v{vTRA+tl} offset:{(j%4)*4096 + t*2048 + 512}")
            else:
                f = vFR[j % 3] + 8*st
                xa = vXA + (j % 2)*4 + st
                if j >= 2: A(f"v_add_u32 v{xa}, s{sDl + j//2}, v{xa}")
                A(f"ds_read_b64_tr_b16 {v(f,2)}, v{vTRA} offset:{(j%4)*4096 + st*1024}")
                A(f"ds_read_b64_tr_b16 {v(f+2,2)}, v{vTRA} offset:{(j%4)*4096 + st*1024 + 256}")
                A(f"ds_read_b128 {v(f+4,4)}, v{xa}")
        nr = 10 if wide else 12
        A("s_waitcnt vmcnt(12)")
        for st in range(4): qreads(0, st)
        A("s_waitcnt vmcnt(8)")
        for st in range(4): qreads(1, st)
        for j in range(10):
            if QST and j in (1, 3, 5, 8): ST.mark(11 + (1, 3, 5, 8).index(j))
            A(f"s_waitcnt lgkmcnt({nr if j < 9 else 0})")
            if j + 4 < 10: qdma(j + 4)
            if j == 5:
                A(f"s_mov_b64 exec, 1\nds_add_u32 v{vT+5}, v{vT+6}\ns_mov_b64 exec, -1")
            if j + 2 < 10:
                A(f"s_waitcnt vmcnt({4*(min(10, j+5) - (j+3))})")
            for st in range(4):
                if wide:
                    t, tl = st // 2, st % 2
                    f = vFR[j % 3] + 12*t
                    acc = vAcc + 16*tl
                    c = "0" if (j == 0 and t == 0) else v(acc, 16)
                    A(f"v_mfma_f32_32x32x16_bf16 {v(acc,16)}, {v(f+4*tl,4)}, {v(f+8,4)}, {c}")
                else:
                    f = vFR[j % 3] + 8*st
                    c = "0" if (j == 0 and st == 0) else v(vAcc, 16)
                    A(f"v_mfma_f32_32x32x16_bf16 {v(vAcc,16)}, {v(f,4)}, {v(f+4,4)}, {c}")
                if j + 2 < 10: qreads(j + 2, st)
        o = vFR[1]
        A(f"""
        s_mov_b32 s{sT}, {hex(fbits(cq))}
        v_mul_u32_u24 v{vT}, {QP}, v{vL32}
        v_lshl_add_u32 v{vT}, v{vHalf}, 3, v{vT}
        s_add_u32 s{sT2}, s{sQc}, {QX}
        v_add_u32 v{vT}, s{sT2}, v{vT}
        v_add_u32 v{vT+1}, s{sRing}, v{vL16}
        s_xor_b32 s{sT2}, s{sWave}, 1
        s_lshl_b32 s{sT2}, s{sT2}, 14
        s_add_u32 s{sT2}, s{sT2}, {RING}
        v_add_u32 v{vT+2}, s{sT2}, v{vL16}
        s_nop 2
        """)
        if wide:
            for k in range(4):
                A(f"ds_write_b128 v{vT+1}, {v(vAcc+16+4*k,4)} offset:{1024*k}")
            ST.mark(3)
            zinit()
            A("s_waitcnt lgkmcnt(0)")
            A("s_barrier                                        ; F2a")
            for k in range(4):
                A(f"ds_read_b128 {v(vAcc+16+4*k,4)}, v{vT+2} offset:{1024*k}")
            for k in range(4):
                A(f"s_waitcnt lgkmcnt({3-k})")
                for r in range(4):
                    A(f"v_add_f32 v{vAcc+4*k+r}, v{vAcc+4*k+r}, v{vAcc+16+4*k+r}")
        for i in range(16):
            A(f"v_mul_f32 v{vAcc+i}, s{sT}, v{vAcc+i}")
        for a in range(4):
            A(f"v_cvt_pk_bf16_f32 v{o+2*a}, v{vAcc+4*a}, v{vAcc+4*a+1}")
            A(f"v_cvt_pk_bf16_f32 v{o+2*a+1}, v{vAcc+4*a+2}, v{vAcc+4*a+3}")
            A(f"ds_write_b64 v{vT}, {v(o+2*a,2)} offset:{16*a}")
        A("s_branch L_f2" if wide else "s_branch L_f2a")
    qproj(True)
    A.label("L_qn")
    A("s_setprio 1")
    qproj(False)

    A.label("L_kvw")
    A("s_setprio 3")
    A("s_barrier                                        ; F0")
    vXB = BIG
    vTE = BIG + 8
    vAc2 = BIG + 12
    vF = BIG + 20
    A(f"""
    s_and_b32 s{sT}, s{sHG}, 1
    s_lshl_b32 s{sT}, s{sT}, 12
    s_add_u32 s{sT}, s{sT}, {XT}
    v_lshlrev_b32 v{vT+2}, 8, v{vTok}
    v_add_u32 v{vT+2}, s{sT}, v{vT+2}
    """)
    for k in range(4):
        A(f"v_add_u32 v{vT+3}, {4*k}, v{vG4}")
        A(f"v_xor_b32 v{vT+3}, v{vT+3}, v{vTok}")
        A(f"v_lshl_add_u32 v{vXB+k}, v{vT+3}, 4, v{vT+2}")
    A(f"""
    v_lshrrev_b32 v{vT}, 2, v{vTok}
    v_lshl_add_u32 v{vT}, v{vG4}, 3, v{vT}
    v_mul_u32_u24 v{vT}, 40, v{vT}
    v_and_b32 v{vT+1}, 3, v{vLane}
    v_lshl_add_u32 v{vT}, v{vT+1}, 3, v{vT}
    s_sub_u32 s{sT}, s{sWave}, 5
    s_lshl_b32 s{sT}, s{sT}, 5
    s_add_u32 s{sT}, s{sT}, {WK}
    v_add_u32 v{vTE}, s{sT}, v{vT}
    """)
    setup()
    A(f"""
    s_waitcnt vmcnt(0)
    s_barrier                                        ; F1
    """)
    ST.mark(2)
    def kv_reads(bt):
        for j in range(5):
            ks = 5*bt + j
            f = vF + (bt % 2)*40 + 8*j
            A(f"ds_read_b64_tr_b16 {v(f,2)}, v{vTE} offset:{ks*1280}")
            A(f"ds_read_b64_tr_b16 {v(f+2,2)}, v{vTE} offset:{ks*1280+160}")
            A(f"ds_read_b128 {v(f+4,4)}, v{vXB + ks%4} offset:{(ks//4)*8192}")
    def kv_main(isV):
        kv_reads(0)
        for bt in range(4):
            A("s_waitcnt lgkmcnt(0)")
            if bt < 3: kv_reads(bt + 1)
            for j in range(5):
                f = vF + (bt % 2)*40 + 8*j
                a, b = (v(f+4,4), v(f,4)) if isV else (v(f,4), v(f+4,4))
                c = "0" if (bt == 0 and j == 0) else v(vAc2, 4)
                A(f"v_mfma_f32_16x16x32_bf16 {v(vAc2,4)}, {a}, {b}, {c}")
    A(f"""
    s_mul_i32 s{sA}, s{sTT}, {TILE}
    s_add_u32 s{sA}, s{sA}, {WS_KV}
    s_and_b32 s{sA+1}, s{sHG}, 1                     ; th
    s_cmp_ge_u32 s{sHG}, 2
    s_cbranch_scc1 L_vw
    """)
    kv_main(False)
    A(f"""
    s_lshl_b32 s{sT2}, s{sA+1}, 4
    v_add_u32 v{vT}, s{sT2}, v{vTok}              ; kk
    v_lshl_add_u32 v{vT+2}, v{vHalf}, 5, v{vT}
    v_lshlrev_b32 v{vT+2}, 4, v{vT+2}
    v_and_b32 v{vT+1}, 1, v{vG4}
    v_lshl_add_u32 v{vT+2}, v{vT+1}, 3, v{vT+2}   ; K1 offset
    v_lshlrev_b32 v{vT+3}, 2, v{vT}               ; K2 offset
    s_nop 1
    v_cvt_pk_bf16_f32 v{vF}, v{vAc2}, v{vAc2+1}
    v_cvt_pk_bf16_f32 v{vF+1}, v{vAc2+2}, v{vAc2+3}
    s_cmp_eq_u32 s{sWave}, 6
    s_cbranch_scc1 L_k2
    buffer_store_dwordx2 {v(vF,2)}, v{vT+2}, {wsd}, s{sA} offen sc1
    s_branch L_pub
    """)
    A.label("L_k2")
    A(f"""
    s_mov_b64 exec, 0xffff
    buffer_store_dword v{vF}, v{vT+3}, {wsd}, s{sA} offen offset:{OFF_K2} sc1
    buffer_store_dword v{vF+1}, v{vT+3}, {wsd}, s{sA} offen offset:{OFF_K2+128} sc1
    s_mov_b64 exec, -1
    s_branch L_pub
    """)
    A.label("L_vw")
    kv_main(True)
    A(f"""
    s_mul_i32 s{sT2}, s{sA+1}, 672
    s_add_u32 s{sA}, s{sA}, s{sT2}
    v_mul_u32_u24 v{vT+2}, 336, v{vHalf}
    v_lshl_add_u32 v{vT+2}, v{vTok}, 4, v{vT+2}
    v_and_b32 v{vT+1}, 1, v{vG4}
    v_lshl_add_u32 v{vT+2}, v{vT+1}, 3, v{vT+2}   ; ha*336 + dv*16 + (g%2)*8
    v_mov_b32 v{vT+4}, 0x3f803f80
    v_cmp_eq_u32 vcc, 4, v{vTok}
    v_cvt_pk_bf16_f32 v{vF}, v{vAc2}, v{vAc2+1}
    v_cvt_pk_bf16_f32 v{vF+1}, v{vAc2+2}, v{vAc2+3}
    s_cmp_eq_u32 s{sWave}, 6
    s_cbranch_scc1 L_v2
    buffer_store_dwordx2 {v(vF,2)}, v{vT+2}, {wsd}, s{sA} offen offset:{OFF_VA} sc1
    s_branch L_pub
    """)
    A.label("L_v2")
    A(f"""
    v_cndmask_b32 v{vF}, v{vF}, v{vT+4}, vcc
    v_cndmask_b32 v{vF+1}, v{vF+1}, v{vT+4}, vcc
    v_cmp_gt_u32 vcc, 5, v{vTok}
    s_and_saveexec_b64 s[{sMask}:{sMask+1}], vcc
    buffer_store_dwordx2 {v(vF,2)}, v{vT+2}, {wsd}, s{sA} offen offset:{OFF_VA+256} sc1
    s_mov_b64 exec, -1
    s_branch L_pub
    """)
    A.label("L_rgw")
    if CPF:
        A(f"""
        s_getpc_b64 s[{sA}:{sA+1}]
        """)
        A.label("L_pc")
        A(f"""
        s_sub_u32 s{sA}, s{sA}, L_pc-{name}
        s_subb_u32 s{sA+1}, s{sA+1}, 0
        s_lshr_b32 s{sT}, s2, 3
        s_lshl_b32 s{sT}, s{sT}, 10
        v_add_u32 v{vT+5}, s{sT}, v{vL16}
        v_min_u32 v{vT+5}, L_code_end-{name}-16, v{vT+5}
        global_load_dwordx4 {v(BIG+120,4)}, v{vT+5}, s[{sA}:{sA+1}]
        """)
    A(f"""
    s_cmp_lg_u32 s{sHG}, 0
    s_cbranch_scc1 L_rg_none
    """)
    for (p, off) in ((pWR, 0), (pGW, 2048)):
        srd(sMD, p, 1280)
        for h in range(2):
            A(f"s_mov_b32 m0, {RG + off}")
            A("s_nop 0")
            A(f"buffer_load_dwordx4 v{vL16}, {md}, 0 offen offset:{1024*h} lds")
    A("s_barrier                                        ; F0")
    A(f"v_lshlrev_b32 v{vT+2}, 8, v{vTok}")
    A(f"v_add_u32 v{vT+2}, {XT}, v{vT+2}")
    for k in range(4):
        A(f"v_add_u32 v{vT+3}, {4*k}, v{vG4}")
        A(f"v_xor_b32 v{vT+3}, v{vT+3}, v{vTok}")
        A(f"v_lshl_add_u32 v{vXB+k}, v{vT+3}, 4, v{vT+2}")
    A(f"""
    v_cmp_eq_u32 vcc, 1, v{vTok}
    v_mov_b32 v{vT}, {RG}
    v_mov_b32 v{vT+1}, {RG+2048}
    v_cndmask_b32 v{vT}, v{vT}, v{vT+1}, vcc
    v_lshl_add_u32 v{vTE}, v{vG4}, 4, v{vT}
    """)
    setup()
    A(f"""
    s_waitcnt vmcnt(0)
    s_barrier                                        ; F1
    """)
    ST.mark(2)
    if F1B: A("s_barrier                                        ; F1b")
    def rg_reads(bt):
        for j in range(4):
            ks = 4*bt + j
            f = vF + (bt % 2)*48 + 12*j
            A(f"ds_read_b128 {v(f,4)}, v{vTE} offset:{ks*64}")
            A(f"ds_read_b128 {v(f+4,4)}, v{vXB + j} offset:{bt*8192}")
            A(f"ds_read_b128 {v(f+8,4)}, v{vXB + j} offset:{bt*8192+4096}")
    rg_reads(0)
    for bt in range(5):
        A("s_waitcnt lgkmcnt(0)")
        if bt < 4: rg_reads(bt + 1)
        for j in range(4):
            f = vF + (bt % 2)*48 + 12*j
            for h in range(2):
                c = "0" if (bt == 0 and j == 0) else v(vAc2+4*h, 4)
                A(f"v_mfma_f32_16x16x32_bf16 {v(vAc2+4*h,4)}, {v(f,4)}, {v(f+4+4*h,4)}, {c}")
    A(f"""
    s_lshl_b32 s{sT}, s{sTT}, 5
    v_add_u32 v{vT}, s{sT}, v{vTok}
    v_sub_u32 v{vT+1}, 2047, v{vT}
    v_lshlrev_b32 v{vT}, 2, v{vT}
    s_mov_b32 s{sT2}, {WS_G}
    s_lshl_b32 s{sT}, s{sTT}, 3
    s_add_u32 s{sT}, s{sT}, {WS_KEY}
    v_mov_b32 v{vT+4}, 0
    s_nop 1
    """)
    for h in range(2):
        r = vAc2 + 4*h; gl = r + 1; k = vT + 2; g = vT + 3
        A(f"""
        v_ashrrev_i32 v{k}, 31, v{r}
        v_or_b32 v{k}, 0x80000000, v{k}
        v_xor_b32 v{k}, v{k}, v{r}
        v_and_b32 v{k}, 0xfffff800, v{k}
        v_or_b32 v{k}, v{k}, v{vT+1}
        v_cvt_pk_bf16_f32 v{g}, v{gl}, v{gl}
        v_subrev_u32 v{vT+1}, 16, v{vT+1}
        v_max_u32_dpp v{k}, v{k}, v{k} row_shr:1 row_mask:0xf bank_mask:0xf
        v_and_b32 v{g}, 0xffff0000, v{g}
        v_mul_f32 v{g}, {NLOG2E}, v{g}
        v_max_u32_dpp v{k}, v{k}, v{k} row_shr:2 row_mask:0xf bank_mask:0xf
        v_exp_f32 v{g}, v{g}
        s_nop 0
        v_max_u32_dpp v{k}, v{k}, v{k} row_shr:4 row_mask:0xf bank_mask:0xf
        v_add_f32 v{g}, 1.0, v{g}
        v_rcp_f32 v{g}, v{g}
        v_max_u32_dpp v{k}, v{k}, v{k} row_shr:8 row_mask:0xf bank_mask:0xf
        v_cvt_pk_bf16_f32 v{g}, v{g}, v{g}
        v_and_b32 v{g}, 0xffff0000, v{g}
        s_mov_b64 exec, 0xffff
        buffer_store_dword v{g}, v{vT}, {wsd}, s{sT2} offen offset:{64*h} sc1
        s_mov_b64 exec, 0x8000
        buffer_store_dword v{k}, v{vT+4}, {wsd}, s{sT} offen offset:{4*h} sc1
        s_mov_b64 exec, -1
        """)
    A("s_waitcnt vmcnt(0)\ns_setprio 0\ns_branch L_f2a")
    A.label("L_pub")
    A(f"""
    {"s_barrier" if F1B else ""}
    v_mov_b32 v{vT}, {CNT}
    v_mov_b32 v{vT+1}, 1
    s_waitcnt vmcnt(0)
    s_mov_b64 exec, 1
    ds_add_u32 v{vT}, v{vT+1}
    s_mov_b64 exec, -1
    s_setprio 0
    s_branch L_f2a
    """)
    A.label("L_rg_none")
    A("s_barrier                                        ; F0")
    setup()
    A(f"""
    s_waitcnt vmcnt(0)
    s_barrier                                        ; F1
    {"s_barrier" if F1B else ""}
    """)
    ST.mark(2)

    A.label("L_f2a")
    A("s_setprio 0")
    ST.mark(3)
    zinit()
    A("s_barrier                                        ; F2a")
    A.label("L_f2")
    A(f"""
    s_waitcnt lgkmcnt(0)
    s_barrier
    """)
    ST.mark(4)
    A(f"""
    ds_read2_b64 {v(vQ1[0],4)}, v{vQA[0]} offset0:0 offset1:1
    ds_read_b32 v{vQ2[0]}, v{vQA[1]} offset:32
    ds_read_b128 {v(vVa[1],4)}, v{vL16} offset:{OFF_K1}
    ds_read_b32 v{vVb[1]}, v{vL4} offset:{OFF_K2}
    ds_read2_b64 {v(vQ1[1],4)}, v{vQA[2]} offset0:0 offset1:1
    ds_read_b32 v{vQ2[1]}, v{vQA[3]} offset:32
    ds_read_b128 {v(vK1[0],4)}, v{vAK1} offset:{OFF_K1}
    ds_read_b32 v{vK2[0]}, v{vAK2} offset:{OFF_K2}
    ds_read_b128 {v(vVa[0],4)}, v{vAV} offset:{OFF_VA}
    ds_read_b128 {v(vVb[0],4)}, v{vAV} offset:{OFF_VB}
    ds_read_b128 {v(vK1[1],4)}, v{vAK1} offset:{2*TILE+OFF_K1}
    ds_read_b32 v{vK2[1]}, v{vAK2} offset:{2*TILE+OFF_K2}
    v_mov_b32 v{vVb[1]+1}, 0
    v_mov_b32 v{vQ2[0]+1}, 0
    v_mov_b32 v{vQ2[1]+1}, 0
    v_mov_b32 v{vK2[0]+1}, 0x3f803f80
    v_mov_b32 v{vK2[1]+1}, 0x3f803f80
    """)
    def qk(dst, k1, k2, q):
        return (f"v_mfma_f32_32x32x8_bf16 {v(dst,16)}, {v(k2,2)}, {v(vQ2[q],2)}, 0",
                f"v_mfma_f32_32x32x16_bf16 {v(dst,16)}, {v(k1,4)}, {v(vQ1[q],4)}, {v(dst,16)}")
    def set_m(m, q, t, exact):
        A(f"""
        v_mov_b32 v{t}, v{m}
        s_nop 1
        v_permlane32_swap_b32 v{m}, v{t}
        s_nop 1
        v_max_f32 v{m}, v{m}, v{t}
        v_xor_b32 v{m}, 0x80000000, v{m}
        """)
        if exact:
            A(f"""
            v_and_b32 v{t}, 0xffff0000, v{m}         ; hi
            v_sub_f32 v{t+1}, v{m}, v{t}             ; r1
            v_and_b32 v{t+2}, 0xffff0000, v{t+1}     ; mid
            v_sub_f32 v{t+1}, v{t+1}, v{t+2}         ; r2
            v_lshrrev_b32 v{t}, 16, v{t}
            v_or_b32 v{t}, v{t}, v{t+2}
            v_lshrrev_b32 v{t+1}, 16, v{t+1}
            v_cndmask_b32 v{vQ2[q]+1}, v{t+1}, v{t}, s[{sLo32}:{sLo32+1}]
            """)
        else:
            A(f"""
            v_lshrrev_b32 v{t}, 16, v{m}
            v_cndmask_b32 v{vQ2[q]+1}, 0, v{t}, s[{sLo32}:{sLo32+1}]
            """)
    def tile_max(m, S_, init):
        if init:
            A(f"v_max3_f32 v{m}, v{S_}, v{S_+1}, v{S_+2}")
            for i in range(3, 15, 2):
                A(f"v_max3_f32 v{m}, v{m}, v{S_+i}, v{S_+i+1}")
            A(f"v_max_f32 v{m}, v{m}, v{S_+15}")
        else:
            for i in range(0, 16, 2):
                A(f"v_max3_f32 v{m}, v{m}, v{S_+i}, v{S_+i+1}")
    A("s_waitcnt lgkmcnt(8)")
    a, b = qk(vS[1], vVa[1], vVb[1], 0); A(a); A(b)
    A("s_waitcnt lgkmcnt(6)")
    a, b = qk(vS[2], vVa[1], vVb[1], 1); A(a); A(b)
    A("s_nop 8")
    tile_max(vM, vS[1], True)
    set_m(vM, 0, vT, False)
    A(f"s_mov_b32 s{sT2}, {16*TILE}")
    A("s_waitcnt lgkmcnt(4)")
    a, b = qk(vS[0], vK1[0], vK2[0], 0); A(a); A(b)
    tile_max(vM, vS[2], True)
    set_m(vM, 1, vT, False)
    for i in range(4):
        A(f"v_mov_b32 v{vVb[1]+i}, 0")
    ST.mark(5)
    A.raw(".p2align 6")
    A.label("L_loop")
    for u in range(16):
        i, q = u // 2, u % 2
        X = vS[u % 4]; Y = vS[(u + 1) % 4]; Z = vS[(u - 1) % 4]
        inx, qn = (u + 1) // 2, (u + 1) % 2
        ip, qp = (u - 1) // 2, (u - 1) % 2
        e = lambda k: A(f"v_exp_f32 v{X+k}, v{X+k}")
        a, b = qk(Y, vK1[inx % 2], vK2[inx % 2], qn)
        if q == 0:
            av, o = (vAVs, 0) if u == 12 else (vAV, (2*i+2)*TILE)
            r1 = f"ds_read_b128 {v(vVb[(i+1)%2],4)}, v{av} offset:{o+OFF_VB}"
            r2 = f"ds_read_b128 {v(vVa[(i+1)%2],4)}, v{av} offset:{o+OFF_VA}"
        else:
            a1, a2, o = (vAK1s, vAK2s, 0) if u == 11 else (vAK1, vAK2, (2*i+4)*TILE)
            r1 = f"ds_read_b128 {v(vK1[i%2],4)}, v{a1} offset:{o+OFF_K1}"
            r2 = f"ds_read_b32 v{vK2[i%2]}, v{a2} offset:{o+OFF_K2}"
        e(0); e(1); A(a); e(2); e(3); e(4); e(5); A(b)
        if u == 7: A(f"s_cmp_eq_u32 s{sIter}, 0")
        if u == 14:
            A(f"s_cmp_eq_u32 s{sIter}, 2")
            A(f"s_cselect_b32 s{sDelta}, {(16*TILE - 62*TILE) & 0xffffffff}, s{sT2}")
        if u == 15:
            A(f"s_add_u32 s{sIter}, s{sIter}, 1")
            A(f"s_cmp_eq_u32 s{sIter}, 1")
        e(6); e(7); e(8); e(9)
        A(f"v_smfmac_f32_32x32x32_bf16 {v(vO[qp],16)}, {v(vVb[ip%2],4)}, {v(Z+8,8)}, v{vIdx}")
        A("s_waitcnt lgkmcnt(0)")
        A(r1)
        e(10); e(11); e(12); e(13)
        A(f"v_smfmac_f32_32x32x32_bf16 {v(vO[q],16)}, {v(vVa[i%2],4)}, {v(X,8)}, v{vIdx}")
        A(r2)
        e(14); e(15)
        if u == 7:
            A("s_cbranch_scc1 L_bar0")
            A.label("L_bar0_ret")
    A(f"""
    v_add_u32 v{vAK1}, {16*TILE}, v{vAK1}
    v_add_u32 v{vAK2}, {16*TILE}, v{vAK2}
    v_add_u32 v{vAV}, {16*TILE}, v{vAV}
    v_add_u32 v{vAK1s}, s{sDelta}, v{vAK1s}
    v_add_u32 v{vAK2s}, s{sDelta}, v{vAK2s}
    v_add_u32 v{vAVs}, s{sDelta}, v{vAVs}
    s_cbranch_scc1 L_loop
    s_cmp_eq_u32 s{sIter}, 4
    s_cbranch_scc1 L_fin
    s_waitcnt lgkmcnt(0)
    s_barrier                                        ; L3 / L5
    s_branch L_loop
    """)
    A.label("L_bar0")
    A("s_waitcnt lgkmcnt(0)\ns_barrier                                        ; L0\ns_branch L_bar0_ret")
    A.label("L_fin")
    ST.mark(6)
    A(f"v_smfmac_f32_32x32x32_bf16 {v(vO[1],16)}, {v(vVb[1],4)}, {v(vS[3]+8,8)}, v{vIdx}")
    A(f"""
    s_mov_b32 s{sT}, 0x5f800000             ; 2^64
    v_mov_b32 v{vT+4}, {SELA}
    s_nop 9
    ds_write_b128 v{vEXo}, {v(vO[1],4)}
    ds_write_b128 v{vEXo}, {v(vO[1]+4,4)} offset:1024
    ds_write_b128 v{vEXo}, {v(vO[1]+8,4)} offset:2048
    s_waitcnt lgkmcnt(0)
    s_barrier                                        ; E1
    """)
    ST.mark(7)
    A(f"""
    ds_read_b128 {v(vS[0]+8,4)}, v{vEXp} offset:2048
    ds_read_b128 {v(vS[0],4)}, v{vEXp}
    ds_read_b128 {v(vS[0]+4,4)}, v{vEXp} offset:1024
    ds_read_b32 v{vT+4}, v{vT+4} offset:4
    s_waitcnt lgkmcnt(3)
    """)
    O = vO[0]
    for i in range(8, 12):
        A(f"v_add_f32 v{O+i}, v{O+i}, v{vS[0]+i}")
    def l_bcast():
        A(f"""
        v_mov_b32 v{vT+2}, v{O+8}
        v_mov_b32 v{vT+3}, v{O+8}
        s_nop 1
        v_permlane32_swap_b32 v{vT+2}, v{vT+3}
        """)
    l_bcast()
    A("s_waitcnt lgkmcnt(0)")
    for i in range(8):
        A(f"v_add_f32 v{O+i}, v{O+i}, v{vS[0]+i}")
    A(f"v_mul_f32 v{vT}, 0, v{O}")
    A(f"v_mul_f32 v{vT+1}, 0, v{O+1}")
    for i in range(2, 12):
        A(f"v_fma_f32 v{vT + i%2}, 0, v{O+i}, v{vT + i%2}")
    A(f"""
    v_add_f32 v{vT}, v{vT}, v{vT+1}
    v_add_f32 v{vT}, v{vT}, v{vT+3}
    v_cmp_nge_f32 vcc, s{sT}, v{vT}           ; !(2^64 >= l)
    s_cbranch_vccnz L_fallback
    """)
    A.label("L_store")
    A(f"v_rcp_f32 v{vT}, v{vT+3}")
    A(f"s_mov_b32 s{sT}, 0xfffffffe")
    for i in range(12):
        A(f"v_mul_f32 v{O+i}, v{O+i}, v{vT}")
    for i in range(6):
        A(f"v_cvt_pk_bf16_f32 v{vS[0]+i}, v{O+2*i}, v{O+2*i+1}")
    for i in range(6):
        A(f"v_min_u32 v{vS[0]+i}, s{sT}, v{vS[0]+i}")
    A(f"""
    v_cmp_eq_u32 vcc, 1, v{vT+4}
    s_cbranch_vccnz L_st_fast
    buffer_store_dwordx4 {v(vS[0],4)}, v{vSM}, {wsd}, s{sStM} offen sc1
    s_mov_b64 exec, s[{sLo32}:{sLo32+1}]
    buffer_store_dwordx2 {v(vS[0]+4,2)}, v{vSTl}, {wsd}, s{sStT} offen sc1
    s_branch L_st_done
    """)
    A.label("L_st_fast")
    if stamp: A(f"v_writelane_b32 v{vSt}, 1, 13")
    A(f"""
    buffer_store_dwordx4 {v(vS[0],4)}, v{vSM}, {wsd}, s{sStM} offen
    s_mov_b64 exec, s[{sLo32}:{sLo32+1}]
    buffer_store_dwordx2 {v(vS[0]+4,2)}, v{vSTl}, {wsd}, s{sStT} offen
    """)
    A.label("L_st_done")
    A(f"""
    s_mov_b64 exec, -1
    s_barrier
    """)
    ST.mark(8)
    vOF = BIG
    vWB = [124, 56]
    vEp = 76
    vXO = 83
    vTB = 84
    vB = 94
    vAcc = 104
    g = vEp + 5; omg = vEp + 6
    A(f"""
    s_add_u32 s{sStM}, s{sOFs}, 4096
    s_add_u32 s{sStT}, s{sOFs}, 8192
    s_mov_b32 s{sIter}, 0
    """)
    def oload(k):
        so = (sOFs, sStM, sStT)[k // 4]
        A(f"buffer_load_dwordx4 {v(vOF+4*k,4)}, v{vL16}, {wsd}, s{so} offen offset:{(k%4)*1024} sc1")
    for k in range(5 if OSPLIT else 10): oload(k)
    ST.mark(11)
    A(f"""
    ; tr bases: ((g/2)*20 + 4*(g%2) + r)*160 + (l%4)*8   and   (g*40 + 16 + r)*160 + (l%4)*8
    v_lshrrev_b32 v{vT+1}, 2, v{vTok}
    v_and_b32 v{vT+2}, 3, v{vLane}
    v_lshlrev_b32 v{vT+2}, 3, v{vT+2}
    v_add_u32 v{vT+2}, s{sGs}, v{vT+2}
    v_mad_u32_u24 v{vT+3}, v{vHalf}, 12, v{vT+1}
    v_lshl_add_u32 v{vT+3}, v{vG4}, 2, v{vT+3}
    v_mad_u32_u24 v{vT+4}, v{vG4}, 40, v{vT+1}
    v_mul_u32_u24 v{vT+3}, 160, v{vT+3}
    v_mul_u32_u24 v{vT+4}, 160, v{vT+4}
    v_add_u32 v{vTB}, v{vT+3}, v{vT+2}
    v_add_u32 v{vTB+1}, v{vT+4}, v{vT+2}
    """)
    def wreads(k):
        for nt in range(5):
            for sidx in range(2):
                if k % 5 < 4: base, off = vTB, (k % 5)*6400 + sidx*1280
                else: base, off = vTB + 1, 2560 + sidx*3200
                A(f"ds_read_b64_tr_b16 {v(vWB[k%2]+4*nt+2*sidx,2)}, v{base} offset:{(k//5)*25600 + off + nt*32}")
    wreads(0)
    def final_setup():
        A(FS)
    FS = f"""
    v_lshrrev_b32 v{vT}, 3, v{vLane}
    v_and_b32 v{vT+5}, 7, v{vLane}
    v_mul_u32_u24 v{vXO}, 1280, v{vT}
    v_mul_u32_u24 v{vT+6}, 20, v{vT+5}
    v_add_u32 v{vXO}, v{vXO}, v{vT+6}
    s_lshl_b32 s{sT}, s{sWave}, 3
    v_add_u32 v{vT}, s{sT}, v{vT}
    v_mul_u32_u24 v{vEXp}, {PP}, v{vT}
    v_lshl_add_u32 v{vEXp}, v{vT+6}, 1, v{vEXp}
    v_add_u32 v{vEXp}, {PB[0]}, v{vEXp}
    v_add_u32 v{vSM}, {PB[1]-PB[0]}, v{vEXp}
    s_and_b32 s{sT}, s{sWave}, 3
    s_mul_i32 s{sT}, s{sT}, {16*PP}
    s_mul_i32 s{sT2}, s{sPart}, {PB[1]-PB[0]}
    s_add_u32 s{sT}, s{sT}, s{sT2}
    s_add_u32 s{sT}, s{sT}, {PB[0]}
    v_mul_u32_u24 v{vEXo}, {PP}, v{vTok}
    v_lshl_add_u32 v{vEXo}, v{vG4}, 4, v{vEXo}
    v_add_u32 v{vEXo}, s{sT}, v{vEXo}
    v_mov_b32 v{vT+1}, {SELA}
    ds_read_b32 v{vT+1}, v{vT+1}
    v_lshlrev_b32 v{vTB+2}, 2, v{vT}
    v_add_u32 v{vTB+2}, {GL}, v{vTB+2}
    ds_read_b32 v{g}, v{vTB+2}
    v_lshlrev_b32 v{vT+2}, 1, v{vT+6}
    v_add_u32 v{vT+2}, {SELA+16}, v{vT+2}
    s_waitcnt lgkmcnt(0)
    v_sub_f32 v{omg}, 1.0, v{g}
    v_cmp_eq_u32 s[{sMask}:{sMask+1}], v{vT+1}, v{vT}
    v_cvt_pk_bf16_f32 v{omg}, v{omg}, v{omg}
    v_and_b32 v{omg}, 0xffff0000, v{omg}
    """
    for seg in range(2):
        if seg == (0 if FSE else 1): final_setup()
        if seg == 0 and OSPLIT:
            for k in range(5, 10): oload(k)
        if seg == 0: ST.mark(12)
        if seg == 0 and stamp:
            A("s_waitcnt vmcnt(10)"); ST.mark(16)
        A(f"s_waitcnt vmcnt({5 if seg == 0 else 0})")
        ST.mark(17 + seg)
        A.label(f"L_chk{seg}")
        f = vOF + 20*seg
        A(f"v_max3_u32 v{vT+3}, v{f}, v{f+1}, v{f+2}")
        A(f"v_max3_u32 v{vT+4}, v{f+3}, v{f+4}, v{f+5}")
        for i in range(6, 20, 2):
            t = vT + 3 + (i//2) % 2
            A(f"v_max3_u32 v{t}, v{t}, v{f+i}, v{f+i+1}")
        A(f"""
        v_max_u32 v{vT+3}, v{vT+3}, v{vT+4}
        v_cmp_eq_u32 vcc, -1, v{vT+3}
        s_cbranch_vccz L_ok{seg}
        s_add_u32 s{sIter}, s{sIter}, 1
        s_cmp_gt_u32 s{sIter}, {SPIN_MAX}
        s_cbranch_scc1 L_ok{seg}
        """)
        for k in range(5*seg, 10): oload(k)
        A(f"s_waitcnt vmcnt({5 if seg == 0 else 0})")
        A(f"s_branch L_chk{seg}")
        A.label(f"L_ok{seg}")
        if seg == 0: ST.mark(9)
        if seg == 1:
            A(f"buffer_load_dwordx4 {v(vEp,4)}, v{vXO}, {xd}, s{sE2} offen")
            A(f"buffer_load_dword v{vEp+4}, v{vXO}, {xd}, s{sE2} offen offset:16")
        for k in range(5*seg, 5*seg + 5):
            if k < 9:
                wreads(k + 1)
                A("s_waitcnt lgkmcnt(10)")
            else:
                A("s_waitcnt lgkmcnt(0)")
            for nt in range(5):
                c = "0" if k == 0 else v(vAcc+4*nt, 4)
                A(f"v_mfma_f32_16x16x32_bf16 {v(vAcc+4*nt,4)}, {v(vWB[k%2]+4*nt,4)}, {v(vOF+4*k,4)}, {c}")
    ST.mark(10)
    if stamp: A(f"v_writelane_b32 v{vSt}, s{sIter}, 14")
    A("s_nop 3")
    for nt in range(5):
        A(f"ds_write_b128 v{vEXo}, {v(vAcc+4*nt,4)} offset:{64*nt}")
    A("s_waitcnt vmcnt(0)")
    for i in range(5):
        A(f"v_lshlrev_b32 v{vB+2*i}, 16, v{vEp+i}")
        A(f"v_and_b32 v{vB+2*i+1}, 0xffff0000, v{vEp+i}")
    for i in range(10):
        A(f"v_mul_f32 v{vB+i}, v{omg}, v{vB+i}")
    A("s_waitcnt lgkmcnt(0)")
    ST.mark(19)
    A("s_barrier                                        ; E4")
    ST.mark(20)
    P0, P1 = vOF, vOF + 12
    for (P_, ad) in ((P0, vEXp), (P1, vSM)):
        A(f"ds_read2_b64 {v(P_,4)}, v{ad} offset0:0 offset1:1")
        A(f"ds_read2_b64 {v(P_+4,4)}, v{ad} offset0:2 offset1:3")
        A(f"ds_read_b64 {v(P_+8,2)}, v{ad} offset:32")
    A(f"s_cmp_eq_u64 s[{sMask}:{sMask+1}], 0")
    A("s_cbranch_scc1 L_nosel")
    for i in range(5):
        A(f"ds_read_b64 {v(vAcc+2*i,2)}, v{vT+2} offset:{8*i}")
    A(f"s_mov_b64 exec, s[{sMask}:{sMask+1}]")
    for i in range(5):
        A(f"v_lshlrev_b32 v{vB+2*i}, 16, v{vEp+i}")
        A(f"v_and_b32 v{vB+2*i+1}, 0xffff0000, v{vEp+i}")
    A("s_waitcnt lgkmcnt(0)")
    for i in range(10):
        A(f"v_add_f32 v{vB+i}, v{vB+i}, v{vAcc+i}")
        A(f"v_cvt_pk_bf16_f32 v{vB+i}, v{vB+i}, v{vB+i}")
        A(f"v_and_b32 v{vB+i}, 0xffff0000, v{vB+i}")
        A(f"v_mul_f32 v{vB+i}, v{omg}, v{vB+i}")
    A("s_mov_b64 exec, -1")
    A.label("L_nosel")
    A("s_waitcnt lgkmcnt(0)")
    for i in range(10):
        A(f"v_add_f32 v{P0+i}, v{P0+i}, v{P1+i}")
    for i in range(10):
        A(f"v_fma_f32 v{vB+i}, v{g}, v{P0+i}, v{vB+i}")
    for i in range(5):
        A(f"v_cvt_pk_bf16_f32 v{vEp+i}, v{vB+2*i}, v{vB+2*i+1}")
    A(f"""
    buffer_store_dwordx4 {v(vEp,4)}, v{vXO}, {dd}, s{sE2} offen
    buffer_store_dword v{vEp+4}, v{vXO}, {dd}, s{sE2} offen offset:16
    """)
    ST.mark(21)
    A.label("L_done")
    ST.dump()
    A.label("L_end")
    A("s_endpgm")

    A.label("L_fallback")
    A(f"""
    v_mov_b32 v{vQ2[0]+1}, 0
    v_mov_b32 v{vM}, 0xff800000
    s_mov_b32 s{sT}, {WS_KV}
    """)
    A.label("L_fb1")
    A(f"""
    buffer_load_dwordx4 {v(vK1[0],4)}, v{vL16}, {wsd}, s{sT} offen offset:{OFF_K1} sc1
    buffer_load_dword v{vK2[0]}, v{vL4}, {wsd}, s{sT} offen offset:{OFF_K2} sc1
    s_waitcnt vmcnt(0)
    """)
    a, b = qk(vS[0], vK1[0], vK2[0], 0); A(a); A(b)
    A("s_nop 15")
    tile_max(vM, vS[0], False)
    A(f"""
    s_add_u32 s{sT}, s{sT}, {TILE}
    s_cmp_lt_u32 s{sT}, {WS_KV + KV_BYTES}
    s_cbranch_scc1 L_fb1
    """)
    set_m(vM, 0, vT, True)
    for i in range(16):
        A(f"v_mov_b32 v{O+i}, 0")
    A(f"s_mov_b32 s{sT}, {WS_KV}")
    A.label("L_fb2")
    A(f"""
    buffer_load_dwordx4 {v(vK1[0],4)}, v{vL16}, {wsd}, s{sT} offen offset:{OFF_K1} sc1
    buffer_load_dword v{vK2[0]}, v{vL4}, {wsd}, s{sT} offen offset:{OFF_K2} sc1
    buffer_load_dwordx4 {v(vVa[0],4)}, v{vGV}, {wsd}, s{sT} offen offset:{OFF_VA} sc1
    buffer_load_dwordx4 {v(vVb[0],4)}, v{vGV}, {wsd}, s{sT} offen offset:{OFF_VB} sc1
    s_waitcnt vmcnt(0)
    """)
    a, b = qk(vS[0], vK1[0], vK2[0], 0); A(a); A(b)
    A("s_nop 15")
    for i in range(16):
        A(f"v_exp_f32 v{vS[0]+i}, v{vS[0]+i}")
    A("s_nop 1")
    A(f"v_smfmac_f32_32x32x32_bf16 {v(O,16)}, {v(vVa[0],4)}, {v(vS[0],8)}, v{vIdx}")
    A(f"v_smfmac_f32_32x32x32_bf16 {v(O,16)}, {v(vVb[0],4)}, {v(vS[0]+8,8)}, v{vIdx}")
    A(f"""
    s_nop 15
    s_add_u32 s{sT}, s{sT}, {TILE}
    s_cmp_lt_u32 s{sT}, {WS_KV + KV_BYTES}
    s_cbranch_scc1 L_fb2
    """)
    l_bcast()
    A("s_nop 1")
    A("s_branch L_store")

    H = RegAlloc(8)
    hN = H.alloc("nonce", 4, 4)
    hFA = H.alloc("fa"); hGA = H.alloc("ga"); hOwn = H.alloc("own")
    hKey = H.alloc("key", 2, 2)
    hX = H.alloc("X", 80, 4)
    hD = H.alloc("D", 40, 4)
    assert H.next <= vIdx, (H.next, vIdx)
    hAc = hX + 64
    FST = 2 * TILE
    XSL = FST + 20480
    sF, sIdx, sKey, sSpin, sN = sA, sA + 1, sA + 2, sA + 3, sA + 4
    sH = 76
    sXcc, sFast = 96, 97
    A.label("L_helper")
    A("s_setprio 2")
    srd(sDD, pDBG, 256)
    A(f"""
    v_mov_b32 v{vT+2}, 0
    s_cmp_lg_u32 s2, 0
    s_cbranch_scc1 L_h_nolead
    s_memrealtime s[{sN}:{sN+1}]
    s_waitcnt lgkmcnt(0)
    s_or_b32 s{sN}, s{sN}, 1
    v_mov_b32 v{hN}, s{sN}
    v_mov_b32 v{hN+1}, s{sN+1}
    s_mov_b64 exec, 1
    buffer_store_dwordx2 {v(hN,2)}, v{vT+2}, {dd}, 0 offen sc1
    s_mov_b64 exec, -1
    """)
    A.label("L_h_nolead")
    A(f"""
    s_cmp_lt_u32 s{sFid}, 236
    s_cbranch_scc1 L_h_noyz
    v_mov_b32 v{hX}, 0
    v_mov_b32 v{hX+1}, 0
    v_mov_b32 v{hX+2}, 0
    v_mov_b32 v{hX+3}, 0
    s_lshl_b32 s{sT}, s{sFid}, 10
    s_add_u32 s{sT}, s{sT}, {WS_Y - 236*1024}
    buffer_store_dwordx4 {v(hX,4)}, v{vL16}, {wsd}, s{sT} offen sc1
    """)
    A.label("L_h_noyz")
    for r3 in range(3):
        A(f"s_mov_b32 m0, {WK + 16384 + r3*3072}")
        A(f"s_mov_b32 s{sT}, {16384 + r3*3072}")
        for j in range(3):
            A(f"buffer_load_dwordx4 v{vL16}, {md}, s{sT} offen offset:{j*1024} lds")
    A(f"buffer_load_dwordx2 {v(hN,2)}, v{vT+2}, {dd}, 0 offen sc1")
    A("s_barrier                                        ; F0")
    srd(sKVD, pWS, KV_BYTES, WS_KV)
    A(f"""
    v_lshlrev_b32 v{hFA}, 5, v{vLane}
    v_and_b32 v{hGA}, 7, v{vLane}
    v_lshlrev_b32 v{hGA}, 5, v{hGA}
    s_lshl_b32 s{sT}, s{sG}, 8
    s_add_u32 s{sT}, s{sT}, {WS_FLAG + 3*8192}
    v_add_u32 v{hGA}, s{sT}, v{hGA}
    v_mov_b32 v{vT}, {CNT}
    v_mov_b32 v{vT+1}, 0
    ds_write_b32 v{vT}, v{vT+1}
    s_lshl_b32 s{sT}, s{sFid}, 5
    s_add_u32 s{sT}, s{sT}, {WS_FLAG}
    v_mov_b32 v{hOwn}, s{sT}
    s_waitcnt vmcnt(0) lgkmcnt(0)
    s_barrier                                        ; F1
    """)
    ST.mark(2)
    if F1B: A("s_barrier                                        ; F1b")
    A(f"s_mov_b32 s{sSpin}, 0")
    A(f"v_cmp_eq_u32 vcc, 0, v{hN}")
    A("s_cbranch_vccz L_h_nonce_done")
    A.label("L_h_nonce")
    A(f"""
    buffer_load_dwordx2 {v(hN,2)}, v{vT+2}, {dd}, 0 offen sc1
    s_add_u32 s{sSpin}, s{sSpin}, 1
    s_cmp_gt_u32 s{sSpin}, {SPIN_MAX}
    s_cbranch_scc1 L_h_nonce_done
    s_waitcnt vmcnt(0)
    v_cmp_eq_u32 vcc, 0, v{hN}
    s_cbranch_vccnz L_h_nonce
    """)
    A.label("L_h_nonce_done")
    A(f"""
    s_waitcnt vmcnt(0)
    s_mov_b32 s{sT2}, 2
    s_mov_b32 s{sSpin}, 0
    """)
    def cntwait(lab, shift, target):
        A(f"s_mov_b32 s{sSpin}, 0")
        A.label(f"L_h_cnt{lab}")
        A(f"""
        s_sleep 1
        ds_read_b32 v{vT+1}, v{vT}
        s_add_u32 s{sSpin}, s{sSpin}, 1
        s_cmp_gt_u32 s{sSpin}, {SPIN_MAX*8}
        s_cbranch_scc1 L_h_cnt{lab}_done
        s_waitcnt lgkmcnt(0)
        v_bfe_u32 v{vT+1}, v{vT+1}, {shift}, 8
        v_cmp_ne_u32 vcc, {target}, v{vT+1}
        s_cbranch_vccnz L_h_cnt{lab}
        """)
        A.label(f"L_h_cnt{lab}_done")
    cntwait("a", 0, 2)
    def publish(word):
        A(f"""
        s_mov_b32 s{sT}, {8192*word}
        s_mov_b64 exec, 1
        buffer_store_dwordx2 {v(hN,2)}, v{hOwn}, {wsd}, s{sT} offen sc1
        s_mov_b64 exec, -1
        """)
    publish(0)
    ST.mark(3)
    def poll(word, parts, lab, slow=False, sleep=0):
        A(f"s_mov_b32 s{sSpin}, 0")
        A(f"s_mov_b32 s{sT2}, {WS_FLAG + 8192*word}")
        A(f"s_mov_b32 s{sT}, {WS_FLAG + 8192*word + 4096}")
        A.label(f"L_poll{lab}")
        for i in parts:
            A(f"buffer_load_dwordx2 {v(hAc+2*i,2)}, v{hFA}, {wsd}, s{sT2 if i < 2 else sT} offen offset:{2048*(i%2)} sc1")
        A(f"""
        s_add_u32 s{sSpin}, s{sSpin}, 1
        s_cmp_gt_u32 s{sSpin}, {SPIN_MAX}
        s_cbranch_scc1 L_poll{lab}_done
        s_waitcnt vmcnt(0)
        """)
        A(f"v_cmp_ne_u64 vcc, {v(hAc+2*parts[0],2)}, {v(hN,2)}")
        for i in parts[1:]:
            A(f"v_cmp_ne_u64 s[{sMask}:{sMask+1}], {v(hAc+2*i,2)}, {v(hN,2)}")
            A(f"s_or_b64 vcc, vcc, s[{sMask}:{sMask+1}]")
        if sleep:
            A(f"s_cbranch_vccz L_poll{lab}_done\ns_sleep {sleep}\ns_branch L_poll{lab}")
        else:
            A(f"s_cbranch_vccnz L_poll{lab}")
        A.label(f"L_poll{lab}_done")
    cntwait("b", 8, 5)
    poll(0, [0], "A", sleep=PSA)
    ST.mark(4)
    A("s_mov_b32 m0, 0")
    A("s_nop 0")
    A.label("L_h_dma0")
    for j in range(4):
        A(f"buffer_load_dwordx4 v{vL16}, {kvd}, m0 offen offset:{j*1024} sc1 lds")
    A(f"""
    s_add_u32 m0, m0, 4096
    s_cmp_lt_u32 m0, 32768
    s_cbranch_scc1 L_h_dma0
    s_barrier                                        ; F2a
    s_waitcnt vmcnt(0)
    """)
    ST.mark(10)
    A("s_barrier                                        ; F2")
    poll(0, [1, 2, 3], "A2")
    A(f"""
    s_getreg_b32 s{sXcc}, hwreg(HW_REG_XCC_ID)
    s_and_b32 s{sXcc}, s{sXcc}, 0xf
    v_mov_b32 v{hN+2}, s{sXcc}
    v_mov_b32 v{hN+3}, 0
    s_mov_b32 s{sT}, {8192*2}
    s_mov_b64 exec, 1
    buffer_store_dwordx4 {v(hN,4)}, v{hOwn}, {wsd}, s{sT} offen sc1
    s_mov_b64 exec, -1
    """)
    A.label("L_h_dma")
    for j in range(4):
        A(f"buffer_load_dwordx4 v{vL16}, {kvd}, m0 offen offset:{j*1024} sc1 lds")
    A(f"""
    s_add_u32 m0, m0, 4096
    s_cmp_lt_u32 m0, {32768*4}
    s_cbranch_scc1 L_h_dma
    s_waitcnt vmcnt(32)
    """)
    ST.mark(5)
    A(f"""
    s_cmp_ge_u32 s2, 192
    s_cbranch_scc1 L_h_nod
    s_and_b32 s{sF}, s2, 7
    s_mul_i32 s{sF}, s{sF}, 24
    s_lshr_b32 s{sT}, s2, 3
    s_add_u32 s{sF}, s{sF}, s{sT}
    """)
    srd(sWD, pWD, 1536*1280)
    A(f"s_mul_i32 s{sT}, s{sF}, {8*1280}")
    for n in range(40):
        A(f"buffer_load_dword v{hD+n}, v{vL4}, {wd}, s{sT} offen offset:{(n%15//5)*1280 + 256*(n%5)}")
        if n % 15 == 14: A(f"s_add_u32 s{sT}, s{sT}, {3*1280}")
    A.label("L_h_nod")
    A("s_barrier                                        ; L0")
    A.label("L_h_dma2")
    for j in range(4):
        A(f"buffer_load_dwordx4 v{vL16}, {kvd}, m0 offen offset:{j*1024} sc1 lds")
    A(f"""
    s_add_u32 m0, m0, 4096
    s_cmp_lt_u32 m0, {156*1024}
    s_cbranch_scc1 L_h_dma2
    """)
    for j in range(3):
        A(f"buffer_load_dwordx4 v{vL16}, {kvd}, m0 offen offset:{j*1024} sc1 lds")
    for r2 in range(2):
        A(f"s_mov_b32 m0, {r2*3072}")
        A(f"s_mov_b32 s{sT}, {LDS_IMG + r2*3072}")
        for j in range(3):
            if r2 == 1 and j == 2: A("s_mov_b64 exec, 0xff")
            A(f"buffer_load_dwordx4 v{vL16}, {kvd}, s{sT} offen offset:{j*1024} sc1 lds")
    A(f"""
    s_mov_b64 exec, -1
    """)
    poll(2, [0, 1, 2, 3], "K")
    A(f"""
    s_mov_b32 s{sT}, {(-8192) & 0xffffffff}
    v_add_u32 v{vT+1}, s{sT}, v{hGA}
    buffer_load_dword v{vT+2}, v{vT+1}, {wsd}, 0 offen offset:8 sc1
    v_lshlrev_b32 v{vT}, 3, v{vLane}
    s_mov_b32 s{sT}, {WS_KEY}
    buffer_load_dwordx2 {v(hKey,2)}, v{vT}, {wsd}, s{sT} offen sc1
    s_cmp_lg_u32 s2, 0
    s_cbranch_scc1 L_h_noreset
    v_mov_b32 v{hX+4}, 0
    v_mov_b32 v{hX+5}, 0
    s_mov_b64 exec, 1
    buffer_store_dwordx2 {v(hX+4,2)}, v{hX+4}, {dd}, 0 offen sc1
    s_mov_b64 exec, -1
    """)
    A.label("L_h_noreset")
    A(f"""
    v_mov_b32 v{hX}, -1
    v_mov_b32 v{hX+1}, -1
    v_mov_b32 v{hX+2}, -1
    v_mov_b32 v{hX+3}, -1
    s_mul_i32 s{sT}, s{sTT}, {2*20480}
    s_mul_i32 s{sT2}, s{sHG}, 5120
    s_add_u32 s{sT}, s{sT}, s{sT2}
    s_add_u32 s{sT}, s{sT}, {WS_OF}
    s_waitcnt vmcnt(0)
    v_cmp_ne_u32 vcc, s{sXcc}, v{vT+2}
    s_mov_b32 s{sFast}, 0
    {"s_cbranch_vccnz L_h_mk_slow" if XFAST else "s_branch L_h_mk_slow"}
    s_mov_b32 s{sFast}, 1
    """)
    def markers(fl):
        for tq in range(2):
            for j in range(4):
                A(f"buffer_store_dwordx4 {v(hX,4)}, v{vL16}, {wsd}, s{sT} offen offset:{1024*j}{fl}")
            A(f"s_add_u32 s{sT}, s{sT}, 4096")
            A(f"buffer_store_dwordx4 {v(hX,4)}, v{vL16}, {wsd}, s{sT} offen{fl}")
            A(f"s_add_u32 s{sT}, s{sT}, {20480-4096}")
    markers("")
    A("s_branch L_h_mk_done")
    A.label("L_h_mk_slow")
    markers(" sc1")
    A.label("L_h_mk_done")
    A(f"""
    v_max_u32 v{hKey}, v{hKey}, v{hKey+1}
    s_nop 1
    v_max_u32_dpp v{hKey}, v{hKey}, v{hKey} row_shr:1 row_mask:0xf bank_mask:0xf
    s_nop 1
    v_max_u32_dpp v{hKey}, v{hKey}, v{hKey} row_shr:2 row_mask:0xf bank_mask:0xf
    s_nop 1
    v_max_u32_dpp v{hKey}, v{hKey}, v{hKey} row_shr:4 row_mask:0xf bank_mask:0xf
    s_nop 1
    v_max_u32_dpp v{hKey}, v{hKey}, v{hKey} row_shr:8 row_mask:0xf bank_mask:0xf
    s_nop 1
    v_readlane_b32 s{sKey}, v{hKey}, 15
    v_readlane_b32 s{sT}, v{hKey}, 31
    v_readlane_b32 s{sT2}, v{hKey}, 47
    v_readlane_b32 s{sIdx}, v{hKey}, 63
    s_nop 3
    s_max_u32 s{sKey}, s{sKey}, s{sT}
    s_max_u32 s{sT2}, s{sT2}, s{sIdx}
    s_max_u32 s{sKey}, s{sKey}, s{sT2}
    s_and_b32 s{sIdx}, s{sKey}, 0x7ff
    s_sub_u32 s{sIdx}, 2047, s{sIdx}
    s_lshl_b32 s{sT}, s{sG}, 8
    s_add_u32 s{sT}, s{sT}, {WS_G}
    s_mov_b32 m0, {GL}
    s_nop 0
    buffer_load_dword v{vL4}, {wsd}, s{sT} offen sc1 lds
    s_mul_i32 s{sT}, s{sIdx}, 1280
    s_mov_b32 m0, {XSL}
    s_nop 0
    buffer_load_dwordx4 v{vL16}, {xd}, s{sT} offen lds
    s_mov_b64 exec, 0xffff
    buffer_load_dwordx4 v{vL16}, {xd}, s{sT} offen offset:1024 lds
    s_mov_b64 exec, -1
    """)
    A(f"""
    s_cmp_ge_u32 s2, 192
    s_cbranch_scc1 L_h_noslab
    s_and_b32 s{sF}, s2, 7
    s_mul_i32 s{sF}, s{sF}, 24
    s_lshr_b32 s{sT}, s2, 3
    s_add_u32 s{sF}, s{sF}, s{sT}
    v_mul_u32_u24 v{vT+1}, 3072, v{vLane}
    """)
    srd(sWD, pWG, 640*3072)
    srd(sMD, pWU, 640*3072)
    A(f"""
    s_and_b32 s{sSpin}, s{sF}, 7
    s_mov_b32 s{sH}, 0
    """)
    A.label("L_h_slab")
    A(f"""
    s_lshl_b32 s{sT2}, s{sSpin}, 10
    s_add_u32 m0, s{sT2}, {FST}
    s_mul_i32 s{sT}, s{sSpin}, {64*3072}
    s_lshl_b32 s{sH+1}, s{sF}, 4
    s_add_u32 s{sT}, s{sT}, s{sH+1}
    buffer_load_dwordx4 v{vT+1}, {wd}, s{sT} offen lds
    s_add_u32 m0, s{sT2}, {FST + 10240}
    s_add_u32 s{sSpin}, s{sSpin}, 1
    buffer_load_dwordx4 v{vT+1}, {md}, s{sT} offen lds
    s_cmp_eq_u32 s{sSpin}, 10
    s_cselect_b32 s{sSpin}, 0, s{sSpin}
    s_add_u32 s{sH}, s{sH}, 1
    s_cmp_lt_u32 s{sH}, 10
    s_cbranch_scc1 L_h_slab
    """)
    A.label("L_h_noslab")
    A.label("L_h_l3")
    hP = [vIdx, vAK1, vAK2, vAV, vM]
    for ph in range(5):
        A(f"""
        v_add_u32 v{vT}, {64*ph}, v{vLane}
        v_mul_u32_u24 v{vT+1}, 205, v{vT}
        v_lshrrev_b32 v{vT+1}, 11, v{vT+1}
        v_mul_u32_u24 v{vT+2}, {1280-160}, v{vT+1}
        v_lshl_add_u32 v{hP[ph]}, v{vLane}, 4, v{vT+2}
        """)
    A(f"v_add_u32 v{hP[4]}, 4096, v{hP[4]}")
    srd(sWD, pWO, 640*1280)
    sWs, sWl = sA + 7, sSpin
    A(f"""
    s_mul_i32 s{sWs}, s{sM}, 160
    s_mov_b32 s{sWl}, {WO_L}
    v_lshrrev_b32 v{vT}, 2, v{vTok}
    v_lshl_add_u32 v{vT}, v{vG4}, 3, v{vT}
    v_lshlrev_b32 v{vT}, 4, v{vT}
    v_and_b32 v{vT+1}, 1, v{vLane}
    v_lshl_add_u32 v{vT}, v{vT+1}, 3, v{vT}
    v_bfe_u32 v{vT+1}, v{vLane}, 1, 1
    v_mul_u32_u24 v{vT+1}, 10240, v{vT+1}
    v_add3_u32 v{vGV}, v{vT}, v{vT+1}, 0
    v_add_u32 v{vGV}, {FST}, v{vGV}
    v_lshlrev_b32 v{vAVs}, 4, v{vG4}
    v_add_u32 v{vAVs}, {XSL}, v{vAVs}
    """)
    ST.mark(6)
    A("s_barrier                                        ; L3")
    def wo_dma(lab, end):
        A.label(lab)
        A(f"s_mov_b32 m0, s{sWl}")
        A("s_nop 0")
        for ph in range(4):
            A(f"buffer_load_dwordx4 v{hP[ph]}, {wd}, s{sWs} offen offset:{ph*1024} lds")
        A(f"s_add_u32 m0, s{sWl}, 4096")
        A(f"s_add_u32 s{sWl}, s{sWl}, 5120")
        A(f"buffer_load_dwordx4 v{hP[4]}, {wd}, s{sWs} offen lds")
        A(f"""
        s_add_u32 s{sWs}, s{sWs}, {32*1280}
        s_cmp_lt_u32 s{sWl}, {end}
        s_cbranch_scc1 {lab}
        """)
    if OPF:
        srd(sMD, pOUT, 2048*1280)
        A(f"""
        s_mul_i32 s{sT}, s{sG}, {64*1280}
        v_mul_u32_u24 v{vT+1}, 1280, v{vLane}
        buffer_load_ushort v{hKey}, v{vT+1}, {md}, s{sT} offen
        """)
    wo_dma("L_wo1", WO_L + 11*5120)
    A("s_waitcnt vmcnt(55)")
    publish(3)
    A(f"""
    s_cmp_ge_u32 s2, 192
    s_cbranch_scc1 L_h_ffn_done
    """)
    hF = hX + 32
    hC = hX + 28
    def freads(ks):
        f = hF + 8*(ks % 4)
        A(f"ds_read_b64_tr_b16 {v(f,2)}, v{vGV} offset:{ks*512}")
        A(f"ds_read_b64_tr_b16 {v(f+2,2)}, v{vGV} offset:{ks*512+64}")
        A(f"ds_read_b128 {v(f+4,4)}, v{vAVs} offset:{ks*64}")
    freads(0); freads(1); freads(2)
    for ks in range(20):
        if ks + 3 < 20:
            freads(ks + 3)
            A("s_waitcnt lgkmcnt(9)")
        else:
            A(f"s_waitcnt lgkmcnt({3*(19-ks)})")
        c = "0" if ks == 0 else v(hC, 4)
        f = hF + 8*(ks % 4)
        A(f"v_mfma_f32_16x16x32_bf16 {v(hC,4)}, {v(f,4)}, {v(f+4,4)}, {c}")
    A("s_nop 7")
    gq, uq, tq_ = hX, hX + 4, hX + 8
    for r in range(4):
        A(f"v_mov_b32 v{gq+r}, v{hC+r}")
        A(f"v_mov_b32 v{uq+r}, v{hC+r}")
    A("s_nop 0")
    for r in range(4):
        A(f"v_permlane32_swap_b32 v{gq+r}, v{uq+r}")
    seq = [
        "v_cvt_pk_bf16_f32 v{g}, v{g}, v{u}",
        "v_and_b32 v{u}, 0xffff0000, v{g}",
        "v_lshlrev_b32 v{g}, 16, v{g}",
        "v_mul_f32 v{t}, " + NLOG2E + ", v{g}",
        "v_exp_f32 v{t}, v{t}",
        "v_add_f32 v{t}, 1.0, v{t}",
        "v_rcp_f32 v{t}, v{t}",
        "v_mul_f32 v{g}, v{g}, v{t}",
        "v_cvt_pk_bf16_f32 v{g}, v{g}, v{g}",
        "v_and_b32 v{g}, 0xffff0000, v{g}",
        "v_mul_f32 v{g}, v{g}, v{u}",
        "v_cvt_pk_bf16_f32 v{g}, v{g}, v{g}",
        "v_and_b32 v{g}, 0xffff0000, v{g}",
    ]
    for ins in seq:
        for r in range(4):
            A(ins.format(g=gq+r, u=uq+r, t=tq_+r))
    hY = hX + 16
    for i in range(10):
        A(f"v_mov_b32 v{hY+i}, 0")
    for f in range(8):
        A(f"v_readlane_b32 s{sH+2*f+1}, v{gq + f%4}, {16*(f//4)}")
    A("s_nop 3")
    for f in range(8):
        A(f"s_lshr_b32 s{sH+2*f}, s{sH+2*f+1}, 16")
    A.label("L_h_ffn_done")
    ST.mark(7)
    A("s_barrier                                        ; L5")
    wo_dma("L_wo2", WO_L + 20*5120)
    A(f"""
    s_cmp_ge_u32 s2, 192
    s_cbranch_scc1 L_h_ffn2_done
    """)
    for j in range(8):
        for i in range(5):
            A(f"v_dot2_f32_bf16 v{hY+2*i}, v{hD+5*j+i}, s{sH+2*j}, v{hY+2*i}")
            A(f"v_dot2_f32_bf16 v{hY+2*i+1}, v{hD+5*j+i}, s{sH+2*j+1}, v{hY+2*i+1}")
    A(f"""
    s_and_b32 s{sT}, s2, 7
    s_mul_i32 s{sT}, s{sT}, 2560
    s_add_u32 s{sT}, s{sT}, {WS_Y}
    s_nop 1
    """)
    for i in range(10):
        A(f"buffer_atomic_add_f32 v{hY+i}, v{vL4}, {wsd}, s{sT} offen offset:{256*i} sc1")
    A.label("L_h_ffn2_done")
    hU = hX
    A(f"s_mov_b32 s{sSpin}, 0")
    A.label("L_pollC")
    A(f"""
    buffer_load_dwordx2 {v(hAc,2)}, v{hGA}, {wsd}, 0 offen sc1
    s_add_u32 s{sSpin}, s{sSpin}, 1
    s_cmp_gt_u32 s{sSpin}, {SPIN_MAX}
    s_cbranch_scc1 L_pollC_done
    s_waitcnt vmcnt(0)
    v_cmp_ne_u64 vcc, {v(hAc,2)}, {v(hN,2)}
    s_cbranch_vccnz L_pollC
    """)
    A.label("L_pollC_done")
    A("s_waitcnt vmcnt(0)")
    publish(1)
    A(f"""
    v_mov_b32 v{vT}, {SELA}
    s_and_b32 s{sT2}, s{sIdx}, 63
    s_lshr_b32 s{sT}, s{sIdx}, 6
    s_cmp_eq_u32 s{sT}, s{sG}
    s_cselect_b32 s{sT2}, s{sT2}, -1
    v_mov_b32 v{vT+1}, s{sT2}
    v_mov_b32 v{vT+2}, s{sFast}
    ds_write2_b32 v{vT}, v{vT+1}, v{vT+2} offset0:0 offset1:1
    s_waitcnt lgkmcnt(0)
    """)
    ST.mark(8)
    A(f"""
    s_barrier                                        ; E1
    s_cmp_lg_u32 s{sT}, s{sG}
    s_cbranch_scc1 L_h_end
    s_barrier                                        ; E2
    """)
    poll(1, [0, 1, 2, 3], "B", False)
    A(f"""
    s_and_b32 s{sT}, s{sKey}, 0xfffff800
    s_not_b32 s{sT2}, s{sT}
    s_and_b32 s{sT}, s{sT}, 0x7fffffff
    s_cmp_lt_i32 s{sKey}, 0
    s_cselect_b32 s{sT}, s{sT}, s{sT2}          ; r bits
    v_mov_b32 v{vT+5}, s{sT}
    v_cvt_pk_bf16_f32 v{vT+5}, v{vT+5}, v{vT+5}
    v_and_b32 v{vT+5}, 0xffff0000, v{vT+5}
    v_mul_f32 v{vT+5}, {NLOG2E}, v{vT+5}
    v_exp_f32 v{vT+5}, v{vT+5}
    s_nop 0
    v_add_f32 v{vT+5}, 1.0, v{vT+5}
    v_rcp_f32 v{vT+5}, v{vT+5}
    s_nop 0
    v_cvt_pk_bf16_f32 v{vT+5}, v{vT+5}, v{vT+5}
    v_and_b32 v{vT+5}, 0xffff0000, v{vT+5}
    s_mul_i32 s{sT}, s{sM}, 80
    """)
    for rnd in range(2):
        A(f"""
        v_add_u32 v{vT+2}, s{sT}, v{vLane}
        v_add_u32 v{vT+2}, {64*rnd}, v{vT+2}
        v_min_u32 v{vT+2}, 639, v{vT+2}             ; column
        v_lshrrev_b32 v{vT+3}, 7, v{vT+2}
        v_lshlrev_b32 v{vT+3}, 9, v{vT+3}           ; i*512
        v_and_b32 v{vT+4}, 1, v{vT+2}
        v_lshl_add_u32 v{vT+3}, v{vT+4}, 8, v{vT+3} ; + p*256
        v_and_b32 v{vT+4}, 126, v{vT+2}
        v_lshl_add_u32 v{vT+3}, v{vT+4}, 1, v{vT+3} ; + l*4
        s_mov_b32 s{sT2}, {WS_Y}
        """)
        for rep in range(8):
            A(f"buffer_load_dword v{hU+8*rnd+rep}, v{vT+3}, {wsd}, s{sT2} offen sc1")
            A(f"s_add_u32 s{sT2}, s{sT2}, 2560")
    A("s_waitcnt vmcnt(0)")
    for rnd in range(2):
        y = hU + 8*rnd
        for rep in range(1, 8):
            A(f"v_add_f32 v{y}, v{y}, v{y+rep}")
        A(f"""
        v_cvt_pk_bf16_f32 v{y}, v{y}, v{y}
        v_and_b32 v{y}, 0xffff0000, v{y}
        v_mul_f32 v{y}, v{vT+5}, v{y}
        v_cvt_pk_bf16_f32 v{y}, v{y}, v{y}
        v_and_b32 v{y}, 0xffff0000, v{y}
        """)
    A(f"""
    v_add_u32 v{vT+2}, {SELA+16}, v{vL4}
    ds_write_b32 v{vT+2}, v{hU}
    ds_write_b32 v{vT+2}, v{hU+8} offset:256
    s_waitcnt lgkmcnt(0)
    """)
    ST.mark(9)
    A("s_barrier                                        ; E4")
    A.label("L_h_end")
    ST.dump()
    A("s_endpgm")
    A.label("L_code_end")
    return A.text(), NV

NAME = "gated_mix__grouped_kv_mqa__moe_arch_mod__prompt"
def build(stamp=False):
    b, n = gen(NAME + "_kernel", stamp)
    txt = "; generated by gen/fused.py\n"
    txt += "; @launch grid=(256,1,1) block=(576,1,1) lds=163840\n"
    txt += '.amdgcn_target "amdgcn-amd-amdhsa--gfx950"\n.text\n' + b
    txt += '.section .rodata,"a"\n' + kernel_desc(NAME + "_kernel", n)
    return txt
if __name__ == "__main__":
    import sys
    open(sys.argv[1] if len(sys.argv) > 1 else f"fused13.s", "w").write(build())
```

```python
from asmlib import *
from layout import *
import math, struct
def fbits(x):
    return struct.unpack("<I", struct.pack("<f", x))[0]
NLOG2E = hex(fbits(-math.log2(math.e)))
LDS_IMG = 62 * TILE
WS_FLAG = 0x750000
WS_OF = 0x300000
WK, XT, RING, RG, CNT = 0, 32768, 73728, 155648, 163584
QX = RING + 4*16384
EXA = 2 * TILE
WO_L = EXA + 24576
SELA = 162816
GL = SELA + 528
PFL = GL + 256
PB = [EXA, WO_L + 102400]
PP = 336
SPIN_MAX = 20000
CPF = False
OPF = False
F2A = True
QST = False
QPRE = 2
F1B = True
LST = False
PSA = 0
QP = 328
XFAST = True
FSE = True
LP = 0
CSL = 10
HP = 2
RSL = 4
PSL = 1

def gen(name, stamp=False):
    A = Asm()
    sWSD, sKVD, sXD, sWD, sDD, sMD = 8, 12, 16, 20, 24, 28
    sWave, sG, sM, sTT, sHG, sFid = 32, 33, 34, 35, 36, 37
    sT, sT2 = 38, 39
    pX, pWQ, pWK, pWV, pWO, pWR, pWG, pWU, pWD, pGW, pOUT, pDBG, pWS = 40, 42, 44, 46, 48, 52, 54, 56, 58, 60, 62, 64, 66
    sA = 68
    sLo32 = 4
    sMask = 6
    wsd, kvd, xd, wd, dd, md = (s(x, 4) for x in (sWSD, sKVD, sXD, sWD, sDD, sMD))
    def srd(d, p, size, add=0):
        if add:
            A(f"s_add_u32 s{d}, s{p}, {add}\ns_addc_u32 s{d+1}, s{p+1}, 0")
        else:
            A(f"s_mov_b32 s{d}, s{p}\ns_mov_b32 s{d+1}, s{p+1}")
        A(f"s_mov_b32 s{d+2}, {size}\ns_mov_b32 s{d+3}, 0x00020000")
    R = RegAlloc(1)
    vT = R.alloc("T", 7)
    vQ1 = [R.alloc(f"Q1{i}", 4, 4) for i in range(2)]
    vQ2 = [R.alloc(f"Q2{i}", 2, 2) for i in range(2)]
    vK1 = [R.alloc(f"K1{i}", 4, 4) for i in range(2)]
    vK2 = [R.alloc(f"K2{i}", 2, 2) for i in range(2)]
    vVa = [R.alloc(f"Va{i}", 4, 4) for i in range(2)]
    vVb = [R.alloc(f"Vb{i}", 4, 4) for i in range(2)]
    vS = [R.alloc(f"S{i}", 16, 4) for i in range(4)]
    vO = [R.alloc(f"O{i}", 16, 4) for i in range(2)]
    vIdx = R.alloc("idx"); vLane = R.alloc("lane")
    vAK1 = R.alloc("AK1"); vAK2 = R.alloc("AK2"); vAV = R.alloc("AV")
    vM = R.alloc("M"); vL16 = R.alloc("L16"); vL4 = R.alloc("L4"); vGV = R.alloc("GV")
    vL32 = R.alloc("l32"); vHalf = R.alloc("half"); vTok = R.alloc("tok"); vG4 = R.alloc("g4")
    vAK1s = R.alloc("AK1s"); vAK2s = R.alloc("AK2s"); vAVs = R.alloc("AVs"); vSt = R.alloc("stamp")
    vEXo = R.alloc("EXo"); vEXp = R.alloc("EXp"); vSM = R.alloc("SM"); vSTl = R.alloc("STl")
    vQA = [vM] + [R.alloc(f"QA{i}") for i in range(3)]
    NV = R.next
    BIG = vQ1[0]
    BIGN = vO[1] + 16 - BIG

    A.raw(kernel_header(name))
    class VSt:
        def start(self):
            if stamp: A(f"s_memrealtime s[100:101]\ns_memtime s[94:95]\ns_waitcnt lgkmcnt(0)\nv_mov_b32 v{vSt}, 0\nv_writelane_b32 v{vSt}, s100, 0")
        def mark(self, i):
            if stamp: A(f"s_memtime s[92:93]\ns_waitcnt lgkmcnt(0)\ns_sub_u32 s92, s92, s94\nv_writelane_b32 v{vSt}, s92, {i}")
        def dump(self):
            if stamp:
                A("s_waitcnt vmcnt(0)")
                self.mark(15)
                A(f"""
                s_memrealtime s[92:93]
                s_waitcnt lgkmcnt(0)
                s_sub_u32 s92, s92, s100
                v_writelane_b32 v{vSt}, s92, 1
                s_mul_i32 s92, s2, 9
                s_add_u32 s92, s92, s{sWave}
                s_lshl_b32 s92, s92, 7
                s_add_u32 s92, s92, 0x780000
                s_mov_b64 exec, 0xffffffff
                buffer_store_dword v{vSt}, v{vL4}, {wsd}, s92 offen
                """)
    ST = VSt()
    ST.start()
    A(f"""
    s_cmp_ge_u32 s2, 256
    s_cbranch_scc1 L_end
    s_load_dwordx16 s[40:55], s[0:1], 0
    s_load_dwordx8 s[56:63], s[0:1], 64
    s_load_dwordx4 s[64:67], s[0:1], 96
    v_lshrrev_b32 v{vT}, 6, v0
    v_and_b32 v{vLane}, 63, v0
    v_readfirstlane_b32 s{sWave}, v{vT}
    v_and_b32 v{vL32}, 31, v0
    v_lshrrev_b32 v{vHalf}, 5, v{vLane}
    v_and_b32 v{vTok}, 15, v0
    v_lshrrev_b32 v{vG4}, 4, v{vLane}
    v_lshlrev_b32 v{vL16}, 4, v{vLane}
    v_lshlrev_b32 v{vL4}, 2, v{vLane}
    s_and_b32 s{sG}, s2, 7
    s_lshl_b32 s{sG}, s{sG}, 2
    s_lshr_b32 s{sT}, s2, 6
    s_add_u32 s{sG}, s{sG}, s{sT}             ; group 0..31
    s_bfe_u32 s{sM}, s2, 0x30003
    s_and_b32 s{sT}, s{sM}, 1
    s_lshl_b32 s{sTT}, s{sG}, 1
    s_add_u32 s{sTT}, s{sTT}, s{sT}
    s_lshr_b32 s{sHG}, s{sM}, 1
    s_lshl_b32 s{sFid}, s{sG}, 3
    s_add_u32 s{sFid}, s{sFid}, s{sM}
    s_mov_b32 s{sLo32}, -1
    s_mov_b32 s{sLo32+1}, 0
    s_lshl_b32 s{sT}, s{sWave}, 2
    v_add_u32 v{vT}, s{sT}, v{vG4}
    v_and_b32 v{vT+1}, 15, v{vT}
    v_xor_b32 v{vT+1}, v{vT+1}, v{vTok}
    v_mul_u32_u24 v{vT}, 1280, v{vT}
    v_lshl_add_u32 v{vT}, v{vT+1}, 4, v{vT}
    s_mul_i32 s{sT2}, s{sTT}, {32*1280}
    s_lshl_b32 s{sT}, s{sWave}, 10
    s_waitcnt lgkmcnt(0)
    """)
    srd(sXD, pX, 2048*1280)
    srd(sWSD, pWS, WS_SIZE)
    A(f"""
    s_cmp_ge_u32 s{sHG}, 2
    s_cselect_b32 s{sMD}, s{pWV}, s{pWK}
    s_cselect_b32 s{sMD+1}, s{pWV+1}, s{pWK+1}
    s_mov_b32 s{sMD+2}, 25600
    s_mov_b32 s{sMD+3}, 0x00020000
    s_cmp_eq_u32 s{sWave}, 8
    s_cbranch_scc1 L_helper
    """)
    for cb in range(5):
        A(f"s_add_u32 m0, s{sT}, {XT + cb*8192 - cb*256}")
        A("s_nop 0")
        A(f"buffer_load_dwordx4 v{vT}, {xd}, s{sT2} offen offset:{cb*256} lds")
    A(f"""
    s_lshl_b32 s{sT}, s{sWave}, 11
    s_add_u32 m0, s{sT}, {WK}
    s_nop 0
    buffer_load_dwordx4 v{vL16}, {md}, s{sT} offen lds
    buffer_load_dwordx4 v{vL16}, {md}, s{sT} offen offset:1024 lds
    """)
    sPart, sHl, sStM, sStT, sOFs, sE2, sGs = 81, 82, 83, 84, 85, 86, 87
    sIter, sDelta = 88, 89
    def zinit():
        for q in range(2):
            for i in range(16):
                A(f"v_mov_b32 v{vO[q]+i}, 0")
        for i in range(8, 16):
            A(f"v_mov_b32 v{vS[3]+i}, 0")
    def setup():
        A(f"""
        s_and_b32 s{sPart}, s{sWave}, 1
        v_lshlrev_b32 v{vT+3}, 4, v{vL32}
        v_mul_u32_u24 v{vGV}, 336, v{vHalf}
        v_add_u32 v{vGV}, v{vGV}, v{vT+3}
        v_cmp_lt_u32 vcc, 20, v{vL32}
        v_mov_b32 v{vT+3}, 0x1000000
        s_mul_i32 s{sT2}, s{sPart}, {TILE}
        v_cndmask_b32 v{vGV}, v{vGV}, v{vT+3}, vcc
        v_add_u32 v{vAK1}, s{sT2}, v{vL16}
        v_add_u32 v{vAK2}, s{sT2}, v{vL4}
        v_add_u32 v{vAV}, s{sT2}, v{vGV}
        s_mul_i32 s{sT}, s{sWave}, 40
        s_xor_b32 s{sT2}, s{sWave}, 1
        s_mul_i32 s{sT2}, s{sT2}, 40
        v_mul_u32_u24 v{vT}, {QP}, v{vL32}
        v_add_u32 v{vT}, {QX}, v{vT}
        v_lshl_add_u32 v{vT+1}, v{vHalf}, 4, v{vT}       ; Q1 part
        v_lshl_add_u32 v{vT+2}, v{vHalf}, 2, v{vT}       ; Q2 part
        v_add_u32 v{vQA[0]}, s{sT}, v{vT+1}
        v_add_u32 v{vQA[1]}, s{sT}, v{vT+2}
        v_add_u32 v{vQA[2]}, s{sT2}, v{vT+1}
        v_add_u32 v{vQA[3]}, s{sT2}, v{vT+2}
        v_add_u32 v{vAK1s}, {14*TILE}, v{vAK1}
        v_add_u32 v{vAK2s}, {14*TILE}, v{vAK2}
        v_add_u32 v{vAVs}, {14*TILE}, v{vAV}
        v_mov_b32 v{vIdx}, 0xdddddddd
        s_mul_i32 s{sT}, s{sWave}, 3072
        s_xor_b32 s{sT2}, s{sWave}, 1
        s_mul_i32 s{sT2}, s{sT2}, 3072
        s_add_u32 s{sT}, s{sT}, {EXA}
        s_add_u32 s{sT2}, s{sT2}, {EXA}
        v_add_u32 v{vEXo}, s{sT}, v{vL16}
        v_add_u32 v{vEXp}, s{sT2}, v{vL16}
        s_lshr_b32 s{sHl}, s{sWave}, 2             ; ph
        s_mul_i32 s{sT2}, s{sHl}, 10240
        s_lshr_b32 s{sT}, s{sHG}, 1
        s_mul_i32 s{sT}, s{sT}, 5120
        s_add_u32 s{sT2}, s{sT2}, s{sT}
        s_and_b32 s{sT}, s{sHG}, 1
        s_lshl_b32 s{sT}, s{sT}, 2
        s_and_b32 s{sGs}, s{sWave}, 3
        s_add_u32 s{sT}, s{sT}, s{sGs}
        s_lshl_b32 s{sStM}, s{sT}, 9
        s_add_u32 s{sStM}, s{sStM}, s{sT2}
        s_lshr_b32 s{sT}, s{sT}, 1
        s_lshl_b32 s{sT}, s{sT}, 8
        s_add_u32 s{sStT}, s{sT2}, s{sT}
        s_lshl_b32 s{sT}, s{sPart}, 3
        s_add_u32 s{sStT}, s{sStT}, s{sT}
        s_add_u32 s{sStT}, s{sStT}, 4096
        s_mul_i32 s{sGs}, s{sHl}, 3
        s_mul_i32 s{sT}, s{sTT}, {2*20480}
        s_add_u32 s{sT}, s{sT}, {WS_OF}
        s_add_u32 s{sStM}, s{sStM}, s{sT}
        s_add_u32 s{sStT}, s{sStT}, s{sT}
        v_lshrrev_b32 v{vSTl}, 4, v{vL32}
        v_mul_u32_u24 v{vSTl}, 20480, v{vSTl}
        v_lshl_add_u32 v{vSTl}, v{vTok}, 4, v{vSTl}
        v_lshl_add_u32 v{vSM}, v{vHalf}, 8, v{vSTl}
        s_and_b32 s{sT}, s{sWave}, 3
        s_lshl_b32 s{sT2}, s{sG}, 2
        s_add_u32 s{sT2}, s{sT2}, s{sT}
        s_mul_i32 s{sOFs}, s{sT2}, 20480
        s_mul_i32 s{sT}, s{sGs}, 5120
        s_add_u32 s{sOFs}, s{sOFs}, s{sT}
        s_add_u32 s{sOFs}, s{sOFs}, {WS_OF}
        s_lshl_b32 s{sT}, s{sG}, 3
        s_add_u32 s{sT}, s{sT}, s{sWave}
        s_mul_i32 s{sE2}, s{sT}, {8*1280}
        s_mul_i32 s{sT2}, s{sM}, 160
        s_add_u32 s{sE2}, s{sE2}, s{sT2}
        s_mov_b32 s{sIter}, 0
        """)
        srd(sDD, pOUT, 2048*1280)
    A(f"""
    s_cmp_eq_u32 s{sWave}, 4
    s_cbranch_scc1 L_rgw
    s_sub_u32 s{sT}, s{sWave}, 5
    s_cmp_lt_u32 s{sT}, 2
    s_cbranch_scc1 L_kvw
    """)

    vXA = BIG
    vTRA = BIG + 8; vSRC = BIG + 10
    vAcc = BIG + 16
    sB, sDl, sRing, sSo, sQc = sA, sA + 5, sA + 10, sA + 11, sA + 12
    srd(sWD, pWQ, 640*1280)
    A(f"""
    ; cb0 = ((id>>6)*2 + (m&1)) % 5
    s_lshr_b32 s{sT}, s2, 6
    s_lshl_b32 s{sT}, s{sT}, 1
    s_and_b32 s{sT2}, s{sM}, 1
    s_add_u32 s{sT}, s{sT}, s{sT2}
    s_sub_u32 s{sT2}, s{sT}, 5
    s_cmp_ge_u32 s{sT}, 5
    s_cselect_b32 s{sT}, s{sT2}, s{sT}
    s_min_u32 s{sRing}, s{sWave}, 4
    s_lshl_b32 s{sRing}, s{sRing}, 14
    s_add_u32 s{sRing}, s{sRing}, {RING}
    s_lshl_b32 s{sDl}, s{sT}, 13
    s_add_u32 s{sDl}, s{sDl}, {XT}
    s_and_b32 s{sQc}, s{sHG}, 1
    s_cmp_eq_u32 s{sWave}, 7
    s_cbranch_scc1 L_qn
    """)
    cq = math.log2(math.e) / math.sqrt(20.0)
    def qproj(wide):
        if wide:
            vFR = [BIG + 48 + 24*i for i in range(3)]
            A(f"""
            s_lshl_b32 s{sQc}, s{sQc}, 6
            s_lshr_b32 s{sT2}, s{sWave}, 1
            s_lshl_b32 s{sT2}, s{sT2}, 7
            s_add_u32 s{sQc}, s{sQc}, s{sT2}
            s_mul_i32 s{sSo}, s{sHG}, 320
            s_add_u32 s{sSo}, s{sSo}, s{sQc}
            s_and_b32 s{sT2}, s{sWave}, 1
            s_mul_i32 s{sB}, s{sT2}, 81920
            s_add_u32 s{sSo}, s{sSo}, s{sB}
            s_lshl_b32 s{sT2}, s{sT2}, 6
            s_add_u32 s{sQc}, s{sQc}, s{sT2}
            v_lshrrev_b32 v{vSRC}, 3, v{vLane}
            v_mul_u32_u24 v{vSRC}, 1280, v{vSRC}
            v_and_b32 v{vT+1}, 7, v{vLane}
            v_and_b32 v{vT+2}, 1, v{vG4}
            v_lshlrev_b32 v{vT+2}, 2, v{vT+2}
            v_xor_b32 v{vT+1}, v{vT+1}, v{vT+2}
            v_lshl_add_u32 v{vSRC}, v{vT+1}, 4, v{vSRC}
            """)
            step, half = 8*1280 - 1024, 40960
        else:
            vFR = [BIG + 32 + 32*i for i in range(3)]
            A(f"""
            s_xor_b32 s{sQc}, s{sQc}, 1
            s_lshl_b32 s{sQc}, s{sQc}, 8
            s_mul_i32 s{sSo}, s{sHG}, 320
            s_add_u32 s{sSo}, s{sSo}, s{sQc}
            v_lshrrev_b32 v{vSRC}, 2, v{vLane}
            v_mul_u32_u24 v{vSRC}, 1280, v{vSRC}
            v_and_b32 v{vT+1}, 3, v{vLane}
            v_lshl_add_u32 v{vSRC}, v{vT+1}, 4, v{vSRC}
            """)
            step, half = 16*1280 - 1024, 81920
        assert vFR[2] + (24 if wide else 32) <= BIG + BIGN
        for k in range(1, 4):
            A(f"v_add_u32 v{vSRC+k}, {k*step}, v{vSRC}")
        A(f"s_mov_b32 s{sT2}, 8192")
        for b in range(5):
            A(f"s_mul_i32 s{sB+b}, s{sT}, {128*1280}")
            A(f"s_add_u32 s{sB+b}, s{sB+b}, s{sSo}")
            if b < 4:
                A(f"""
                s_add_u32 s{sT}, s{sT}, 1
                s_cmp_eq_u32 s{sT}, 5
                s_cselect_b32 s{sT}, 0, s{sT}
                s_cselect_b32 s{sDl+b+1}, {(-32768) & 0xffffffff}, s{sT2}
                """)
        def qdma(j):
            A(f"s_add_u32 m0, s{sRing}, {(j % 4)*4096}")
            A(f"s_add_u32 s{sSo}, s{sB + j//2}, {(j % 2)*half}")
            for st in range(4):
                A(f"buffer_load_dwordx4 v{vSRC+st}, {wd}, s{sSo} offen offset:{st*1024} lds")
        A("s_barrier                                        ; F0")
        for j in range(QPRE): qdma(j)
        A(f"""
        v_and_b32 v{vT+1}, 15, v{vL32}
        v_lshlrev_b32 v{vT+2}, 8, v{vL32}
        v_add_u32 v{vT+2}, s{sDl}, v{vT+2}
        """)
        if wide:
            A(f"""
            s_and_b32 s{sT2}, s{sWave}, 1
            s_lshl_b32 s{sT}, s{sT2}, 3
            v_add_u32 v{vT+4}, s{sT}, v{vHalf}
            s_lshl_b32 s{sT2}, s{sT2}, 6
            """)
            for st in range(4):
                A(f"v_add_u32 v{vT+3}, {2*st}, v{vT+4}")
                A(f"v_xor_b32 v{vT+3}, v{vT+3}, v{vT+1}")
                A(f"v_lshl_add_u32 v{vXA+st}, v{vT+3}, 4, v{vT+2}")
            A(f"""
            ; tr addr: (8*(G/2) + r)*128 + ((kh*64 + (G%2)*32 + (i%4)*8) ^ (64*(r>>1)))
            v_lshrrev_b32 v{vT+1}, 2, v{vTok}
            v_lshl_add_u32 v{vT+1}, v{vHalf}, 3, v{vT+1}
            v_lshlrev_b32 v{vT+1}, 7, v{vT+1}
            v_and_b32 v{vT+2}, 1, v{vG4}
            v_lshl_add_u32 v{vT+1}, v{vT+2}, 5, v{vT+1}
            v_and_b32 v{vT+2}, 3, v{vLane}
            v_lshl_add_u32 v{vT+1}, v{vT+2}, 3, v{vT+1}
            v_lshrrev_b32 v{vT+2}, 3, v{vTok}
            v_lshl_add_u32 v{vT+1}, v{vT+2}, 6, v{vT+1}
            v_xor_b32 v{vT+1}, s{sT2}, v{vT+1}
            v_add_u32 v{vTRA}, s{sRing}, v{vT+1}
            v_xor_b32 v{vTRA+1}, 64, v{vTRA}
            """)
        else:
            for st in range(8):
                A(f"v_add_u32 v{vT+3}, {2*st}, v{vHalf}")
                A(f"v_xor_b32 v{vT+3}, v{vT+3}, v{vT+1}")
                A(f"v_lshl_add_u32 v{vXA+st}, v{vT+3}, 4, v{vT+2}")
            A(f"""
            v_lshrrev_b32 v{vT+1}, 2, v{vTok}
            v_lshl_add_u32 v{vT+1}, v{vHalf}, 3, v{vT+1}
            v_lshlrev_b32 v{vT+1}, 6, v{vT+1}
            v_and_b32 v{vT+2}, 1, v{vG4}
            v_lshl_add_u32 v{vT+1}, v{vT+2}, 5, v{vT+1}
            v_and_b32 v{vT+2}, 3, v{vLane}
            v_lshl_add_u32 v{vT+1}, v{vT+2}, 3, v{vT+1}
            v_add_u32 v{vTRA}, s{sRing}, v{vT+1}
            """)
        setup()
        A(f"""
        v_mov_b32 v{vT+5}, {CNT}
        v_mov_b32 v{vT+6}, 256
        s_waitcnt vmcnt({4*QPRE})
        s_barrier                                        ; F1
        """)
        ST.mark(2)
        if F1B: A("s_barrier")
        for j in range(QPRE, 4): qdma(j)
        def qreads(j, st):
            if wide:
                t, tl = st // 2, st % 2
                f = vFR[j % 3] + 12*t
                if tl == 0:
                    xa = vXA + (j % 2)*2 + t
                    if j >= 2: A(f"v_add_u32 v{xa}, s{sDl + j//2}, v{xa}")
                    A(f"ds_read_b128 {v(f+8,4)}, v{xa}")
                A(f"ds_read_b64_tr_b16 {v(f+4*tl,2)}, v{vTRA+tl} offset:{(j%4)*4096 + t*2048}")
                A(f"ds_read_b64_tr_b16 {v(f+4*tl+2,2)}, v{vTRA+tl} offset:{(j%4)*4096 + t*2048 + 512}")
            else:
                f = vFR[j % 3] + 8*st
                xa = vXA + (j % 2)*4 + st
                if j >= 2: A(f"v_add_u32 v{xa}, s{sDl + j//2}, v{xa}")
                A(f"ds_read_b64_tr_b16 {v(f,2)}, v{vTRA} offset:{(j%4)*4096 + st*1024}")
                A(f"ds_read_b64_tr_b16 {v(f+2,2)}, v{vTRA} offset:{(j%4)*4096 + st*1024 + 256}")
                A(f"ds_read_b128 {v(f+4,4)}, v{xa}")
        nr = 10 if wide else 12
        A("s_waitcnt vmcnt(12)")
        for st in range(4): qreads(0, st)
        A("s_waitcnt vmcnt(8)")
        for st in range(4): qreads(1, st)
        for j in range(10):
            if QST and j in (1, 3, 5, 8): ST.mark(11 + (1, 3, 5, 8).index(j))
            A(f"s_waitcnt lgkmcnt({nr if j < 9 else 0})")
            if j + 4 < 10: qdma(j + 4)
            if j == 5:
                A(f"s_mov_b64 exec, 1\nds_add_u32 v{vT+5}, v{vT+6}\ns_mov_b64 exec, -1")
            if j + 2 < 10:
                A(f"s_waitcnt vmcnt({4*(min(10, j+5) - (j+3))})")
            for st in range(4):
                if wide:
                    t, tl = st // 2, st % 2
                    f = vFR[j % 3] + 12*t
                    acc = vAcc + 16*tl
                    c = "0" if (j == 0 and t == 0) else v(acc, 16)
                    A(f"v_mfma_f32_32x32x16_bf16 {v(acc,16)}, {v(f+4*tl,4)}, {v(f+8,4)}, {c}")
                else:
                    f = vFR[j % 3] + 8*st
                    c = "0" if (j == 0 and st == 0) else v(vAcc, 16)
                    A(f"v_mfma_f32_32x32x16_bf16 {v(vAcc,16)}, {v(f,4)}, {v(f+4,4)}, {c}")
                if j + 2 < 10: qreads(j + 2, st)
        o = vFR[1]
        A(f"""
        s_mov_b32 s{sT}, {hex(fbits(cq))}
        v_mul_u32_u24 v{vT}, {QP}, v{vL32}
        v_lshl_add_u32 v{vT}, v{vHalf}, 3, v{vT}
        s_add_u32 s{sT2}, s{sQc}, {QX}
        v_add_u32 v{vT}, s{sT2}, v{vT}
        v_add_u32 v{vT+1}, s{sRing}, v{vL16}
        s_xor_b32 s{sT2}, s{sWave}, 1
        s_lshl_b32 s{sT2}, s{sT2}, 14
        s_add_u32 s{sT2}, s{sT2}, {RING}
        v_add_u32 v{vT+2}, s{sT2}, v{vL16}
        s_nop 2
        """)
        if wide:
            for k in range(4):
                A(f"ds_write_b128 v{vT+1}, {v(vAcc+16+4*k,4)} offset:{1024*k}")
            ST.mark(3)
            zinit()
            A("s_waitcnt lgkmcnt(0)")
            A("s_barrier                                        ; F2a")
            for k in range(4):
                A(f"ds_read_b128 {v(vAcc+16+4*k,4)}, v{vT+2} offset:{1024*k}")
            for k in range(4):
                A(f"s_waitcnt lgkmcnt({3-k})")
                for r in range(4):
                    A(f"v_add_f32 v{vAcc+4*k+r}, v{vAcc+4*k+r}, v{vAcc+16+4*k+r}")
        for i in range(16):
            A(f"v_mul_f32 v{vAcc+i}, s{sT}, v{vAcc+i}")
        for a in range(4):
            A(f"v_cvt_pk_bf16_f32 v{o+2*a}, v{vAcc+4*a}, v{vAcc+4*a+1}")
            A(f"v_cvt_pk_bf16_f32 v{o+2*a+1}, v{vAcc+4*a+2}, v{vAcc+4*a+3}")
            A(f"ds_write_b64 v{vT}, {v(o+2*a,2)} offset:{16*a}")
        A("s_branch L_f2" if wide else "s_branch L_f2a")
    qproj(True)
    A.label("L_qn")
    A("s_setprio 1")
    qproj(False)

    A.label("L_kvw")
    A("s_setprio 3")
    A("s_barrier                                        ; F0")
    vXB = BIG
    vTE = BIG + 8
    vAc2 = BIG + 12
    vF = BIG + 20
    A(f"""
    s_and_b32 s{sT}, s{sHG}, 1
    s_lshl_b32 s{sT}, s{sT}, 12
    s_add_u32 s{sT}, s{sT}, {XT}
    v_lshlrev_b32 v{vT+2}, 8, v{vTok}
    v_add_u32 v{vT+2}, s{sT}, v{vT+2}
    """)
    for k in range(4):
        A(f"v_add_u32 v{vT+3}, {4*k}, v{vG4}")
        A(f"v_xor_b32 v{vT+3}, v{vT+3}, v{vTok}")
        A(f"v_lshl_add_u32 v{vXB+k}, v{vT+3}, 4, v{vT+2}")
    A(f"""
    v_lshrrev_b32 v{vT}, 2, v{vTok}
    v_lshl_add_u32 v{vT}, v{vG4}, 3, v{vT}
    v_mul_u32_u24 v{vT}, 40, v{vT}
    v_and_b32 v{vT+1}, 3, v{vLane}
    v_lshl_add_u32 v{vT}, v{vT+1}, 3, v{vT}
    s_sub_u32 s{sT}, s{sWave}, 5
    s_lshl_b32 s{sT}, s{sT}, 5
    s_add_u32 s{sT}, s{sT}, {WK}
    v_add_u32 v{vTE}, s{sT}, v{vT}
    """)
    setup()
    A(f"""
    s_waitcnt vmcnt(0)
    s_barrier                                        ; F1
    """)
    ST.mark(2)
    def kv_reads(bt):
        for j in range(5):
            ks = 5*bt + j
            f = vF + (bt % 2)*40 + 8*j
            A(f"ds_read_b64_tr_b16 {v(f,2)}, v{vTE} offset:{ks*1280}")
            A(f"ds_read_b64_tr_b16 {v(f+2,2)}, v{vTE} offset:{ks*1280+160}")
            A(f"ds_read_b128 {v(f+4,4)}, v{vXB + ks%4} offset:{(ks//4)*8192}")
    def kv_main(isV):
        kv_reads(0)
        for bt in range(4):
            A("s_waitcnt lgkmcnt(0)")
            if bt < 3: kv_reads(bt + 1)
            for j in range(5):
                f = vF + (bt % 2)*40 + 8*j
                a, b = (v(f+4,4), v(f,4)) if isV else (v(f,4), v(f+4,4))
                c = "0" if (bt == 0 and j == 0) else v(vAc2, 4)
                A(f"v_mfma_f32_16x16x32_bf16 {v(vAc2,4)}, {a}, {b}, {c}")
    A(f"""
    s_mul_i32 s{sA}, s{sTT}, {TILE}
    s_add_u32 s{sA}, s{sA}, {WS_KV}
    s_and_b32 s{sA+1}, s{sHG}, 1                     ; th
    s_cmp_ge_u32 s{sHG}, 2
    s_cbranch_scc1 L_vw
    """)
    kv_main(False)
    A(f"""
    s_lshl_b32 s{sT2}, s{sA+1}, 4
    v_add_u32 v{vT}, s{sT2}, v{vTok}              ; kk
    v_lshl_add_u32 v{vT+2}, v{vHalf}, 5, v{vT}
    v_lshlrev_b32 v{vT+2}, 4, v{vT+2}
    v_and_b32 v{vT+1}, 1, v{vG4}
    v_lshl_add_u32 v{vT+2}, v{vT+1}, 3, v{vT+2}   ; K1 offset
    v_lshlrev_b32 v{vT+3}, 2, v{vT}               ; K2 offset
    s_nop 1
    v_cvt_pk_bf16_f32 v{vF}, v{vAc2}, v{vAc2+1}
    v_cvt_pk_bf16_f32 v{vF+1}, v{vAc2+2}, v{vAc2+3}
    s_cmp_eq_u32 s{sWave}, 6
    s_cbranch_scc1 L_k2
    buffer_store_dwordx2 {v(vF,2)}, v{vT+2}, {wsd}, s{sA} offen sc1
    s_branch L_pub
    """)
    A.label("L_k2")
    A(f"""
    s_mov_b64 exec, 0xffff
    buffer_store_dword v{vF}, v{vT+3}, {wsd}, s{sA} offen offset:{OFF_K2} sc1
    buffer_store_dword v{vF+1}, v{vT+3}, {wsd}, s{sA} offen offset:{OFF_K2+128} sc1
    s_mov_b64 exec, -1
    s_branch L_pub
    """)
    A.label("L_vw")
    kv_main(True)
    A(f"""
    s_mul_i32 s{sT2}, s{sA+1}, 672
    s_add_u32 s{sA}, s{sA}, s{sT2}
    v_mul_u32_u24 v{vT+2}, 336, v{vHalf}
    v_lshl_add_u32 v{vT+2}, v{vTok}, 4, v{vT+2}
    v_and_b32 v{vT+1}, 1, v{vG4}
    v_lshl_add_u32 v{vT+2}, v{vT+1}, 3, v{vT+2}   ; ha*336 + dv*16 + (g%2)*8
    v_mov_b32 v{vT+4}, 0x3f803f80
    v_cmp_eq_u32 vcc, 4, v{vTok}
    v_cvt_pk_bf16_f32 v{vF}, v{vAc2}, v{vAc2+1}
    v_cvt_pk_bf16_f32 v{vF+1}, v{vAc2+2}, v{vAc2+3}
    s_cmp_eq_u32 s{sWave}, 6
    s_cbranch_scc1 L_v2
    buffer_store_dwordx2 {v(vF,2)}, v{vT+2}, {wsd}, s{sA} offen offset:{OFF_VA} sc1
    s_branch L_pub
    """)
    A.label("L_v2")
    A(f"""
    v_cndmask_b32 v{vF}, v{vF}, v{vT+4}, vcc
    v_cndmask_b32 v{vF+1}, v{vF+1}, v{vT+4}, vcc
    v_cmp_gt_u32 vcc, 5, v{vTok}
    s_and_saveexec_b64 s[{sMask}:{sMask+1}], vcc
    buffer_store_dwordx2 {v(vF,2)}, v{vT+2}, {wsd}, s{sA} offen offset:{OFF_VA+256} sc1
    s_mov_b64 exec, -1
    s_branch L_pub
    """)
    A.label("L_rgw")
    if CPF:
        A(f"""
        s_getpc_b64 s[{sA}:{sA+1}]
        """)
        A.label("L_pc")
        A(f"""
        s_sub_u32 s{sA}, s{sA}, L_pc-{name}
        s_subb_u32 s{sA+1}, s{sA+1}, 0
        s_lshr_b32 s{sT}, s2, 3
        s_lshl_b32 s{sT}, s{sT}, 10
        v_add_u32 v{vT+5}, s{sT}, v{vL16}
        v_min_u32 v{vT+5}, L_code_end-{name}-16, v{vT+5}
        global_load_dwordx4 {v(BIG+120,4)}, v{vT+5}, s[{sA}:{sA+1}]
        """)
    A(f"""
    s_cmp_lg_u32 s{sHG}, 0
    s_cbranch_scc1 L_rg_none
    """)
    for (p, off) in ((pWR, 0), (pGW, 2048)):
        srd(sMD, p, 1280)
        for h in range(2):
            A(f"s_mov_b32 m0, {RG + off}")
            A("s_nop 0")
            A(f"buffer_load_dwordx4 v{vL16}, {md}, 0 offen offset:{1024*h} lds")
    A("s_barrier                                        ; F0")
    A(f"v_lshlrev_b32 v{vT+2}, 8, v{vTok}")
    A(f"v_add_u32 v{vT+2}, {XT}, v{vT+2}")
    for k in range(4):
        A(f"v_add_u32 v{vT+3}, {4*k}, v{vG4}")
        A(f"v_xor_b32 v{vT+3}, v{vT+3}, v{vTok}")
        A(f"v_lshl_add_u32 v{vXB+k}, v{vT+3}, 4, v{vT+2}")
    A(f"""
    v_cmp_eq_u32 vcc, 1, v{vTok}
    v_mov_b32 v{vT}, {RG}
    v_mov_b32 v{vT+1}, {RG+2048}
    v_cndmask_b32 v{vT}, v{vT}, v{vT+1}, vcc
    v_lshl_add_u32 v{vTE}, v{vG4}, 4, v{vT}
    """)
    setup()
    A(f"""
    s_waitcnt vmcnt(0)
    s_barrier                                        ; F1
    """)
    ST.mark(2)
    if F1B: A("s_barrier                                        ; F1b")
    def rg_reads(bt):
        for j in range(4):
            ks = 4*bt + j
            f = vF + (bt % 2)*48 + 12*j
            A(f"ds_read_b128 {v(f,4)}, v{vTE} offset:{ks*64}")
            A(f"ds_read_b128 {v(f+4,4)}, v{vXB + j} offset:{bt*8192}")
            A(f"ds_read_b128 {v(f+8,4)}, v{vXB + j} offset:{bt*8192+4096}")
    rg_reads(0)
    for bt in range(5):
        A("s_waitcnt lgkmcnt(0)")
        if bt < 4: rg_reads(bt + 1)
        for j in range(4):
            f = vF + (bt % 2)*48 + 12*j
            for h in range(2):
                c = "0" if (bt == 0 and j == 0) else v(vAc2+4*h, 4)
                A(f"v_mfma_f32_16x16x32_bf16 {v(vAc2+4*h,4)}, {v(f,4)}, {v(f+4+4*h,4)}, {c}")
    A(f"""
    s_lshl_b32 s{sT}, s{sTT}, 5
    v_add_u32 v{vT}, s{sT}, v{vTok}
    v_sub_u32 v{vT+1}, 2047, v{vT}
    v_lshlrev_b32 v{vT}, 2, v{vT}
    s_mov_b32 s{sT2}, {WS_G}
    s_lshl_b32 s{sT}, s{sTT}, 3
    s_add_u32 s{sT}, s{sT}, {WS_KEY}
    v_mov_b32 v{vT+4}, 0
    s_nop 1
    """)
    for h in range(2):
        r = vAc2 + 4*h; gl = r + 1; k = vT + 2; g = vT + 3
        A(f"""
        v_ashrrev_i32 v{k}, 31, v{r}
        v_or_b32 v{k}, 0x80000000, v{k}
        v_xor_b32 v{k}, v{k}, v{r}
        v_and_b32 v{k}, 0xfffff800, v{k}
        v_or_b32 v{k}, v{k}, v{vT+1}
        v_cvt_pk_bf16_f32 v{g}, v{gl}, v{gl}
        v_subrev_u32 v{vT+1}, 16, v{vT+1}
        v_max_u32_dpp v{k}, v{k}, v{k} row_shr:1 row_mask:0xf bank_mask:0xf
        v_and_b32 v{g}, 0xffff0000, v{g}
        v_mul_f32 v{g}, {NLOG2E}, v{g}
        v_max_u32_dpp v{k}, v{k}, v{k} row_shr:2 row_mask:0xf bank_mask:0xf
        v_exp_f32 v{g}, v{g}
        s_nop 0
        v_max_u32_dpp v{k}, v{k}, v{k} row_shr:4 row_mask:0xf bank_mask:0xf
        v_add_f32 v{g}, 1.0, v{g}
        v_rcp_f32 v{g}, v{g}
        v_max_u32_dpp v{k}, v{k}, v{k} row_shr:8 row_mask:0xf bank_mask:0xf
        v_cvt_pk_bf16_f32 v{g}, v{g}, v{g}
        v_and_b32 v{g}, 0xffff0000, v{g}
        s_mov_b64 exec, 0xffff
        buffer_store_dword v{g}, v{vT}, {wsd}, s{sT2} offen offset:{64*h} sc1
        s_mov_b64 exec, 0x8000
        buffer_store_dword v{k}, v{vT+4}, {wsd}, s{sT} offen offset:{4*h} sc1
        s_mov_b64 exec, -1
        """)
    A("s_waitcnt vmcnt(0)\ns_setprio 0\ns_branch L_f2a")
    A.label("L_pub")
    A(f"""
    {"s_barrier" if F1B else ""}
    v_mov_b32 v{vT}, {CNT}
    v_mov_b32 v{vT+1}, 1
    s_waitcnt vmcnt(0)
    s_mov_b64 exec, 1
    ds_add_u32 v{vT}, v{vT+1}
    s_mov_b64 exec, -1
    s_setprio 0
    s_branch L_f2a
    """)
    A.label("L_rg_none")
    A("s_barrier                                        ; F0")
    setup()
    A(f"""
    s_waitcnt vmcnt(0)
    s_barrier                                        ; F1
    {"s_barrier" if F1B else ""}
    """)
    ST.mark(2)

    A.label("L_f2a")
    A("s_setprio 0")
    ST.mark(3)
    zinit()
    A("s_barrier                                        ; F2a")
    A.label("L_f2")
    A(f"""
    s_waitcnt lgkmcnt(0)
    s_barrier
    """)
    ST.mark(4)
    if LP: A(f"s_setprio {LP}")
    A(f"""
    ds_read2_b64 {v(vQ1[0],4)}, v{vQA[0]} offset0:0 offset1:1
    ds_read_b32 v{vQ2[0]}, v{vQA[1]} offset:32
    ds_read_b128 {v(vVa[1],4)}, v{vL16} offset:{OFF_K1}
    ds_read_b32 v{vVb[1]}, v{vL4} offset:{OFF_K2}
    ds_read2_b64 {v(vQ1[1],4)}, v{vQA[2]} offset0:0 offset1:1
    ds_read_b32 v{vQ2[1]}, v{vQA[3]} offset:32
    ds_read_b128 {v(vK1[0],4)}, v{vAK1} offset:{OFF_K1}
    ds_read_b32 v{vK2[0]}, v{vAK2} offset:{OFF_K2}
    ds_read_b128 {v(vVa[0],4)}, v{vAV} offset:{OFF_VA}
    ds_read_b128 {v(vVb[0],4)}, v{vAV} offset:{OFF_VB}
    ds_read_b128 {v(vK1[1],4)}, v{vAK1} offset:{2*TILE+OFF_K1}
    ds_read_b32 v{vK2[1]}, v{vAK2} offset:{2*TILE+OFF_K2}
    v_mov_b32 v{vVb[1]+1}, 0
    v_mov_b32 v{vQ2[0]+1}, 0
    v_mov_b32 v{vQ2[1]+1}, 0
    v_mov_b32 v{vK2[0]+1}, 0x3f803f80
    v_mov_b32 v{vK2[1]+1}, 0x3f803f80
    """)
    def qk(dst, k1, k2, q):
        return (f"v_mfma_f32_32x32x8_bf16 {v(dst,16)}, {v(k2,2)}, {v(vQ2[q],2)}, 0",
                f"v_mfma_f32_32x32x16_bf16 {v(dst,16)}, {v(k1,4)}, {v(vQ1[q],4)}, {v(dst,16)}")
    def set_m(m, q, t, exact):
        A(f"""
        v_mov_b32 v{t}, v{m}
        s_nop 1
        v_permlane32_swap_b32 v{m}, v{t}
        s_nop 1
        v_max_f32 v{m}, v{m}, v{t}
        v_xor_b32 v{m}, 0x80000000, v{m}
        """)
        if exact:
            A(f"""
            v_and_b32 v{t}, 0xffff0000, v{m}         ; hi
            v_sub_f32 v{t+1}, v{m}, v{t}             ; r1
            v_and_b32 v{t+2}, 0xffff0000, v{t+1}     ; mid
            v_sub_f32 v{t+1}, v{t+1}, v{t+2}         ; r2
            v_lshrrev_b32 v{t}, 16, v{t}
            v_or_b32 v{t}, v{t}, v{t+2}
            v_lshrrev_b32 v{t+1}, 16, v{t+1}
            v_cndmask_b32 v{vQ2[q]+1}, v{t+1}, v{t}, s[{sLo32}:{sLo32+1}]
            """)
        else:
            A(f"""
            v_lshrrev_b32 v{t}, 16, v{m}
            v_cndmask_b32 v{vQ2[q]+1}, 0, v{t}, s[{sLo32}:{sLo32+1}]
            """)
    def tile_max(m, S_, init):
        if init:
            A(f"v_max3_f32 v{m}, v{S_}, v{S_+1}, v{S_+2}")
            for i in range(3, 15, 2):
                A(f"v_max3_f32 v{m}, v{m}, v{S_+i}, v{S_+i+1}")
            A(f"v_max_f32 v{m}, v{m}, v{S_+15}")
        else:
            for i in range(0, 16, 2):
                A(f"v_max3_f32 v{m}, v{m}, v{S_+i}, v{S_+i+1}")
    A("s_waitcnt lgkmcnt(8)")
    a, b = qk(vS[1], vVa[1], vVb[1], 0); A(a); A(b)
    A("s_waitcnt lgkmcnt(6)")
    a, b = qk(vS[2], vVa[1], vVb[1], 1); A(a); A(b)
    A("s_nop 8")
    tile_max(vM, vS[1], True)
    set_m(vM, 0, vT, False)
    A(f"s_mov_b32 s{sT2}, {16*TILE}")
    A("s_waitcnt lgkmcnt(4)")
    a, b = qk(vS[0], vK1[0], vK2[0], 0); A(a); A(b)
    tile_max(vM, vS[2], True)
    set_m(vM, 1, vT, False)
    for i in range(4):
        A(f"v_mov_b32 v{vVb[1]+i}, 0")
    ST.mark(5)
    A.raw(".p2align 6")
    A.label("L_loop")
    for u in range(16):
        i, q = u // 2, u % 2
        X = vS[u % 4]; Y = vS[(u + 1) % 4]; Z = vS[(u - 1) % 4]
        inx, qn = (u + 1) // 2, (u + 1) % 2
        ip, qp = (u - 1) // 2, (u - 1) % 2
        e = lambda k: A(f"v_exp_f32 v{X+k}, v{X+k}")
        a, b = qk(Y, vK1[inx % 2], vK2[inx % 2], qn)
        if q == 0:
            av, o = (vAVs, 0) if u == 12 else (vAV, (2*i+2)*TILE)
            r1 = f"ds_read_b128 {v(vVb[(i+1)%2],4)}, v{av} offset:{o+OFF_VB}"
            r2 = f"ds_read_b128 {v(vVa[(i+1)%2],4)}, v{av} offset:{o+OFF_VA}"
        else:
            a1, a2, o = (vAK1s, vAK2s, 0) if u == 11 else (vAK1, vAK2, (2*i+4)*TILE)
            r1 = f"ds_read_b128 {v(vK1[i%2],4)}, v{a1} offset:{o+OFF_K1}"
            r2 = f"ds_read_b32 v{vK2[i%2]}, v{a2} offset:{o+OFF_K2}"
        e(0); e(1); A(a); e(2); e(3); e(4); e(5); A(b)
        if u == 7: A(f"s_cmp_eq_u32 s{sIter}, 0")
        if u == 14:
            A(f"s_cmp_eq_u32 s{sIter}, 2")
            A(f"s_cselect_b32 s{sDelta}, {(16*TILE - 62*TILE) & 0xffffffff}, s{sT2}")
        if u == 15:
            A(f"s_add_u32 s{sIter}, s{sIter}, 1")
            A(f"s_cmp_eq_u32 s{sIter}, 1")
        e(6); e(7); e(8); e(9)
        A(f"v_smfmac_f32_32x32x32_bf16 {v(vO[qp],16)}, {v(vVb[ip%2],4)}, {v(Z+8,8)}, v{vIdx}")
        A("s_waitcnt lgkmcnt(0)")
        A(r1)
        e(10); e(11); e(12); e(13)
        A(f"v_smfmac_f32_32x32x32_bf16 {v(vO[q],16)}, {v(vVa[i%2],4)}, {v(X,8)}, v{vIdx}")
        A(r2)
        e(14); e(15)
        if u == 7:
            A("s_cbranch_scc1 L_bar0")
            A.label("L_bar0_ret")
    A(f"""
    v_add_u32 v{vAK1}, {16*TILE}, v{vAK1}
    v_add_u32 v{vAK2}, {16*TILE}, v{vAK2}
    v_add_u32 v{vAV}, {16*TILE}, v{vAV}
    v_add_u32 v{vAK1s}, s{sDelta}, v{vAK1s}
    v_add_u32 v{vAK2s}, s{sDelta}, v{vAK2s}
    v_add_u32 v{vAVs}, s{sDelta}, v{vAVs}
    s_cbranch_scc1 L_loop
    s_cmp_eq_u32 s{sIter}, 4
    s_cbranch_scc1 L_fin
    s_waitcnt lgkmcnt(0)
    s_cmp_eq_u32 s{sIter}, 3
    s_cbranch_scc1 L_prog
    s_barrier                                        ; L3
    s_branch L_loop
    """)
    A.label("L_prog")
    A(f"""
    v_mov_b32 v{vT}, {SELA}
    v_mov_b32 v{vT+1}, 1
    s_mov_b64 exec, 1
    ds_add_u32 v{vT}, v{vT+1} offset:8
    s_mov_b64 exec, -1
    s_branch L_loop
    """)
    A.label("L_bar0")
    A("s_waitcnt lgkmcnt(0)\ns_barrier                                        ; L0\ns_branch L_bar0_ret")
    A.label("L_fin")
    ST.mark(6)
    A(f"v_smfmac_f32_32x32x32_bf16 {v(vO[1],16)}, {v(vVb[1],4)}, {v(vS[3]+8,8)}, v{vIdx}")
    A(f"""
    v_mov_b32 v{vT+5}, {SELA}
    ds_read_b32 v{vT+4}, v{vT+5} offset:4
    s_mov_b32 s{sT}, 0x5f800000             ; 2^64
    s_mov_b32 s{sIter}, 0
    s_nop 4
    s_waitcnt lgkmcnt(0)
    v_cmp_eq_u32 vcc, 0, v{vT+4}
    s_cbranch_vccz L_rdy
    """)
    A.label("L_rdy_spin")
    A(f"""
    s_sleep 1
    ds_read_b32 v{vT+4}, v{vT+5} offset:4
    s_add_u32 s{sIter}, s{sIter}, 1
    s_cmp_gt_u32 s{sIter}, {SPIN_MAX*8}
    s_cbranch_scc1 L_rdy
    s_waitcnt lgkmcnt(0)
    v_cmp_eq_u32 vcc, 0, v{vT+4}
    s_cbranch_vccnz L_rdy_spin
    """)
    A.label("L_rdy")
    A(f"""
    ds_write_b128 v{vEXo}, {v(vO[1],4)}
    v_cndmask_b32 v{vO[1]+9}, 1.0, v{vO[1]+9}, s[{sLo32}:{sLo32+1}]
    ds_write_b128 v{vEXo}, {v(vO[1]+4,4)} offset:1024
    ds_write_b128 v{vEXo}, {v(vO[1]+8,4)} offset:2048
    """)
    A.label("L_pair_spin")
    A(f"""
    ds_read_b128 {v(vS[0]+8,4)}, v{vEXp} offset:2048
    ds_read_b128 {v(vS[0],4)}, v{vEXp}
    ds_read_b128 {v(vS[0]+4,4)}, v{vEXp} offset:1024
    s_add_u32 s{sIter}, s{sIter}, 1
    s_cmp_gt_u32 s{sIter}, {SPIN_MAX*8}
    s_cbranch_scc1 L_pair
    s_waitcnt lgkmcnt(2)
    v_cmp_eq_u32 vcc, 0, v{vS[0]+9}
    s_cmp_eq_u32 vcc_hi, 0
    s_cbranch_scc1 L_pair
    {f"s_sleep {PSL}" if PSL else ""}
    s_branch L_pair_spin
    """)
    A.label("L_pair")
    A("s_waitcnt lgkmcnt(2)")
    O = vO[0]
    for i in range(8, 12):
        A(f"v_add_f32 v{O+i}, v{O+i}, v{vS[0]+i}")
    def l_bcast():
        A(f"""
        v_mov_b32 v{vT+2}, v{O+8}
        v_mov_b32 v{vT+3}, v{O+8}
        s_nop 1
        v_permlane32_swap_b32 v{vT+2}, v{vT+3}
        """)
    l_bcast()
    A("s_waitcnt lgkmcnt(0)")
    for i in range(8):
        A(f"v_add_f32 v{O+i}, v{O+i}, v{vS[0]+i}")
    A(f"v_mul_f32 v{vT}, 0, v{O}")
    A(f"v_mul_f32 v{vT+1}, 0, v{O+1}")
    for i in range(2, 12):
        A(f"v_fma_f32 v{vT + i%2}, 0, v{O+i}, v{vT + i%2}")
    A(f"""
    v_add_f32 v{vT}, v{vT}, v{vT+1}
    v_add_f32 v{vT}, v{vT}, v{vT+3}
    v_cmp_nge_f32 vcc, s{sT}, v{vT}           ; !(2^64 >= l)
    s_cbranch_vccnz L_fallback
    """)
    A.label("L_store")
    A(f"v_rcp_f32 v{vT}, v{vT+3}")
    A(f"s_mov_b32 s{sT}, 0xfffffffe")
    for i in range(12):
        A(f"v_mul_f32 v{O+i}, v{O+i}, v{vT}")
    for i in range(6):
        A(f"v_cvt_pk_bf16_f32 v{vS[0]+i}, v{O+2*i}, v{O+2*i+1}")
    for i in range(6):
        A(f"v_min_u32 v{vS[0]+i}, s{sT}, v{vS[0]+i}")
    A(f"""
    v_cmp_eq_u32 vcc, 3, v{vT+4}
    s_cbranch_vccnz L_st_fast
    buffer_store_dwordx4 {v(vS[0],4)}, v{vSM}, {wsd}, s{sStM} offen sc1
    s_mov_b64 exec, s[{sLo32}:{sLo32+1}]
    buffer_store_dwordx2 {v(vS[0]+4,2)}, v{vSTl}, {wsd}, s{sStT} offen sc1
    s_branch L_st_done
    """)
    A.label("L_st_fast")
    if stamp: A(f"v_writelane_b32 v{vSt}, 1, 13")
    A(f"""
    buffer_store_dwordx4 {v(vS[0],4)}, v{vSM}, {wsd}, s{sStM} offen
    s_mov_b64 exec, s[{sLo32}:{sLo32+1}]
    buffer_store_dwordx2 {v(vS[0]+4,2)}, v{vSTl}, {wsd}, s{sStT} offen
    """)
    A.label("L_st_done")
    A(f"""
    s_mov_b64 exec, -1
    """)
    ST.mark(8)
    vOF = BIG
    vWB = [124, 56]
    vEp = 76
    vXO = 83
    vTB = 84
    vB = 94
    vAcc = 104
    g = vEp + 5; omg = vEp + 6
    sSeg = sGs
    def oload(k):
        so = (sOFs, sStM)[k // 4]
        A(f"buffer_load_dwordx4 {v(vOF+4*k,4)}, v{vL16}, {wsd}, s{so} offen offset:{(k%4)*1024} sc1")
    def wreads(k):
        for nt in range(5):
            for sidx in range(2):
                if k < 4: base, off = vTB, k*6400 + sidx*1280
                else: base, off = vTB + 1, 2560 + sidx*3200
                A(f"ds_read_b64_tr_b16 {v(vWB[k%2]+4*nt+2*sidx,2)}, v{base} offset:{off + nt*32}")
    FS = f"""
    v_lshrrev_b32 v{vT}, 3, v{vLane}
    v_and_b32 v{vT+5}, 7, v{vLane}
    v_mul_u32_u24 v{vXO}, 1280, v{vT}
    v_mul_u32_u24 v{vT+6}, 20, v{vT+5}
    v_add_u32 v{vXO}, v{vXO}, v{vT+6}
    s_lshl_b32 s{sT}, s{sWave}, 3
    v_add_u32 v{vT}, s{sT}, v{vT}
    v_mul_u32_u24 v{vEXp}, {PP}, v{vT}
    v_lshl_add_u32 v{vEXp}, v{vT+6}, 1, v{vEXp}
    v_add_u32 v{vEXp}, {PB[0]}, v{vEXp}
    v_add_u32 v{vSM}, {PB[1]-PB[0]}, v{vEXp}
    s_and_b32 s{sT}, s{sWave}, 3
    s_mul_i32 s{sT}, s{sT}, {16*PP}
    s_mul_i32 s{sT2}, s{sHl}, {PB[1]-PB[0]}
    s_add_u32 s{sT}, s{sT}, s{sT2}
    s_add_u32 s{sT}, s{sT}, {PB[0]}
    v_mul_u32_u24 v{vEXo}, {PP}, v{vTok}
    v_lshl_add_u32 v{vEXo}, v{vG4}, 4, v{vEXo}
    v_add_u32 v{vEXo}, s{sT}, v{vEXo}
    v_mov_b32 v{vT+1}, {SELA}
    ds_read_b32 v{vT+1}, v{vT+1}
    v_lshlrev_b32 v{vTB+2}, 2, v{vT}
    v_add_u32 v{vTB+2}, {GL}, v{vTB+2}
    ds_read_b32 v{g}, v{vTB+2}
    v_lshlrev_b32 v{vT+2}, 1, v{vT+6}
    v_add_u32 v{vT+2}, {SELA+16}, v{vT+2}
    s_waitcnt lgkmcnt(0)
    v_sub_f32 v{omg}, 1.0, v{g}
    v_cmp_eq_u32 s[{sMask}:{sMask+1}], v{vT+1}, v{vT}
    v_cvt_pk_bf16_f32 v{omg}, v{omg}, v{omg}
    v_and_b32 v{omg}, 0xffff0000, v{omg}
    """
    A(f"""
    s_add_u32 s{sStM}, s{sOFs}, 4096
    s_cmp_lt_u32 s{sSeg}, 2
    s_cbranch_scc1 L_seg_go0
    s_barrier                                        ; E2
    """)
    ST.mark(11)
    A.label("L_seg_go0")
    for k in range(5): oload(k)
    A(f"""
    ; tr bases: ((g/2)*20 + 4*(g%2) + r)*160 + (l%4)*8   and   (g/2)*12800 + ((g%2)*40 + r)*160 + (l%4)*8
    s_mul_i32 s{sT}, s{sSeg}, 25600
    s_add_u32 s{sT}, s{sT}, {WO_L}
    v_lshrrev_b32 v{vT+1}, 2, v{vTok}
    v_and_b32 v{vT+2}, 3, v{vLane}
    v_lshlrev_b32 v{vT+2}, 3, v{vT+2}
    v_add_u32 v{vT+2}, s{sT}, v{vT+2}
    v_mad_u32_u24 v{vT+3}, v{vHalf}, 12, v{vT+1}
    v_lshl_add_u32 v{vT+3}, v{vG4}, 2, v{vT+3}
    v_mad_u32_u24 v{vT+4}, v{vG4}, 40, v{vT+1}
    v_mul_u32_u24 v{vT+3}, 160, v{vT+3}
    v_mul_u32_u24 v{vT+4}, 160, v{vT+4}
    v_add_u32 v{vTB}, v{vT+3}, v{vT+2}
    v_add_u32 v{vTB+1}, v{vT+4}, v{vT+2}
    s_mov_b32 s{sIter}, 0
    """)
    for i in range(20):
        A(f"v_mov_b32 v{vAcc+i}, 0")
    wreads(0)
    A(FS)
    A(f"""
    buffer_load_dwordx4 {v(vEp,4)}, v{vXO}, {xd}, s{sE2} offen
    buffer_load_dword v{vEp+4}, v{vXO}, {xd}, s{sE2} offen offset:16
    s_waitcnt vmcnt(2)
    s_branch L_chk
    """)
    A.label("L_seg")
    A(f"""
    s_add_u32 s{sStM}, s{sOFs}, 4096
    s_cmp_lt_u32 s{sSeg}, 2
    s_cbranch_scc1 L_seg_go
    s_barrier
    """)
    ST.mark(11)
    A.label("L_seg_go")
    for k in range(5): oload(k)
    wreads(0)
    A("s_waitcnt vmcnt(0)")
    A.label("L_chk")
    f = vOF
    A(f"v_max3_u32 v{vT+3}, v{f}, v{f+1}, v{f+2}")
    A(f"v_max3_u32 v{vT+4}, v{f+3}, v{f+4}, v{f+5}")
    for i in range(6, 20, 2):
        t = vT + 3 + (i//2) % 2
        A(f"v_max3_u32 v{t}, v{t}, v{f+i}, v{f+i+1}")
    A(f"""
    v_max_u32 v{vT+3}, v{vT+3}, v{vT+4}
    v_cmp_eq_u32 vcc, -1, v{vT+3}
    s_cbranch_vccz L_ok
    s_add_u32 s{sIter}, s{sIter}, 1
    s_cmp_gt_u32 s{sIter}, {SPIN_MAX}
    s_cbranch_scc1 L_ok
    s_cmp_ge_u32 s{sSeg}, 2
    s_cbranch_scc1 L_nosl
    {f"s_sleep {RSL}" if RSL else ""}
    """)
    A.label("L_nosl")
    for k in range(5): oload(k)
    A("s_waitcnt vmcnt(0)")
    A("s_branch L_chk")
    A.label("L_ok")
    ST.mark(9)
    for k in range(5):
        if k < 4:
            wreads(k + 1)
            A("s_waitcnt lgkmcnt(10)")
        else:
            A("s_waitcnt lgkmcnt(0)")
        for nt in range(5):
            A(f"v_mfma_f32_16x16x32_bf16 {v(vAcc+4*nt,4)}, {v(vWB[k%2]+4*nt,4)}, {v(vOF+4*k,4)}, {v(vAcc+4*nt,4)}")
    A(f"""
    v_add_u32 v{vTB}, 25600, v{vTB}
    v_add_u32 v{vTB+1}, 25600, v{vTB+1}
    s_add_u32 s{sOFs}, s{sOFs}, 5120
    s_add_u32 s{sSeg}, s{sSeg}, 1
    s_cmp_lt_u32 s{sSeg}, 3
    s_cbranch_scc1 L_seg
    """)
    ST.mark(10)
    if stamp: A(f"v_writelane_b32 v{vSt}, s{sIter}, 14")
    for nt in range(5):
        A(f"ds_write_b128 v{vEXo}, {v(vAcc+4*nt,4)} offset:{64*nt}")
    A("s_waitcnt vmcnt(0)")
    for i in range(5):
        A(f"v_lshlrev_b32 v{vB+2*i}, 16, v{vEp+i}")
        A(f"v_and_b32 v{vB+2*i+1}, 0xffff0000, v{vEp+i}")
    for i in range(10):
        A(f"v_mul_f32 v{vB+i}, v{omg}, v{vB+i}")
    A("s_waitcnt lgkmcnt(0)")
    A("s_barrier                                        ; E4")
    ST.mark(20)
    P0, P1 = vOF, vOF + 12
    for (P_, ad) in ((P0, vEXp), (P1, vSM)):
        A(f"ds_read2_b64 {v(P_,4)}, v{ad} offset0:0 offset1:1")
        A(f"ds_read2_b64 {v(P_+4,4)}, v{ad} offset0:2 offset1:3")
        A(f"ds_read_b64 {v(P_+8,2)}, v{ad} offset:32")
    A(f"s_cmp_eq_u64 s[{sMask}:{sMask+1}], 0")
    A("s_cbranch_scc1 L_nosel")
    for i in range(5):
        A(f"ds_read_b64 {v(vAcc+2*i,2)}, v{vT+2} offset:{8*i}")
    A(f"s_mov_b64 exec, s[{sMask}:{sMask+1}]")
    for i in range(5):
        A(f"v_lshlrev_b32 v{vB+2*i}, 16, v{vEp+i}")
        A(f"v_and_b32 v{vB+2*i+1}, 0xffff0000, v{vEp+i}")
    A("s_waitcnt lgkmcnt(0)")
    for i in range(10):
        A(f"v_add_f32 v{vB+i}, v{vB+i}, v{vAcc+i}")
        A(f"v_cvt_pk_bf16_f32 v{vB+i}, v{vB+i}, v{vB+i}")
        A(f"v_and_b32 v{vB+i}, 0xffff0000, v{vB+i}")
        A(f"v_mul_f32 v{vB+i}, v{omg}, v{vB+i}")
    A("s_mov_b64 exec, -1")
    A.label("L_nosel")
    A("s_waitcnt lgkmcnt(0)")
    for i in range(10):
        A(f"v_add_f32 v{P0+i}, v{P0+i}, v{P1+i}")
    for i in range(10):
        A(f"v_fma_f32 v{vB+i}, v{g}, v{P0+i}, v{vB+i}")
    for i in range(5):
        A(f"v_cvt_pk_bf16_f32 v{vEp+i}, v{vB+2*i}, v{vB+2*i+1}")
    A(f"""
    buffer_store_dwordx4 {v(vEp,4)}, v{vXO}, {dd}, s{sE2} offen
    buffer_store_dword v{vEp+4}, v{vXO}, {dd}, s{sE2} offen offset:16
    """)
    A.label("L_done")
    ST.dump()
    A.label("L_end")
    A("s_endpgm")

    A.label("L_fallback")
    A(f"""
    v_mov_b32 v{vQ2[0]+1}, 0
    v_mov_b32 v{vM}, 0xff800000
    s_mov_b32 s{sT}, {WS_KV}
    """)
    A.label("L_fb1")
    A(f"""
    buffer_load_dwordx4 {v(vK1[0],4)}, v{vL16}, {wsd}, s{sT} offen offset:{OFF_K1} sc1
    buffer_load_dword v{vK2[0]}, v{vL4}, {wsd}, s{sT} offen offset:{OFF_K2} sc1
    s_waitcnt vmcnt(0)
    """)
    a, b = qk(vS[0], vK1[0], vK2[0], 0); A(a); A(b)
    A("s_nop 15")
    tile_max(vM, vS[0], False)
    A(f"""
    s_add_u32 s{sT}, s{sT}, {TILE}
    s_cmp_lt_u32 s{sT}, {WS_KV + KV_BYTES}
    s_cbranch_scc1 L_fb1
    """)
    set_m(vM, 0, vT, True)
    for i in range(16):
        A(f"v_mov_b32 v{O+i}, 0")
    A(f"s_mov_b32 s{sT}, {WS_KV}")
    A.label("L_fb2")
    A(f"""
    buffer_load_dwordx4 {v(vK1[0],4)}, v{vL16}, {wsd}, s{sT} offen offset:{OFF_K1} sc1
    buffer_load_dword v{vK2[0]}, v{vL4}, {wsd}, s{sT} offen offset:{OFF_K2} sc1
    buffer_load_dwordx4 {v(vVa[0],4)}, v{vGV}, {wsd}, s{sT} offen offset:{OFF_VA} sc1
    buffer_load_dwordx4 {v(vVb[0],4)}, v{vGV}, {wsd}, s{sT} offen offset:{OFF_VB} sc1
    s_waitcnt vmcnt(0)
    """)
    a, b = qk(vS[0], vK1[0], vK2[0], 0); A(a); A(b)
    A("s_nop 15")
    for i in range(16):
        A(f"v_exp_f32 v{vS[0]+i}, v{vS[0]+i}")
    A("s_nop 1")
    A(f"v_smfmac_f32_32x32x32_bf16 {v(O,16)}, {v(vVa[0],4)}, {v(vS[0],8)}, v{vIdx}")
    A(f"v_smfmac_f32_32x32x32_bf16 {v(O,16)}, {v(vVb[0],4)}, {v(vS[0]+8,8)}, v{vIdx}")
    A(f"""
    s_nop 15
    s_add_u32 s{sT}, s{sT}, {TILE}
    s_cmp_lt_u32 s{sT}, {WS_KV + KV_BYTES}
    s_cbranch_scc1 L_fb2
    """)
    l_bcast()
    A("s_nop 1")
    A("s_branch L_store")

    H = RegAlloc(8)
    hN = H.alloc("nonce", 4, 4)
    hFA = H.alloc("fa"); hGA = H.alloc("ga"); hOwn = H.alloc("own")
    hKey = H.alloc("key", 2, 2)
    hX = H.alloc("X", 80, 4)
    hD = H.alloc("D", 40, 4)
    assert H.next <= vIdx, (H.next, vIdx)
    hAc = hX + 64
    FST = 2 * TILE
    XSL = FST + 20480
    sF, sIdx, sKey, sSpin, sN = sA, sA + 1, sA + 2, sA + 3, sA + 4
    sH = 76
    sXcc, sFast = 96, 97
    A.label("L_helper")
    A(f"s_setprio {HP}")
    srd(sDD, pDBG, 256)
    A(f"""
    v_mov_b32 v{vT+2}, 0
    s_cmp_lg_u32 s2, 0
    s_cbranch_scc1 L_h_nolead
    s_memrealtime s[{sN}:{sN+1}]
    s_waitcnt lgkmcnt(0)
    s_or_b32 s{sN}, s{sN}, 1
    v_mov_b32 v{hN}, s{sN}
    v_mov_b32 v{hN+1}, s{sN+1}
    s_mov_b64 exec, 1
    buffer_store_dwordx2 {v(hN,2)}, v{vT+2}, {dd}, 0 offen sc1
    s_mov_b64 exec, -1
    """)
    A.label("L_h_nolead")
    A(f"""
    s_cmp_lt_u32 s{sFid}, 236
    s_cbranch_scc1 L_h_noyz
    v_mov_b32 v{hX}, 0
    v_mov_b32 v{hX+1}, 0
    v_mov_b32 v{hX+2}, 0
    v_mov_b32 v{hX+3}, 0
    s_lshl_b32 s{sT}, s{sFid}, 10
    s_add_u32 s{sT}, s{sT}, {WS_Y - 236*1024}
    buffer_store_dwordx4 {v(hX,4)}, v{vL16}, {wsd}, s{sT} offen sc1
    """)
    A.label("L_h_noyz")
    for r3 in range(3):
        A(f"s_mov_b32 m0, {WK + 16384 + r3*3072}")
        A(f"s_mov_b32 s{sT}, {16384 + r3*3072}")
        for j in range(3):
            A(f"buffer_load_dwordx4 v{vL16}, {md}, s{sT} offen offset:{j*1024} lds")
    A(f"buffer_load_dwordx2 {v(hN,2)}, v{vT+2}, {dd}, 0 offen sc1")
    A("s_barrier                                        ; F0")
    srd(sKVD, pWS, KV_BYTES, WS_KV)
    hP = [vIdx, vAK1, vAK2, vAV, vM]
    for ph in range(5):
        A(f"""
        v_add_u32 v{vT}, {64*ph}, v{vLane}
        v_mul_u32_u24 v{vT+1}, 205, v{vT}
        v_lshrrev_b32 v{vT+1}, 11, v{vT+1}
        v_mul_u32_u24 v{vT+3}, {1280-160}, v{vT+1}
        v_lshl_add_u32 v{hP[ph]}, v{vLane}, 4, v{vT+3}
        """)
    A(f"v_add_u32 v{hP[4]}, 4096, v{hP[4]}")
    A(f"""
    v_lshrrev_b32 v{vT}, 2, v{vTok}
    v_lshl_add_u32 v{vT}, v{vG4}, 3, v{vT}
    v_lshlrev_b32 v{vT}, 4, v{vT}
    v_and_b32 v{vT+1}, 1, v{vLane}
    v_lshl_add_u32 v{vT}, v{vT+1}, 3, v{vT}
    v_bfe_u32 v{vT+1}, v{vLane}, 1, 1
    v_mul_u32_u24 v{vT+1}, 10240, v{vT+1}
    v_add3_u32 v{vGV}, v{vT}, v{vT+1}, 0
    v_add_u32 v{vGV}, {FST}, v{vGV}
    v_lshlrev_b32 v{vAVs}, 4, v{vG4}
    v_add_u32 v{vAVs}, {XSL}, v{vAVs}
    ; w_down slab tr address: r*1280 + g*32 + (l%4)*8
    v_lshrrev_b32 v{vT}, 2, v{vTok}
    v_mul_u32_u24 v{vT}, 1280, v{vT}
    v_lshl_add_u32 v{vT}, v{vG4}, 5, v{vT}
    v_and_b32 v{vT+1}, 3, v{vLane}
    v_lshl_add_u32 v{vT}, v{vT+1}, 3, v{vT}
    v_add_u32 v{vAK1s}, {FST}, v{vT}
    v_add_u32 v{vAK2s}, {FST}, v{vL16}
    v_mul_u32_u24 v{vEXo}, 3072, v{vLane}
    v_lshlrev_b32 v{hFA}, 5, v{vLane}
    v_and_b32 v{hGA}, 7, v{vLane}
    v_lshlrev_b32 v{hGA}, 5, v{hGA}
    s_lshl_b32 s{sT}, s{sG}, 8
    s_add_u32 s{sT}, s{sT}, {WS_FLAG + 3*8192}
    v_add_u32 v{hGA}, s{sT}, v{hGA}
    v_mov_b32 v{vT}, {CNT}
    v_mov_b32 v{vT+1}, 0
    ds_write_b32 v{vT}, v{vT+1}
    s_lshl_b32 s{sT}, s{sFid}, 5
    s_add_u32 s{sT}, s{sT}, {WS_FLAG}
    v_mov_b32 v{hOwn}, s{sT}
    s_waitcnt vmcnt(0) lgkmcnt(0)
    s_barrier                                        ; F1
    """)
    ST.mark(2)
    if F1B: A("s_barrier                                        ; F1b")
    A(f"s_mov_b32 s{sSpin}, 0")
    A(f"v_cmp_eq_u32 vcc, 0, v{hN}")
    A("s_cbranch_vccz L_h_nonce_done")
    A.label("L_h_nonce")
    A(f"""
    buffer_load_dwordx2 {v(hN,2)}, v{vT+2}, {dd}, 0 offen sc1
    s_add_u32 s{sSpin}, s{sSpin}, 1
    s_cmp_gt_u32 s{sSpin}, {SPIN_MAX}
    s_cbranch_scc1 L_h_nonce_done
    s_waitcnt vmcnt(0)
    v_cmp_eq_u32 vcc, 0, v{hN}
    s_cbranch_vccnz L_h_nonce
    """)
    A.label("L_h_nonce_done")
    A(f"""
    s_waitcnt vmcnt(0)
    s_mov_b32 s{sT2}, 2
    s_mov_b32 s{sSpin}, 0
    """)
    def cntwait(lab, shift, target, sl=1):
        A(f"s_mov_b32 s{sSpin}, 0")
        A.label(f"L_h_cnt{lab}")
        A(f"""
        s_sleep {sl}
        ds_read_b32 v{vT+1}, v{vT}
        s_add_u32 s{sSpin}, s{sSpin}, 1
        s_cmp_gt_u32 s{sSpin}, {SPIN_MAX*8}
        s_cbranch_scc1 L_h_cnt{lab}_done
        s_waitcnt lgkmcnt(0)
        v_readfirstlane_b32 s{sT}, v{vT+1}
        s_nop 0
        s_bfe_u32 s{sT}, s{sT}, {hex(0x80000 | shift)}
        s_cmp_lg_u32 s{sT}, {target}
        s_cbranch_scc1 L_h_cnt{lab}
        """)
        A.label(f"L_h_cnt{lab}_done")
    cntwait("a", 0, 2)
    def publish(word):
        A(f"""
        s_mov_b32 s{sT}, {8192*word}
        s_mov_b64 exec, 1
        buffer_store_dwordx2 {v(hN,2)}, v{hOwn}, {wsd}, s{sT} offen sc1
        s_mov_b64 exec, -1
        """)
    publish(0)
    ST.mark(3)
    def poll(word, parts, lab, slow=False, sleep=0):
        A(f"s_mov_b32 s{sSpin}, 0")
        A(f"s_mov_b32 s{sT2}, {WS_FLAG + 8192*word}")
        A(f"s_mov_b32 s{sT}, {WS_FLAG + 8192*word + 4096}")
        A.label(f"L_poll{lab}")
        for i in parts:
            A(f"buffer_load_dwordx2 {v(hAc+2*i,2)}, v{hFA}, {wsd}, s{sT2 if i < 2 else sT} offen offset:{2048*(i%2)} sc1")
        A(f"""
        s_add_u32 s{sSpin}, s{sSpin}, 1
        s_cmp_gt_u32 s{sSpin}, {SPIN_MAX}
        s_cbranch_scc1 L_poll{lab}_done
        s_waitcnt vmcnt(0)
        """)
        A(f"v_cmp_ne_u64 vcc, {v(hAc+2*parts[0],2)}, {v(hN,2)}")
        for i in parts[1:]:
            A(f"v_cmp_ne_u64 s[{sMask}:{sMask+1}], {v(hAc+2*i,2)}, {v(hN,2)}")
            A(f"s_or_b64 vcc, vcc, s[{sMask}:{sMask+1}]")
        if sleep:
            A(f"s_cbranch_vccz L_poll{lab}_done\ns_sleep {sleep}\ns_branch L_poll{lab}")
        else:
            A(f"s_cbranch_vccnz L_poll{lab}")
        A.label(f"L_poll{lab}_done")
    cntwait("b", 8, 5)
    poll(0, [0], "A", sleep=PSA)
    ST.mark(4)
    A("s_mov_b32 m0, 0")
    A("s_nop 0")
    A.label("L_h_dma0")
    for j in range(4):
        A(f"buffer_load_dwordx4 v{vL16}, {kvd}, m0 offen offset:{j*1024} sc1 lds")
    A(f"""
    s_add_u32 m0, m0, 4096
    s_cmp_lt_u32 m0, 32768
    s_cbranch_scc1 L_h_dma0
    s_barrier                                        ; F2a
    s_waitcnt vmcnt(0)
    """)
    ST.mark(10)
    A("s_barrier                                        ; F2")
    poll(0, [1, 2, 3], "A2")
    A(f"""
    s_getreg_b32 s{sXcc}, hwreg(HW_REG_XCC_ID)
    s_and_b32 s{sXcc}, s{sXcc}, 0xf
    v_mov_b32 v{hN+2}, s{sXcc}
    v_mov_b32 v{hN+3}, 0
    s_mov_b32 s{sT}, {8192*2}
    s_mov_b64 exec, 1
    buffer_store_dwordx4 {v(hN,4)}, v{hOwn}, {wsd}, s{sT} offen sc1
    s_mov_b64 exec, -1
    """)
    A.label("L_h_dma")
    for j in range(4):
        A(f"buffer_load_dwordx4 v{vL16}, {kvd}, m0 offen offset:{j*1024} sc1 lds")
    A(f"""
    s_add_u32 m0, m0, 4096
    s_cmp_lt_u32 m0, {32768*4}
    s_cbranch_scc1 L_h_dma
    s_waitcnt vmcnt(32)
    """)
    ST.mark(5)
    A(f"""
    s_cmp_ge_u32 s2, 192
    s_cbranch_scc1 L_h_nod
    s_and_b32 s{sF}, s2, 7
    s_mul_i32 s{sF}, s{sF}, 24
    s_lshr_b32 s{sT}, s2, 3
    s_add_u32 s{sF}, s{sF}, s{sT}
    """)
    srd(sWD, pWD, 1536*1280)
    A(f"s_mul_i32 s{sT}, s{sF}, {8*1280}")
    for n in range(10):
        if n and n % 4 == 0: A(f"s_add_u32 s{sT}, s{sT}, 4096")
        A(f"buffer_load_dwordx4 {v(hD+4*n,4)}, v{vL16}, {wd}, s{sT} offen offset:{(n%4)*1024}")
    A.label("L_h_nod")
    A("s_barrier                                        ; L0")
    A.label("L_h_dma2")
    for j in range(4):
        A(f"buffer_load_dwordx4 v{vL16}, {kvd}, m0 offen offset:{j*1024} sc1 lds")
    A(f"""
    s_add_u32 m0, m0, 4096
    s_cmp_lt_u32 m0, {156*1024}
    s_cbranch_scc1 L_h_dma2
    """)
    for j in range(3):
        A(f"buffer_load_dwordx4 v{vL16}, {kvd}, m0 offen offset:{j*1024} sc1 lds")
    for r2 in range(2):
        A(f"s_mov_b32 m0, {r2*3072}")
        A(f"s_mov_b32 s{sT}, {LDS_IMG + r2*3072}")
        for j in range(3):
            if r2 == 1 and j == 2: A("s_mov_b64 exec, 0xff")
            A(f"buffer_load_dwordx4 v{vL16}, {kvd}, s{sT} offen offset:{j*1024} sc1 lds")
    A(f"""
    s_mov_b64 exec, -1
    """)
    poll(2, [0, 1, 2, 3], "K")
    A(f"""
    s_mov_b32 s{sT}, {(-8192) & 0xffffffff}
    v_add_u32 v{vT+1}, s{sT}, v{hGA}
    buffer_load_dword v{vT+2}, v{vT+1}, {wsd}, 0 offen offset:8 sc1
    v_lshlrev_b32 v{vT}, 3, v{vLane}
    s_mov_b32 s{sT}, {WS_KEY}
    buffer_load_dwordx2 {v(hKey,2)}, v{vT}, {wsd}, s{sT} offen sc1
    s_cmp_lg_u32 s2, 0
    s_cbranch_scc1 L_h_noreset
    v_mov_b32 v{hX+4}, 0
    v_mov_b32 v{hX+5}, 0
    s_mov_b64 exec, 1
    buffer_store_dwordx2 {v(hX+4,2)}, v{hX+4}, {dd}, 0 offen sc1
    s_mov_b64 exec, -1
    """)
    A.label("L_h_noreset")
    A(f"""
    v_mov_b32 v{hX}, -1
    v_mov_b32 v{hX+1}, -1
    v_mov_b32 v{hX+2}, -1
    v_mov_b32 v{hX+3}, -1
    s_mul_i32 s{sT}, s{sFid}, 10240
    s_add_u32 s{sT}, s{sT}, {WS_OF}
    s_waitcnt vmcnt(0)
    v_cmp_ne_u32 vcc, s{sXcc}, v{vT+2}
    s_mov_b32 s{sFast}, 0
    {"s_cbranch_vccnz L_h_mk_slow" if XFAST else "s_branch L_h_mk_slow"}
    s_mov_b32 s{sFast}, 1
    """)
    def markers(fl):
        for tq in range(2):
            for j in range(4):
                A(f"buffer_store_dwordx4 {v(hX,4)}, v{vL16}, {wsd}, s{sT} offen offset:{1024*j}{fl}")
            A(f"s_add_u32 s{sT}, s{sT}, 4096")
            A(f"buffer_store_dwordx4 {v(hX,4)}, v{vL16}, {wsd}, s{sT} offen{fl}")
            A(f"s_add_u32 s{sT}, s{sT}, 1024")
    markers("")
    A("s_branch L_h_mk_done")
    A.label("L_h_mk_slow")
    markers(" sc1")
    A.label("L_h_mk_done")
    A(f"""
    v_max_u32 v{hKey}, v{hKey}, v{hKey+1}
    s_nop 1
    v_max_u32_dpp v{hKey}, v{hKey}, v{hKey} row_shr:1 row_mask:0xf bank_mask:0xf
    s_nop 1
    v_max_u32_dpp v{hKey}, v{hKey}, v{hKey} row_shr:2 row_mask:0xf bank_mask:0xf
    s_nop 1
    v_max_u32_dpp v{hKey}, v{hKey}, v{hKey} row_shr:4 row_mask:0xf bank_mask:0xf
    s_nop 1
    v_max_u32_dpp v{hKey}, v{hKey}, v{hKey} row_shr:8 row_mask:0xf bank_mask:0xf
    s_nop 1
    v_readlane_b32 s{sKey}, v{hKey}, 15
    v_readlane_b32 s{sT}, v{hKey}, 31
    v_readlane_b32 s{sT2}, v{hKey}, 47
    v_readlane_b32 s{sIdx}, v{hKey}, 63
    s_nop 3
    s_max_u32 s{sKey}, s{sKey}, s{sT}
    s_max_u32 s{sT2}, s{sT2}, s{sIdx}
    s_max_u32 s{sKey}, s{sKey}, s{sT2}
    s_and_b32 s{sIdx}, s{sKey}, 0x7ff
    s_sub_u32 s{sIdx}, 2047, s{sIdx}
    s_lshl_b32 s{sT}, s{sG}, 8
    s_add_u32 s{sT}, s{sT}, {WS_G}
    s_mov_b32 m0, {GL}
    s_nop 0
    buffer_load_dword v{vL4}, {wsd}, s{sT} offen sc1 lds
    s_mul_i32 s{sT}, s{sIdx}, 1280
    s_mov_b32 m0, {XSL}
    s_nop 0
    buffer_load_dwordx4 v{vL16}, {xd}, s{sT} offen lds
    s_mov_b64 exec, 0xffff
    buffer_load_dwordx4 v{vL16}, {xd}, s{sT} offen offset:1024 lds
    s_mov_b64 exec, -1
    """)
    A(f"""
    s_cmp_ge_u32 s2, 192
    s_cbranch_scc1 L_h_noslab
    s_and_b32 s{sF}, s2, 7
    s_mul_i32 s{sF}, s{sF}, 24
    s_lshr_b32 s{sT}, s2, 3
    s_add_u32 s{sF}, s{sF}, s{sT}
    """)
    srd(sWD, pWG, 640*3072)
    srd(sMD, pWU, 640*3072)
    A(f"""
    s_and_b32 s{sSpin}, s{sF}, 7
    s_mov_b32 s{sH}, 0
    """)
    A.label("L_h_slab")
    A(f"""
    s_lshl_b32 s{sT2}, s{sSpin}, 10
    s_add_u32 m0, s{sT2}, {FST}
    s_mul_i32 s{sT}, s{sSpin}, {64*3072}
    s_lshl_b32 s{sH+1}, s{sF}, 4
    s_add_u32 s{sT}, s{sT}, s{sH+1}
    buffer_load_dwordx4 v{vEXo}, {wd}, s{sT} offen lds
    s_add_u32 m0, s{sT2}, {FST + 10240}
    s_add_u32 s{sSpin}, s{sSpin}, 1
    buffer_load_dwordx4 v{vEXo}, {md}, s{sT} offen lds
    s_cmp_eq_u32 s{sSpin}, 10
    s_cselect_b32 s{sSpin}, 0, s{sSpin}
    s_add_u32 s{sH}, s{sH}, 1
    s_cmp_lt_u32 s{sH}, 10
    s_cbranch_scc1 L_h_slab
    """)
    A.label("L_h_noslab")
    A.label("L_h_l3")
    srd(sWD, pWO, 640*1280)
    sWs, sWl = sA + 7, sSpin
    A(f"""
    s_mul_i32 s{sWs}, s{sM}, 160
    s_mov_b32 s{sWl}, {WO_L}
    """)
    A(f"""
    v_mov_b32 v{vT+1}, 0
    v_mov_b32 v{vT}, {SELA}
    ds_write2_b32 v{vT}, v{vT+1}, v{vT+1} offset0:1 offset1:2
    s_waitcnt lgkmcnt(0)
    """)
    ST.mark(6)
    A("s_barrier                                        ; L3")
    def wo_dma(lab, ph_):
        A(f"s_mul_i32 s{sWs}, s{sM}, 160")
        A(f"s_add_u32 s{sWs}, s{sWs}, {ph_*80*1280}")
        A(f"s_mov_b32 s{sWl}, {WO_L + ph_*51200}")
        A.label(lab)
        for stp in range(3):
            A(f"s_add_u32 m0, s{sWl}, {stp*5120}")
            A(f"s_add_u32 s{sT}, s{sWs}, {stp*32*1280}")
            for ph in range(4 if stp < 2 else 3):
                if stp == 2 and ph == 2: A(f"s_mov_b64 exec, s[{sLo32}:{sLo32+1}]")
                A(f"buffer_load_dwordx4 v{hP[ph]}, {wd}, s{sT} offen offset:{ph*1024} lds")
            if stp < 2:
                A(f"s_add_u32 m0, s{sWl}, {stp*5120 + 4096}")
                A("s_nop 0")
                A(f"buffer_load_dwordx4 v{hP[4]}, {wd}, s{sT} offen lds")
        A(f"""
        s_mov_b64 exec, -1
        s_add_u32 s{sWs}, s{sWs}, {160*1280}
        s_add_u32 s{sWl}, s{sWl}, 12800
        s_cmp_lt_u32 s{sWl}, {WO_L + (ph_+1)*51200}
        s_cbranch_scc1 {lab}
        """)
    def wo_dma_old(lab, end):
        A.label(lab)
        A(f"s_mov_b32 m0, s{sWl}")
        A("s_nop 0")
        for ph in range(4):
            A(f"buffer_load_dwordx4 v{hP[ph]}, {wd}, s{sWs} offen offset:{ph*1024} lds")
        A(f"s_add_u32 m0, s{sWl}, 4096")
        A(f"s_add_u32 s{sWl}, s{sWl}, 5120")
        A(f"buffer_load_dwordx4 v{hP[4]}, {wd}, s{sWs} offen lds")
        A(f"""
        s_add_u32 s{sWs}, s{sWs}, {32*1280}
        s_cmp_lt_u32 s{sWl}, {end}
        s_cbranch_scc1 {lab}
        """)
    if OPF:
        srd(sMD, pOUT, 2048*1280)
        A(f"""
        s_mul_i32 s{sT}, s{sG}, {64*1280}
        v_mul_u32_u24 v{vT+1}, 1280, v{vLane}
        buffer_load_ushort v{hKey}, v{vT+1}, {md}, s{sT} offen
        """)
    wo_dma("L_wo1", 0)
    A("s_waitcnt vmcnt(52)")
    publish(3)
    A(f"""
    s_cmp_ge_u32 s2, 192
    s_cbranch_scc1 L_h_ffn_done
    """)
    hF = hX + 32
    hC = hX + 28
    def freads(ks):
        f = hF + 8*(ks % 4)
        A(f"ds_read_b64_tr_b16 {v(f,2)}, v{vGV} offset:{ks*512}")
        A(f"ds_read_b64_tr_b16 {v(f+2,2)}, v{vGV} offset:{ks*512+64}")
        A(f"ds_read_b128 {v(f+4,4)}, v{vAVs} offset:{ks*64}")
    freads(0); freads(1); freads(2)
    for ks in range(20):
        if ks + 3 < 20:
            freads(ks + 3)
            A("s_waitcnt lgkmcnt(9)")
        else:
            A(f"s_waitcnt lgkmcnt({3*(19-ks)})")
        c = "0" if ks == 0 else v(hC, 4)
        f = hF + 8*(ks % 4)
        A(f"v_mfma_f32_16x16x32_bf16 {v(hC,4)}, {v(f+4,4)}, {v(f,4)}, {c}")
    for n in range(10):
        A(f"ds_write_b128 v{vAK2s}, {v(hD+4*n,4)} offset:{1024*n}")
    g_, u_, t_ = hX, hX + 1, hX + 2
    hA = hX + 4
    A(f"""
    v_mov_b32_dpp v{u_}, v{hC} row_ror:8 row_mask:0xf bank_mask:0xf
    v_mov_b32 v{hA}, 0
    v_cvt_pk_bf16_f32 v{g_}, v{hC}, v{u_}
    v_and_b32 v{u_}, 0xffff0000, v{g_}
    v_lshlrev_b32 v{g_}, 16, v{g_}
    v_mul_f32 v{t_}, {NLOG2E}, v{g_}
    v_exp_f32 v{t_}, v{t_}
    v_mov_b32 v{hA+1}, 0
    v_add_f32 v{t_}, 1.0, v{t_}
    v_rcp_f32 v{t_}, v{t_}
    v_mov_b32 v{hA+2}, 0
    v_mul_f32 v{g_}, v{g_}, v{t_}
    v_cvt_pk_bf16_f32 v{g_}, v{g_}, v{g_}
    v_and_b32 v{g_}, 0xffff0000, v{g_}
    v_mul_f32 v{g_}, v{g_}, v{u_}
    v_mov_b32 v{hA+3}, 0
    s_nop 0
    v_mov_b32_dpp v{u_}, v{g_} quad_perm:[1,0,3,2] row_mask:0xf bank_mask:0xf
    v_cvt_pk_bf16_f32 v{g_}, v{g_}, v{u_}
    s_mov_b32 s{sT}, 0x00100001
    s_mov_b32 s{sT2}, 0x10000100
    v_readlane_b32 s{sH}, v{g_}, 0
    v_readlane_b32 s{sH+1}, v{g_}, 2
    v_readlane_b32 s{sH+2}, v{g_}, 4
    v_readlane_b32 s{sH+3}, v{g_}, 6
    s_mov_b64 exec, s[{sT}:{sT2}]
    s_nop 0
    v_mov_b32 v{hA}, s{sH}
    v_mov_b32 v{hA+1}, s{sH+1}
    v_mov_b32 v{hA+2}, s{sH+2}
    v_mov_b32 v{hA+3}, s{sH+3}
    s_mov_b64 exec, -1
    s_waitcnt lgkmcnt(0)
    """)
    hW = hD
    hY = hX + 8
    for half in range(2):
        for t in range(5*half, 5*half + 5):
            A(f"ds_read_b64_tr_b16 {v(hW+4*t,2)}, v{vAK1s} offset:{128*t}")
            A(f"ds_read_b64_tr_b16 {v(hW+4*t+2,2)}, v{vAK1s} offset:{128*t + 5120}")
        A("s_waitcnt lgkmcnt(0)")
        for t in range(5*half, 5*half + 5):
            A(f"v_mfma_f32_16x16x32_bf16 {v(hY+4*t,4)}, {v(hA,4)}, {v(hW+4*t,4)}, 0")
    A(f"""
    s_and_b32 s{sT}, s2, 7
    s_mul_i32 s{sT}, s{sT}, 2560
    s_add_u32 s{sT}, s{sT}, {WS_Y}
    s_nop 4
    """)
    for i in range(10):
        A(f"buffer_atomic_add_f32 v{hY+4*i}, v{vL4}, {wsd}, s{sT} offen offset:{256*i} sc1")
    A.label("L_h_ffn_done")
    A(f"v_mov_b32 v{vT+1}, 0")
    for w in range(8):
        A(f"ds_write_b32 v{vAK2s}, v{vT+1} offset:{w*3072 + 2048 + 4}")
    hU = hX
    A(f"s_mov_b32 s{sSpin}, 0")
    A.label("L_pollC")
    A(f"""
    buffer_load_dwordx2 {v(hAc,2)}, v{hGA}, {wsd}, 0 offen sc1
    s_add_u32 s{sSpin}, s{sSpin}, 1
    s_cmp_gt_u32 s{sSpin}, {SPIN_MAX}
    s_cbranch_scc1 L_pollC_done
    s_waitcnt vmcnt(0)
    v_cmp_ne_u64 vcc, {v(hAc,2)}, {v(hN,2)}
    s_cbranch_vccnz L_pollC
    """)
    A.label("L_pollC_done")
    A(f"""
    s_waitcnt vmcnt(0)
    v_mov_b32 v{vT}, {SELA}
    s_and_b32 s{sT2}, s{sIdx}, 63
    s_lshr_b32 s{sT}, s{sIdx}, 6
    s_cmp_eq_u32 s{sT}, s{sG}
    s_cselect_b32 s{sT2}, s{sT2}, -1
    v_mov_b32 v{vT+1}, s{sT2}
    s_lshl_b32 s{sT2}, s{sFast}, 1
    s_or_b32 s{sT2}, s{sT2}, 1
    v_mov_b32 v{vT+2}, s{sT2}
    ds_write2_b32 v{vT}, v{vT+1}, v{vT+2} offset0:0 offset1:1
    v_add_u32 v{vT}, 8, v{vT}
    """)
    ST.mark(7)
    publish(1)
    cntwait("p", 0, 8, CSL)
    wo_dma("L_wo2", 1)
    A("s_waitcnt vmcnt(0)")
    ST.mark(8)
    A(f"""
    s_barrier                                        ; E2
    s_lshr_b32 s{sT}, s{sIdx}, 6
    s_cmp_lg_u32 s{sT}, s{sG}
    s_cbranch_scc1 L_h_end
    """)
    poll(1, [0, 1, 2, 3], "B", False)
    A(f"""
    s_and_b32 s{sT}, s{sKey}, 0xfffff800
    s_not_b32 s{sT2}, s{sT}
    s_and_b32 s{sT}, s{sT}, 0x7fffffff
    s_cmp_lt_i32 s{sKey}, 0
    s_cselect_b32 s{sT}, s{sT}, s{sT2}          ; r bits
    v_mov_b32 v{vT+5}, s{sT}
    v_cvt_pk_bf16_f32 v{vT+5}, v{vT+5}, v{vT+5}
    v_and_b32 v{vT+5}, 0xffff0000, v{vT+5}
    v_mul_f32 v{vT+5}, {NLOG2E}, v{vT+5}
    v_exp_f32 v{vT+5}, v{vT+5}
    s_nop 0
    v_add_f32 v{vT+5}, 1.0, v{vT+5}
    v_rcp_f32 v{vT+5}, v{vT+5}
    s_nop 0
    v_cvt_pk_bf16_f32 v{vT+5}, v{vT+5}, v{vT+5}
    v_and_b32 v{vT+5}, 0xffff0000, v{vT+5}
    s_mul_i32 s{sT}, s{sM}, 80
    """)
    for rnd in range(2):
        A(f"""
        v_add_u32 v{vT+2}, s{sT}, v{vLane}
        v_add_u32 v{vT+2}, {64*rnd}, v{vT+2}
        v_min_u32 v{vT+2}, 639, v{vT+2}             ; column
        v_lshlrev_b32 v{vT+3}, 2, v{vT+2}
        s_mov_b32 s{sT2}, {WS_Y}
        """)
        for rep in range(8):
            A(f"buffer_load_dword v{hU+8*rnd+rep}, v{vT+3}, {wsd}, s{sT2} offen sc1")
            A(f"s_add_u32 s{sT2}, s{sT2}, 2560")
    A("s_waitcnt vmcnt(0)")
    for rnd in range(2):
        y = hU + 8*rnd
        for rep in range(1, 8):
            A(f"v_add_f32 v{y}, v{y}, v{y+rep}")
        A(f"""
        v_cvt_pk_bf16_f32 v{y}, v{y}, v{y}
        v_and_b32 v{y}, 0xffff0000, v{y}
        v_mul_f32 v{y}, v{vT+5}, v{y}
        v_cvt_pk_bf16_f32 v{y}, v{y}, v{y}
        v_and_b32 v{y}, 0xffff0000, v{y}
        """)
    A(f"""
    v_add_u32 v{vT+2}, {SELA+16}, v{vL4}
    ds_write_b32 v{vT+2}, v{hU}
    ds_write_b32 v{vT+2}, v{hU+8} offset:256
    s_waitcnt lgkmcnt(0)
    """)
    ST.mark(9)
    A("s_barrier                                        ; E4")
    A.label("L_h_end")
    ST.dump()
    A("s_endpgm")
    A.label("L_code_end")
    return A.text(), NV

NAME = "gated_mix__grouped_kv_mqa__moe_arch_mod__prompt"
def build(stamp=False):
    b, n = gen(NAME + "_kernel", stamp)
    txt = "; generated by gen/fused.py\n"
    txt += "; @launch grid=(256,1,1) block=(576,1,1) lds=163840\n"
    txt += '.amdgcn_target "amdgcn-amd-amdhsa--gfx950"\n.text\n' + b
    txt += '.section .rodata,"a"\n' + kernel_desc(NAME + "_kernel", n)
    return txt
if __name__ == "__main__":
    import sys
    open(sys.argv[1] if len(sys.argv) > 1 else f"fused16.s", "w").write(build())
```

```python
from asmlib import *
from layout import *
import math, struct
def fbits(x):
    return struct.unpack("<I", struct.pack("<f", x))[0]
NLOG2E = hex(fbits(-math.log2(math.e)))
LDS_IMG = 62 * TILE
WS_FLAG = 0x750000
WS_OF = 0x300000
WK, XT, RING, RG, CNT = 0, 32768, 73728, 155648, 163584
QX = RING + 4*16384
EXA = 2 * TILE
WO_L = EXA + 24576
SELA = 162816
GL = SELA + 528
PFL = GL + 256
PB = [EXA, WO_L + 102400]
PP = 336
SPIN_MAX = 20000
CPF = True
TLBW = 0
OPF = False
F2A = True
QST = False
QPRE = 0
QP2 = 2
XE = 0
QEARLY = False
F1B = True
LST = False
PSA = 0
ROT = True
QTRIG = 5
QP = 328
XFAST = True
FSE = True
LP = 0
CSL = 10
HP = 2
RSL = 4
PSL = 1

def gen(name, stamp=False):
    A = Asm()
    sWSD, sKVD, sXD, sWD, sDD, sMD = 8, 12, 16, 20, 24, 28
    sWave, sG, sM, sTT, sHG, sFid = 32, 33, 34, 35, 36, 37
    sT, sT2 = 38, 39
    pX, pWQ, pWK, pWV, pWO, pWR, pWG, pWU, pWD, pGW, pOUT, pDBG, pWS = 40, 42, 44, 46, 48, 52, 54, 56, 58, 60, 62, 64, 66
    sA = 68
    sXl, sXs = 90, 91
    sLo32 = 4
    sMask = 6
    wsd, kvd, xd, wd, dd, md = (s(x, 4) for x in (sWSD, sKVD, sXD, sWD, sDD, sMD))
    def srd(d, p, size, add=0):
        if add:
            A(f"s_add_u32 s{d}, s{p}, {add}\ns_addc_u32 s{d+1}, s{p+1}, 0")
        else:
            A(f"s_mov_b32 s{d}, s{p}\ns_mov_b32 s{d+1}, s{p+1}")
        A(f"s_mov_b32 s{d+2}, {size}\ns_mov_b32 s{d+3}, 0x00020000")
    R = RegAlloc(1)
    vT = R.alloc("T", 7)
    vQ1 = [R.alloc(f"Q1{i}", 4, 4) for i in range(2)]
    vQ2 = [R.alloc(f"Q2{i}", 2, 2) for i in range(2)]
    vK1 = [R.alloc(f"K1{i}", 4, 4) for i in range(2)]
    vK2 = [R.alloc(f"K2{i}", 2, 2) for i in range(2)]
    vVa = [R.alloc(f"Va{i}", 4, 4) for i in range(2)]
    vVb = [R.alloc(f"Vb{i}", 4, 4) for i in range(2)]
    vS = [R.alloc(f"S{i}", 16, 4) for i in range(4)]
    vO = [R.alloc(f"O{i}", 16, 4) for i in range(2)]
    vIdx = R.alloc("idx"); vLane = R.alloc("lane")
    vAK1 = R.alloc("AK1"); vAK2 = R.alloc("AK2"); vAV = R.alloc("AV")
    vM = R.alloc("M"); vL16 = R.alloc("L16"); vL4 = R.alloc("L4"); vGV = R.alloc("GV")
    vL32 = R.alloc("l32"); vHalf = R.alloc("half"); vTok = R.alloc("tok"); vG4 = R.alloc("g4")
    vAK1s = R.alloc("AK1s"); vAK2s = R.alloc("AK2s"); vAVs = R.alloc("AVs"); vSt = R.alloc("stamp")
    vEXo = R.alloc("EXo"); vEXp = R.alloc("EXp"); vSM = R.alloc("SM"); vSTl = R.alloc("STl")
    vQA = [vM] + [R.alloc(f"QA{i}") for i in range(3)]
    NV = R.next
    BIG = vQ1[0]
    BIGN = vO[1] + 16 - BIG

    A.raw(kernel_header(name))
    class VSt:
        def start(self):
            if stamp: A(f"s_memrealtime s[100:101]\ns_memtime s[94:95]\ns_waitcnt lgkmcnt(0)\nv_mov_b32 v{vSt}, 0\nv_writelane_b32 v{vSt}, s100, 0")
        def mark(self, i):
            if stamp: A(f"s_memtime s[92:93]\ns_waitcnt lgkmcnt(0)\ns_sub_u32 s92, s92, s94\nv_writelane_b32 v{vSt}, s92, {i}")
        def dump(self):
            if stamp:
                A("s_waitcnt vmcnt(0)")
                self.mark(15)
                A(f"""
                s_memrealtime s[92:93]
                s_waitcnt lgkmcnt(0)
                s_sub_u32 s92, s92, s100
                v_writelane_b32 v{vSt}, s92, 1
                s_mul_i32 s92, s2, 9
                s_add_u32 s92, s92, s{sWave}
                s_lshl_b32 s92, s92, 7
                s_add_u32 s92, s92, 0x780000
                s_mov_b64 exec, 0xffffffff
                buffer_store_dword v{vSt}, v{vL4}, {wsd}, s92 offen
                """)
    ST = VSt()
    ST.start()
    A(f"""
    s_cmp_ge_u32 s2, 256
    s_cbranch_scc1 L_end
    s_load_dwordx16 s[40:55], s[0:1], 0
    s_load_dwordx8 s[56:63], s[0:1], 64
    s_load_dwordx4 s[64:67], s[0:1], 96
    """)
    if CPF:
        A(f"s_getpc_b64 s[{sA}:{sA+1}]")
        A.label("L_pc")
        A(f"""
        s_bfe_u32 s{sT}, s2, 0x20003
        s_min_u32 s{sT}, s{sT}, 2
        s_mul_i32 s{sT}, s{sT}, 9216
        v_lshl_add_u32 v{vT+5}, v0, 4, s{sT}
        v_min_u32 v{vT+5}, L_code_end-L_pc-16, v{vT+5}
        global_load_dwordx4 {v(BIG+120,4)}, v{vT+5}, s[{sA}:{sA+1}]
        """)
    A(f"""
    v_lshrrev_b32 v{vT}, 6, v0
    v_and_b32 v{vLane}, 63, v0
    v_readfirstlane_b32 s{sWave}, v{vT}
    v_and_b32 v{vL32}, 31, v0
    v_lshrrev_b32 v{vHalf}, 5, v{vLane}
    v_and_b32 v{vTok}, 15, v0
    v_lshrrev_b32 v{vG4}, 4, v{vLane}
    v_lshlrev_b32 v{vL16}, 4, v{vLane}
    v_lshlrev_b32 v{vL4}, 2, v{vLane}
    s_and_b32 s{sG}, s2, 7
    s_lshl_b32 s{sG}, s{sG}, 2
    s_lshr_b32 s{sT}, s2, 6
    s_add_u32 s{sG}, s{sG}, s{sT}             ; group 0..31
    s_bfe_u32 s{sM}, s2, 0x30003
    s_and_b32 s{sT}, s{sM}, 1
    s_lshl_b32 s{sTT}, s{sG}, 1
    s_add_u32 s{sTT}, s{sTT}, s{sT}
    s_lshr_b32 s{sHG}, s{sM}, 1
    s_lshl_b32 s{sFid}, s{sG}, 3
    s_add_u32 s{sFid}, s{sFid}, s{sM}
    s_mov_b32 s{sLo32}, -1
    s_mov_b32 s{sLo32+1}, 0
    s_lshr_b32 s{sT}, s{sWave}, 2
    s_xor_b32 s{sT}, s{sT}, s{sHG}
    s_xor_b32 s{sT}, s{sT}, 1
    s_and_b32 s{sT}, s{sT}, 1
    s_lshl_b32 s{sT}, s{sT}, 2
    s_and_b32 s{sT2}, s{sWave}, 3
    s_add_u32 s{sXl}, s{sT}, s{sT2}
    s_lshl_b32 s{sT}, s{sXl}, 2
    v_add_u32 v{vT+6}, s{sT}, v{vG4}
    v_and_b32 v{vT+1}, 15, v{vT+6}
    v_xor_b32 v{vT+1}, v{vT+1}, v{vTok}
    v_mul_u32_u24 v{vT+6}, 1280, v{vT+6}
    v_lshl_add_u32 v{vT+6}, v{vT+1}, 4, v{vT+6}
    s_mul_i32 s{sXs}, s{sTT}, {32*1280}
    s_lshl_b32 s{sXl}, s{sXl}, 10
    s_waitcnt lgkmcnt(0)
    """)
    ST.mark(22)
    if TLBW:
        touch = [(pX, 0), (pX, 0x200000), (pWQ, 0), (pWK, 0), (pWV, 0), (pWS, WS_KV), (pDBG, 0), (pWS, 0x300000), (pWS, 0x400000),
                 (pWO, 0), (pOUT, 0), (pOUT, 0x200000), (pWG, 0), (pWU, 0), (pWD, 0), (pWR, 0), (pGW, 0)][:TLBW]
        A(f"s_cmp_lg_u32 s{sWave}, 8\ns_cbranch_scc1 L_notouch")
        A(f"v_mov_b32 v{BIG+124}, s{pX}\nv_mov_b32 v{BIG+125}, s{pX+1}")
        for i, (p, off) in enumerate(touch):
            if off:
                A(f"s_add_u32 s{sT}, s{p}, {off}\ns_addc_u32 s{sT2}, s{p+1}, 0")
                A(f"v_writelane_b32 v{BIG+124}, s{sT}, {i}\nv_writelane_b32 v{BIG+125}, s{sT2}, {i}")
            else:
                A(f"v_writelane_b32 v{BIG+124}, s{p}, {i}\nv_writelane_b32 v{BIG+125}, s{p+1}, {i}")
        A(f"global_load_ubyte v{BIG+126}, {v(BIG+124,2)}, off")
        A.label("L_notouch")
    srd(sXD, pX, 2048*1280)
    def xdma():
        for cb in range(5):
            A(f"s_add_u32 m0, s{sXl}, {XT + cb*8192 - cb*256}")
            A("s_nop 0")
            A(f"buffer_load_dwordx4 v{vT+6}, {xd}, s{sXs} offen offset:{cb*256} lds")
    A(f"""
    s_cmp_ge_u32 s{sHG}, 2
    s_cselect_b32 s{sMD}, s{pWV}, s{pWK}
    s_cselect_b32 s{sMD+1}, s{pWV+1}, s{pWK+1}
    s_mov_b32 s{sMD+2}, 25600
    s_mov_b32 s{sMD+3}, 0x00020000
    s_sub_u32 s{sT}, s{sWave}, 4
    s_cmp_lt_u32 s{sT}, 4
    s_cbranch_scc0 L_nox1
    """)
    xdma()
    A("s_branch L_first_done")
    A.label("L_nox1")
    A(f"""
    s_min_u32 s{sT}, s{sWave}, 4
    s_mul_i32 s{sT}, s{sT}, 5120
    s_add_u32 m0, s{sT}, {WK}
    s_add_u32 s{sT2}, s{sT}, 4096
    """)
    for j in range(4):
        A(f"buffer_load_dwordx4 v{vL16}, {md}, s{sT} offen offset:{j*1024} lds")
    A(f"""
    s_add_u32 m0, s{sT2}, {WK}
    s_nop 0
    buffer_load_dwordx4 v{vL16}, {md}, s{sT2} offen lds
    """)
    if XE == 2:
        A(f"s_cmp_eq_u32 s{sWave}, 8\ns_cbranch_scc1 L_first_done")
        xdma()
    A.label("L_first_done")
    srd(sWSD, pWS, WS_SIZE)
    A(f"""
    s_cmp_eq_u32 s{sWave}, 8
    s_cbranch_scc1 L_helper
    """)
    sPart, sHl, sStM, sStT, sOFs, sE2, sGs = 81, 82, 83, 84, 85, 86, 87
    sIter, sDelta = 88, 89
    def sig(val):
        A(f"""
        v_mov_b32 v{vT}, {CNT}
        v_mov_b32 v{vT+1}, {val}
        s_mov_b64 exec, 1
        ds_add_u32 v{vT}, v{vT+1} offset:4
        s_mov_b64 exec, -1
        """)
    def await_(lab, shift, target):
        A(f"s_mov_b32 s{sT2}, 0")
        A.label(f"L_aw{lab}")
        A(f"""
        ds_read_b32 v{vT+1}, v{vT} offset:4
        s_add_u32 s{sT2}, s{sT2}, 1
        s_cmp_gt_u32 s{sT2}, {SPIN_MAX*8}
        s_waitcnt lgkmcnt(0)
        s_cbranch_scc1 L_aw{lab}_done
        v_readfirstlane_b32 s{sT}, v{vT+1}
        s_nop 0
        s_bfe_u32 s{sT}, s{sT}, {hex(0x80000 | shift)}
        s_cmp_eq_u32 s{sT}, {target}
        s_cbranch_scc1 L_aw{lab}_done
        s_sleep 1
        s_branch L_aw{lab}
        """)
        A.label(f"L_aw{lab}_done")
    def zinit():
        for q in range(2):
            for i in range(16):
                A(f"v_mov_b32 v{vO[q]+i}, 0")
        for i in range(8, 16):
            A(f"v_mov_b32 v{vS[3]+i}, 0")
    def setup():
        A(f"""
        s_and_b32 s{sPart}, s{sWave}, 1
        v_lshlrev_b32 v{vT+3}, 4, v{vL32}
        v_mul_u32_u24 v{vGV}, 336, v{vHalf}
        v_add_u32 v{vGV}, v{vGV}, v{vT+3}
        v_cmp_lt_u32 vcc, 20, v{vL32}
        v_mov_b32 v{vT+3}, 0x1000000
        s_mul_i32 s{sT2}, s{sPart}, {TILE}
        v_cndmask_b32 v{vGV}, v{vGV}, v{vT+3}, vcc
        v_add_u32 v{vAK1}, s{sT2}, v{vL16}
        v_add_u32 v{vAK2}, s{sT2}, v{vL4}
        v_add_u32 v{vAV}, s{sT2}, v{vGV}
        s_mul_i32 s{sT}, s{sWave}, 40
        s_xor_b32 s{sT2}, s{sWave}, 1
        s_mul_i32 s{sT2}, s{sT2}, 40
        v_mul_u32_u24 v{vT}, {QP}, v{vL32}
        v_add_u32 v{vT}, {QX}, v{vT}
        v_lshl_add_u32 v{vT+1}, v{vHalf}, 4, v{vT}       ; Q1 part
        v_lshl_add_u32 v{vT+2}, v{vHalf}, 2, v{vT}       ; Q2 part
        v_add_u32 v{vQA[0]}, s{sT}, v{vT+1}
        v_add_u32 v{vQA[1]}, s{sT}, v{vT+2}
        v_add_u32 v{vQA[2]}, s{sT2}, v{vT+1}
        v_add_u32 v{vQA[3]}, s{sT2}, v{vT+2}
        v_add_u32 v{vAK1s}, {14*TILE}, v{vAK1}
        v_add_u32 v{vAK2s}, {14*TILE}, v{vAK2}
        v_add_u32 v{vAVs}, {14*TILE}, v{vAV}
        v_mov_b32 v{vIdx}, 0xdddddddd
        s_mul_i32 s{sT}, s{sWave}, 3072
        s_xor_b32 s{sT2}, s{sWave}, 1
        s_mul_i32 s{sT2}, s{sT2}, 3072
        s_add_u32 s{sT}, s{sT}, {EXA}
        s_add_u32 s{sT2}, s{sT2}, {EXA}
        v_add_u32 v{vEXo}, s{sT}, v{vL16}
        v_add_u32 v{vEXp}, s{sT2}, v{vL16}
        s_lshr_b32 s{sHl}, s{sWave}, 2             ; ph
        s_mul_i32 s{sT2}, s{sHl}, 10240
        s_lshr_b32 s{sT}, s{sHG}, 1
        s_mul_i32 s{sT}, s{sT}, 5120
        s_add_u32 s{sT2}, s{sT2}, s{sT}
        s_and_b32 s{sT}, s{sHG}, 1
        s_lshl_b32 s{sT}, s{sT}, 2
        s_and_b32 s{sGs}, s{sWave}, 3
        s_add_u32 s{sT}, s{sT}, s{sGs}
        s_lshl_b32 s{sStM}, s{sT}, 9
        s_add_u32 s{sStM}, s{sStM}, s{sT2}
        s_lshr_b32 s{sT}, s{sT}, 1
        s_lshl_b32 s{sT}, s{sT}, 8
        s_add_u32 s{sStT}, s{sT2}, s{sT}
        s_lshl_b32 s{sT}, s{sPart}, 3
        s_add_u32 s{sStT}, s{sStT}, s{sT}
        s_add_u32 s{sStT}, s{sStT}, 4096
        s_mul_i32 s{sT}, s{sTT}, {2*20480}
        s_add_u32 s{sT}, s{sT}, {WS_OF}
        s_add_u32 s{sStM}, s{sStM}, s{sT}
        s_add_u32 s{sStT}, s{sStT}, s{sT}
        v_lshrrev_b32 v{vSTl}, 4, v{vL32}
        v_mul_u32_u24 v{vSTl}, 20480, v{vSTl}
        v_lshl_add_u32 v{vSTl}, v{vTok}, 4, v{vSTl}
        v_lshl_add_u32 v{vSM}, v{vHalf}, 8, v{vSTl}
        s_and_b32 s{sT}, s{sWave}, 3
        s_lshl_b32 s{sT2}, s{sG}, 2
        s_add_u32 s{sT2}, s{sT2}, s{sT}
        s_mul_i32 s{sOFs}, s{sT2}, 20480
        s_add_u32 s{sOFs}, s{sOFs}, {WS_OF}
        s_mul_i32 s{sE2}, s{sT2}, {16*1280}
        s_mul_i32 s{sT2}, s{sM}, 160
        s_add_u32 s{sE2}, s{sE2}, s{sT2}
        s_mov_b32 s{sIter}, 0
        """)
        srd(sDD, pOUT, 2048*1280)
    setup()
    ST.mark(23)
    A(f"""
    s_cmp_eq_u32 s{sWave}, 4
    s_cbranch_scc1 L_rgw
    s_sub_u32 s{sT}, s{sWave}, 5
    s_cmp_lt_u32 s{sT}, 2
    s_cbranch_scc1 L_kvw
    """)

    vXA = BIG
    vTRA = BIG + 8; vSRC = BIG + 10
    vAcc = BIG + 16
    sB, sDl, sRing, sSo, sQc = sA, sA + 5, sA + 10, sA + 11, sA + 12
    sPb, sH0, sH1 = 96, 97, 98
    srd(sWD, pWQ, 640*1280)
    A(f"""
    ; cb0 = ((id>>6)*2 + (m&1)) % 5
    s_lshr_b32 s{sT}, s2, 6
    s_lshl_b32 s{sT}, s{sT}, 1
    s_and_b32 s{sT2}, s{sM}, 1
    s_add_u32 s{sT}, s{sT}, s{sT2}
    s_sub_u32 s{sT2}, s{sT}, 5
    s_cmp_ge_u32 s{sT}, 5
    s_cselect_b32 s{sT}, s{sT2}, s{sT}
    s_cselect_b32 s{sPb}, 1, 0
    s_min_u32 s{sRing}, s{sWave}, 4
    s_lshl_b32 s{sRing}, s{sRing}, 14
    s_add_u32 s{sRing}, s{sRing}, {RING}
    s_lshl_b32 s{sDl}, s{sT}, 13
    s_add_u32 s{sDl}, s{sDl}, {XT}
    s_and_b32 s{sQc}, s{sHG}, 1
    s_cmp_eq_u32 s{sWave}, 7
    s_cbranch_scc1 L_qn
    """)
    cq = math.log2(math.e) / math.sqrt(20.0)
    def qproj(wide):
        if wide:
            vFR = [BIG + 48 + 24*i for i in range(3)]
            A(f"""
            s_lshl_b32 s{sQc}, s{sQc}, 6
            s_lshr_b32 s{sT2}, s{sWave}, 1
            s_lshl_b32 s{sT2}, s{sT2}, 7
            s_add_u32 s{sQc}, s{sQc}, s{sT2}
            s_mul_i32 s{sSo}, s{sHG}, 320
            s_add_u32 s{sSo}, s{sSo}, s{sQc}
            s_and_b32 s{sT2}, s{sWave}, 1
            s_mul_i32 s{sB}, s{sT2}, 81920
            s_add_u32 s{sSo}, s{sSo}, s{sB}
            s_lshl_b32 s{sT2}, s{sT2}, 6
            s_add_u32 s{sQc}, s{sQc}, s{sT2}
            v_lshrrev_b32 v{vSRC}, 3, v{vLane}
            v_mul_u32_u24 v{vSRC}, 1280, v{vSRC}
            v_and_b32 v{vT+1}, 7, v{vLane}
            v_and_b32 v{vT+2}, 1, v{vG4}
            v_lshlrev_b32 v{vT+2}, 2, v{vT+2}
            v_xor_b32 v{vT+1}, v{vT+1}, v{vT+2}
            v_lshl_add_u32 v{vSRC}, v{vT+1}, 4, v{vSRC}
            """)
            step, half = 8*1280 - 1024, 40960
        else:
            vFR = [BIG + 32 + 32*i for i in range(3)]
            A(f"""
            s_xor_b32 s{sQc}, s{sQc}, 1
            s_lshl_b32 s{sQc}, s{sQc}, 8
            s_mul_i32 s{sSo}, s{sHG}, 320
            s_add_u32 s{sSo}, s{sSo}, s{sQc}
            v_lshrrev_b32 v{vSRC}, 2, v{vLane}
            v_mul_u32_u24 v{vSRC}, 1280, v{vSRC}
            v_and_b32 v{vT+1}, 3, v{vLane}
            v_lshl_add_u32 v{vSRC}, v{vT+1}, 4, v{vSRC}
            """)
            step, half = 16*1280 - 1024, 81920
        assert vFR[2] + (24 if wide else 32) <= BIG + BIGN
        for k in range(1, 4):
            A(f"v_add_u32 v{vSRC+k}, {k*step}, v{vSRC}")
        A(f"s_mul_i32 s{sH0}, s{sPb}, {half}")
        A(f"s_sub_u32 s{sH1}, {half}, s{sH0}")
        A(f"s_mov_b32 s{sT2}, 8192")
        for b in range(5):
            A(f"s_mul_i32 s{sB+b}, s{sT}, {128*1280}")
            A(f"s_add_u32 s{sB+b}, s{sB+b}, s{sSo}")
            if b < 4:
                A(f"""
                s_add_u32 s{sT}, s{sT}, 1
                s_cmp_eq_u32 s{sT}, 5
                s_cselect_b32 s{sT}, 0, s{sT}
                s_cselect_b32 s{sDl+b+1}, {(-32768) & 0xffffffff}, s{sT2}
                """)
        def qdma(j):
            A(f"s_add_u32 m0, s{sRing}, {(j % 4)*4096}")
            A(f"s_add_u32 s{sSo}, s{sB + j//2}, s{sH1 if j % 2 else sH0}")
            for st in range(4):
                A(f"buffer_load_dwordx4 v{vSRC+st}, {wd}, s{sSo} offen offset:{st*1024} lds")
        A(f"""
        v_and_b32 v{vT+1}, 15, v{vL32}
        s_lshl_b32 s{sT}, s{sPb}, {2 if wide else 3}
        v_xor_b32 v{vT+1}, s{sT}, v{vT+1}
        v_lshlrev_b32 v{vT+2}, 8, v{vL32}
        v_add_u32 v{vT+2}, s{sDl}, v{vT+2}
        """)
        if wide:
            A(f"""
            s_and_b32 s{sT2}, s{sWave}, 1
            s_lshl_b32 s{sT}, s{sT2}, 3
            v_add_u32 v{vT+4}, s{sT}, v{vHalf}
            s_lshl_b32 s{sT2}, s{sT2}, 6
            """)
            for st in range(4):
                A(f"v_add_u32 v{vT+3}, {2*st}, v{vT+4}")
                A(f"v_xor_b32 v{vT+3}, v{vT+3}, v{vT+1}")
                A(f"v_lshl_add_u32 v{vXA+st}, v{vT+3}, 4, v{vT+2}")
            A(f"""
            ; tr addr: (8*(G/2) + r)*128 + ((kh*64 + (G%2)*32 + (i%4)*8) ^ (64*(r>>1)))
            v_lshrrev_b32 v{vT+1}, 2, v{vTok}
            v_lshl_add_u32 v{vT+1}, v{vHalf}, 3, v{vT+1}
            v_lshlrev_b32 v{vT+1}, 7, v{vT+1}
            v_and_b32 v{vT+2}, 1, v{vG4}
            v_lshl_add_u32 v{vT+1}, v{vT+2}, 5, v{vT+1}
            v_and_b32 v{vT+2}, 3, v{vLane}
            v_lshl_add_u32 v{vT+1}, v{vT+2}, 3, v{vT+1}
            v_lshrrev_b32 v{vT+2}, 3, v{vTok}
            v_lshl_add_u32 v{vT+1}, v{vT+2}, 6, v{vT+1}
            v_xor_b32 v{vT+1}, s{sT2}, v{vT+1}
            v_add_u32 v{vTRA}, s{sRing}, v{vT+1}
            v_xor_b32 v{vTRA+1}, 64, v{vTRA}
            """)
        else:
            for st in range(8):
                A(f"v_add_u32 v{vT+3}, {2*st}, v{vHalf}")
                A(f"v_xor_b32 v{vT+3}, v{vT+3}, v{vT+1}")
                A(f"v_lshl_add_u32 v{vXA+st}, v{vT+3}, 4, v{vT+2}")
            A(f"""
            v_lshrrev_b32 v{vT+1}, 2, v{vTok}
            v_lshl_add_u32 v{vT+1}, v{vHalf}, 3, v{vT+1}
            v_lshlrev_b32 v{vT+1}, 6, v{vT+1}
            v_and_b32 v{vT+2}, 1, v{vG4}
            v_lshl_add_u32 v{vT+1}, v{vT+2}, 5, v{vT+1}
            v_and_b32 v{vT+2}, 3, v{vLane}
            v_lshl_add_u32 v{vT+1}, v{vT+2}, 3, v{vT+1}
            v_add_u32 v{vTRA}, s{sRing}, v{vT+1}
            """)
        if wide and XE == 1: xdma()
        for j in range(QPRE): qdma(j)
        ST.mark(24)
        A("s_barrier")
        A(f"s_waitcnt vmcnt({4*QPRE + (5 if (wide and XE) else 0)})")
        sig(1 if wide else 0x101)
        if wide and not XE:
            xdma()
        for j in range(QPRE, QP2): qdma(j)
        ST.mark(25)
        if wide:
            A(f"s_waitcnt vmcnt({4*QP2 if XE else 4*(QP2-QPRE)})")
            sig(0x100)
        A(f"""
        v_mov_b32 v{vT+5}, {CNT}
        v_mov_b32 v{vT+6}, 256
        """)
        for j in range(QP2, 4): qdma(j)
        await_("qw" if wide else "qn", 8, 8)
        ST.mark(2)
        def qreads(j, st):
            if wide:
                t, tl = st // 2, st % 2
                f = vFR[j % 3] + 12*t
                if tl == 0:
                    xa = vXA + (j % 2)*2 + t
                    if j >= 2: A(f"v_add_u32 v{xa}, s{sDl + j//2}, v{xa}")
                    A(f"ds_read_b128 {v(f+8,4)}, v{xa}")
                A(f"ds_read_b64_tr_b16 {v(f+4*tl,2)}, v{vTRA+tl} offset:{(j%4)*4096 + t*2048}")
                A(f"ds_read_b64_tr_b16 {v(f+4*tl+2,2)}, v{vTRA+tl} offset:{(j%4)*4096 + t*2048 + 512}")
            else:
                f = vFR[j % 3] + 8*st
                xa = vXA + (j % 2)*4 + st
                if j >= 2: A(f"v_add_u32 v{xa}, s{sDl + j//2}, v{xa}")
                A(f"ds_read_b64_tr_b16 {v(f,2)}, v{vTRA} offset:{(j%4)*4096 + st*1024}")
                A(f"ds_read_b64_tr_b16 {v(f+2,2)}, v{vTRA} offset:{(j%4)*4096 + st*1024 + 256}")
                A(f"ds_read_b128 {v(f+4,4)}, v{xa}")
        nr = 10 if wide else 12
        A("s_waitcnt vmcnt(12)")
        for st in range(4): qreads(0, st)
        A("s_waitcnt vmcnt(8)")
        for st in range(4): qreads(1, st)
        for j in range(10):
            if j in (1, 3, 5, 8): ST.mark(28 + (1, 3, 5, 8).index(j))
            A(f"s_waitcnt lgkmcnt({nr if j < 9 else 0})")
            if j + 4 < 10: qdma(j + 4)
            if j == QTRIG:
                A(f"s_mov_b64 exec, 1\nds_add_u32 v{vT+5}, v{vT+6}\ns_mov_b64 exec, -1")
            if j + 2 < 10:
                A(f"s_waitcnt vmcnt({4*(min(10, j+5) - (j+3))})")
            for st in range(4):
                if wide:
                    t, tl = st // 2, st % 2
                    f = vFR[j % 3] + 12*t
                    acc = vAcc + 16*tl
                    c = "0" if (j == 0 and t == 0) else v(acc, 16)
                    A(f"v_mfma_f32_32x32x16_bf16 {v(acc,16)}, {v(f+4*tl,4)}, {v(f+8,4)}, {c}")
                else:
                    f = vFR[j % 3] + 8*st
                    c = "0" if (j == 0 and st == 0) else v(vAcc, 16)
                    A(f"v_mfma_f32_32x32x16_bf16 {v(vAcc,16)}, {v(f,4)}, {v(f+4,4)}, {c}")
                if j + 2 < 10: qreads(j + 2, st)
        o = vFR[1]
        A(f"""
        s_mov_b32 s{sT}, {hex(fbits(cq))}
        v_mul_u32_u24 v{vT}, {QP}, v{vL32}
        v_lshl_add_u32 v{vT}, v{vHalf}, 3, v{vT}
        s_add_u32 s{sT2}, s{sQc}, {QX}
        v_add_u32 v{vT}, s{sT2}, v{vT}
        v_add_u32 v{vT+1}, s{sRing}, v{vL16}
        s_xor_b32 s{sT2}, s{sWave}, 1
        s_lshl_b32 s{sT2}, s{sT2}, 14
        s_add_u32 s{sT2}, s{sT2}, {RING}
        v_add_u32 v{vT+2}, s{sT2}, v{vL16}
        s_nop 2
        """)
        if wide:
            for k in range(4):
                A(f"ds_write_b128 v{vT+1}, {v(vAcc+16+4*k,4)} offset:{1024*k}")
            ST.mark(3)
            zinit()
            A("s_waitcnt lgkmcnt(0)")
            A("s_barrier                                        ; F2a")
            for k in range(4):
                A(f"ds_read_b128 {v(vAcc+16+4*k,4)}, v{vT+2} offset:{1024*k}")
            for k in range(4):
                A(f"s_waitcnt lgkmcnt({3-k})")
                for r in range(4):
                    A(f"v_add_f32 v{vAcc+4*k+r}, v{vAcc+4*k+r}, v{vAcc+16+4*k+r}")
        for i in range(16):
            A(f"v_mul_f32 v{vAcc+i}, s{sT}, v{vAcc+i}")
        for a in range(4):
            A(f"v_cvt_pk_bf16_f32 v{o+2*a}, v{vAcc+4*a}, v{vAcc+4*a+1}")
            A(f"v_cvt_pk_bf16_f32 v{o+2*a+1}, v{vAcc+4*a+2}, v{vAcc+4*a+3}")
            A(f"ds_write_b64 v{vT}, {v(o+2*a,2)} offset:{16*a}")
        A("s_branch L_f2" if wide else "s_branch L_f2a")
    qproj(True)
    A.label("L_qn")
    A("s_setprio 1")
    qproj(False)

    A.label("L_kvw")
    A("s_setprio 3")
    vNc = BIG + 104
    vXB = BIG
    vTE = BIG + 8
    vAc2 = BIG + 12
    vF = BIG + 20
    A(f"""
    s_and_b32 s{sT}, s{sHG}, 1
    s_lshl_b32 s{sT}, s{sT}, 12
    s_add_u32 s{sT}, s{sT}, {XT}
    v_lshlrev_b32 v{vT+2}, 8, v{vTok}
    v_add_u32 v{vT+2}, s{sT}, v{vT+2}
    """)
    for k in range(4):
        A(f"v_add_u32 v{vT+3}, {4*k}, v{vG4}")
        A(f"v_xor_b32 v{vT+3}, v{vT+3}, v{vTok}")
        A(f"v_lshl_add_u32 v{vXB+k}, v{vT+3}, 4, v{vT+2}")
    A(f"""
    v_lshrrev_b32 v{vT}, 2, v{vTok}
    v_lshl_add_u32 v{vT}, v{vG4}, 3, v{vT}
    v_mul_u32_u24 v{vT}, 40, v{vT}
    v_and_b32 v{vT+1}, 3, v{vLane}
    v_lshl_add_u32 v{vT}, v{vT+1}, 3, v{vT}
    s_sub_u32 s{sT}, s{sWave}, 5
    s_lshl_b32 s{sT}, s{sT}, 5
    s_add_u32 s{sT}, s{sT}, {WK}
    v_add_u32 v{vTE}, s{sT}, v{vT}
    s_lshl_b32 s{sT}, s{sFid}, 5
    s_lshl_b32 s{sT2}, s{sWave}, 3
    s_add_u32 s{sT}, s{sT}, s{sT2}
    s_add_u32 s{sT}, s{sT}, {WS_FLAG - 40}
    v_mov_b32 v{vNc+3}, s{sT}
    """)
    srd(sKVD, pDBG, 256)
    A(f"v_mov_b32 v{vNc+2}, 0")
    A("s_barrier                                        ; F0")
    A("s_waitcnt vmcnt(0)")
    ST.mark(25)
    sig(0x101)
    A(f"buffer_load_dwordx2 {v(vNc,2)}, v{vNc+2}, {kvd}, 0 offen sc1")
    await_("kv", 0, 9)
    ST.mark(2)
    def kv_reads(bt):
        for j in range(5):
            ks = 5*bt + j
            f = vF + (bt % 2)*40 + 8*j
            A(f"ds_read_b64_tr_b16 {v(f,2)}, v{vTE} offset:{ks*1280}")
            A(f"ds_read_b64_tr_b16 {v(f+2,2)}, v{vTE} offset:{ks*1280+160}")
            A(f"ds_read_b128 {v(f+4,4)}, v{vXB + ks%4} offset:{(ks//4)*8192}")
    def kv_main(isV):
        kv_reads(0)
        for bt in range(4):
            A("s_waitcnt lgkmcnt(0)")
            if bt < 3: kv_reads(bt + 1)
            for j in range(5):
                f = vF + (bt % 2)*40 + 8*j
                a, b = (v(f+4,4), v(f,4)) if isV else (v(f,4), v(f+4,4))
                c = "0" if (bt == 0 and j == 0) else v(vAc2, 4)
                A(f"v_mfma_f32_16x16x32_bf16 {v(vAc2,4)}, {a}, {b}, {c}")
    A(f"""
    s_mul_i32 s{sA}, s{sTT}, {TILE}
    s_add_u32 s{sA}, s{sA}, {WS_KV}
    s_and_b32 s{sA+1}, s{sHG}, 1                     ; th
    s_cmp_ge_u32 s{sHG}, 2
    s_cbranch_scc1 L_vw
    """)
    kv_main(False)
    A(f"""
    s_lshl_b32 s{sT2}, s{sA+1}, 4
    v_add_u32 v{vT}, s{sT2}, v{vTok}              ; kk
    v_lshl_add_u32 v{vT+2}, v{vHalf}, 5, v{vT}
    v_lshlrev_b32 v{vT+2}, 4, v{vT+2}
    v_and_b32 v{vT+1}, 1, v{vG4}
    v_lshl_add_u32 v{vT+2}, v{vT+1}, 3, v{vT+2}   ; K1 offset
    v_lshlrev_b32 v{vT+3}, 2, v{vT}               ; K2 offset
    s_nop 1
    v_cvt_pk_bf16_f32 v{vF}, v{vAc2}, v{vAc2+1}
    v_cvt_pk_bf16_f32 v{vF+1}, v{vAc2+2}, v{vAc2+3}
    s_cmp_eq_u32 s{sWave}, 6
    s_cbranch_scc1 L_k2
    buffer_store_dwordx2 {v(vF,2)}, v{vT+2}, {wsd}, s{sA} offen sc1
    s_branch L_pub
    """)
    A.label("L_k2")
    A(f"""
    s_mov_b64 exec, 0xffff
    buffer_store_dword v{vF}, v{vT+3}, {wsd}, s{sA} offen offset:{OFF_K2} sc1
    buffer_store_dword v{vF+1}, v{vT+3}, {wsd}, s{sA} offen offset:{OFF_K2+128} sc1
    s_mov_b64 exec, -1
    s_branch L_pub
    """)
    A.label("L_vw")
    kv_main(True)
    A(f"""
    s_mul_i32 s{sT2}, s{sA+1}, 672
    s_add_u32 s{sA}, s{sA}, s{sT2}
    v_mul_u32_u24 v{vT+2}, 336, v{vHalf}
    v_lshl_add_u32 v{vT+2}, v{vTok}, 4, v{vT+2}
    v_and_b32 v{vT+1}, 1, v{vG4}
    v_lshl_add_u32 v{vT+2}, v{vT+1}, 3, v{vT+2}   ; ha*336 + dv*16 + (g%2)*8
    v_mov_b32 v{vT+4}, 0x3f803f80
    v_cmp_eq_u32 vcc, 4, v{vTok}
    v_cvt_pk_bf16_f32 v{vF}, v{vAc2}, v{vAc2+1}
    v_cvt_pk_bf16_f32 v{vF+1}, v{vAc2+2}, v{vAc2+3}
    s_cmp_eq_u32 s{sWave}, 6
    s_cbranch_scc1 L_v2
    buffer_store_dwordx2 {v(vF,2)}, v{vT+2}, {wsd}, s{sA} offen offset:{OFF_VA} sc1
    s_branch L_pub
    """)
    A.label("L_v2")
    A(f"""
    v_cndmask_b32 v{vF}, v{vF}, v{vT+4}, vcc
    v_cndmask_b32 v{vF+1}, v{vF+1}, v{vT+4}, vcc
    v_cmp_gt_u32 vcc, 5, v{vTok}
    s_and_saveexec_b64 s[{sMask}:{sMask+1}], vcc
    buffer_store_dwordx2 {v(vF,2)}, v{vT+2}, {wsd}, s{sA} offen offset:{OFF_VA+256} sc1
    s_mov_b64 exec, -1
    s_branch L_pub
    """)
    A.label("L_rgw")
    A("s_barrier                                        ; F0")
    A("s_waitcnt vmcnt(0)")
    sig(0x101)
    A(f"""
    s_cmp_lg_u32 s{sHG}, 0
    s_cbranch_scc1 L_rg_none
    """)
    for (p, off) in ((pWR, 0), (pGW, 2048)):
        srd(sMD, p, 1280)
        for h in range(2):
            A(f"s_mov_b32 m0, {RG + off}")
            A("s_nop 0")
            A(f"buffer_load_dwordx4 v{vL16}, {md}, 0 offen offset:{1024*h} lds")
    A(f"v_lshlrev_b32 v{vT+2}, 8, v{vTok}")
    A(f"v_add_u32 v{vT+2}, {XT}, v{vT+2}")
    for k in range(4):
        A(f"v_add_u32 v{vT+3}, {4*k}, v{vG4}")
        A(f"v_xor_b32 v{vT+3}, v{vT+3}, v{vTok}")
        A(f"v_lshl_add_u32 v{vXB+k}, v{vT+3}, 4, v{vT+2}")
    A(f"""
    v_cmp_eq_u32 vcc, 1, v{vTok}
    v_mov_b32 v{vT}, {RG}
    v_mov_b32 v{vT+1}, {RG+2048}
    v_cndmask_b32 v{vT}, v{vT}, v{vT+1}, vcc
    v_lshl_add_u32 v{vTE}, v{vG4}, 4, v{vT}
    """)
    A(f"v_mov_b32 v{vT}, {CNT}")
    await_("rg", 8, 8)
    ST.mark(2)
    A("s_waitcnt vmcnt(0)")
    def rg_reads(bt):
        for j in range(4):
            ks = 4*bt + j
            f = vF + (bt % 2)*48 + 12*j
            A(f"ds_read_b128 {v(f,4)}, v{vTE} offset:{ks*64}")
            A(f"ds_read_b128 {v(f+4,4)}, v{vXB + j} offset:{bt*8192}")
            A(f"ds_read_b128 {v(f+8,4)}, v{vXB + j} offset:{bt*8192+4096}")
    rg_reads(0)
    for bt in range(5):
        A("s_waitcnt lgkmcnt(0)")
        if bt < 4: rg_reads(bt + 1)
        for j in range(4):
            f = vF + (bt % 2)*48 + 12*j
            for h in range(2):
                c = "0" if (bt == 0 and j == 0) else v(vAc2+4*h, 4)
                A(f"v_mfma_f32_16x16x32_bf16 {v(vAc2+4*h,4)}, {v(f,4)}, {v(f+4+4*h,4)}, {c}")
    A(f"""
    s_lshl_b32 s{sT}, s{sTT}, 5
    v_add_u32 v{vT}, s{sT}, v{vTok}
    v_sub_u32 v{vT+1}, 2047, v{vT}
    v_lshlrev_b32 v{vT}, 2, v{vT}
    s_mov_b32 s{sT2}, {WS_G}
    s_lshl_b32 s{sT}, s{sTT}, 3
    s_add_u32 s{sT}, s{sT}, {WS_KEY}
    v_mov_b32 v{vT+4}, 0
    s_nop 1
    """)
    for h in range(2):
        r = vAc2 + 4*h; gl = r + 1; k = vT + 2; g = vT + 3
        A(f"""
        v_ashrrev_i32 v{k}, 31, v{r}
        v_or_b32 v{k}, 0x80000000, v{k}
        v_xor_b32 v{k}, v{k}, v{r}
        v_and_b32 v{k}, 0xfffff800, v{k}
        v_or_b32 v{k}, v{k}, v{vT+1}
        v_cvt_pk_bf16_f32 v{g}, v{gl}, v{gl}
        v_subrev_u32 v{vT+1}, 16, v{vT+1}
        v_max_u32_dpp v{k}, v{k}, v{k} row_shr:1 row_mask:0xf bank_mask:0xf
        v_and_b32 v{g}, 0xffff0000, v{g}
        v_mul_f32 v{g}, {NLOG2E}, v{g}
        v_max_u32_dpp v{k}, v{k}, v{k} row_shr:2 row_mask:0xf bank_mask:0xf
        v_exp_f32 v{g}, v{g}
        s_nop 0
        v_max_u32_dpp v{k}, v{k}, v{k} row_shr:4 row_mask:0xf bank_mask:0xf
        v_add_f32 v{g}, 1.0, v{g}
        v_rcp_f32 v{g}, v{g}
        v_max_u32_dpp v{k}, v{k}, v{k} row_shr:8 row_mask:0xf bank_mask:0xf
        v_cvt_pk_bf16_f32 v{g}, v{g}, v{g}
        v_and_b32 v{g}, 0xffff0000, v{g}
        s_mov_b64 exec, 0xffff
        buffer_store_dword v{g}, v{vT}, {wsd}, s{sT2} offen offset:{64*h} sc1
        s_mov_b64 exec, 0x8000
        buffer_store_dword v{k}, v{vT+4}, {wsd}, s{sT} offen offset:{4*h} sc1
        s_mov_b64 exec, -1
        """)
    A("s_waitcnt vmcnt(0)\ns_setprio 0\ns_branch L_f2a")
    A.label("L_pub")
    A(f"""
    v_mov_b32 v{vT}, {CNT}
    v_mov_b32 v{vT+1}, 1
    s_mov_b64 exec, 1
    ds_add_u32 v{vT}, v{vT+1}
    s_mov_b32 s{sT}, 0
    s_waitcnt vmcnt(0)
    v_cmp_eq_u32 vcc, 0, v{vNc}
    s_cbranch_vccz L_pub_go
    """)
    A.label("L_pub_tag")
    A(f"""
    buffer_load_dwordx2 {v(vNc,2)}, v{vNc+2}, {kvd}, 0 offen sc1
    s_add_u32 s{sT}, s{sT}, 1
    s_cmp_gt_u32 s{sT}, {SPIN_MAX}
    s_waitcnt vmcnt(0)
    s_cbranch_scc1 L_pub_go
    v_cmp_eq_u32 vcc, 0, v{vNc}
    s_cbranch_vccnz L_pub_tag
    """)
    A.label("L_pub_go")
    A(f"""
    buffer_store_dwordx2 {v(vNc,2)}, v{vNc+3}, {wsd}, 0 offen sc1
    s_mov_b64 exec, -1
    s_setprio 0
    s_branch L_f2a
    """)
    A.label("L_rg_none")
    ST.mark(2)

    A.label("L_f2a")
    A("s_setprio 0")
    ST.mark(3)
    zinit()
    A("s_barrier                                        ; F2a")
    A.label("L_f2")
    A(f"""
    s_waitcnt lgkmcnt(0)
    s_barrier
    """)
    ST.mark(4)
    if LP: A(f"s_setprio {LP}")
    A(f"""
    ds_read2_b64 {v(vQ1[0],4)}, v{vQA[0]} offset0:0 offset1:1
    ds_read_b32 v{vQ2[0]}, v{vQA[1]} offset:32
    ds_read_b128 {v(vVa[1],4)}, v{vL16} offset:{OFF_K1}
    ds_read_b32 v{vVb[1]}, v{vL4} offset:{OFF_K2}
    ds_read2_b64 {v(vQ1[1],4)}, v{vQA[2]} offset0:0 offset1:1
    ds_read_b32 v{vQ2[1]}, v{vQA[3]} offset:32
    ds_read_b128 {v(vK1[0],4)}, v{vAK1} offset:{OFF_K1}
    ds_read_b32 v{vK2[0]}, v{vAK2} offset:{OFF_K2}
    ds_read_b128 {v(vVa[0],4)}, v{vAV} offset:{OFF_VA}
    ds_read_b128 {v(vVb[0],4)}, v{vAV} offset:{OFF_VB}
    ds_read_b128 {v(vK1[1],4)}, v{vAK1} offset:{2*TILE+OFF_K1}
    ds_read_b32 v{vK2[1]}, v{vAK2} offset:{2*TILE+OFF_K2}
    v_mov_b32 v{vVb[1]+1}, 0
    v_mov_b32 v{vQ2[0]+1}, 0
    v_mov_b32 v{vQ2[1]+1}, 0
    v_mov_b32 v{vK2[0]+1}, 0x3f803f80
    v_mov_b32 v{vK2[1]+1}, 0x3f803f80
    """)
    def qk(dst, k1, k2, q):
        return (f"v_mfma_f32_32x32x8_bf16 {v(dst,16)}, {v(k2,2)}, {v(vQ2[q],2)}, 0",
                f"v_mfma_f32_32x32x16_bf16 {v(dst,16)}, {v(k1,4)}, {v(vQ1[q],4)}, {v(dst,16)}")
    def set_m(m, q, t, exact):
        A(f"""
        v_mov_b32 v{t}, v{m}
        s_nop 1
        v_permlane32_swap_b32 v{m}, v{t}
        s_nop 1
        v_max_f32 v{m}, v{m}, v{t}
        v_xor_b32 v{m}, 0x80000000, v{m}
        """)
        if exact:
            A(f"""
            v_and_b32 v{t}, 0xffff0000, v{m}         ; hi
            v_sub_f32 v{t+1}, v{m}, v{t}             ; r1
            v_and_b32 v{t+2}, 0xffff0000, v{t+1}     ; mid
            v_sub_f32 v{t+1}, v{t+1}, v{t+2}         ; r2
            v_lshrrev_b32 v{t}, 16, v{t}
            v_or_b32 v{t}, v{t}, v{t+2}
            v_lshrrev_b32 v{t+1}, 16, v{t+1}
            v_cndmask_b32 v{vQ2[q]+1}, v{t+1}, v{t}, s[{sLo32}:{sLo32+1}]
            """)
        else:
            A(f"""
            v_lshrrev_b32 v{t}, 16, v{m}
            v_cndmask_b32 v{vQ2[q]+1}, 0, v{t}, s[{sLo32}:{sLo32+1}]
            """)
    def tile_max(m, S_, init):
        if init:
            A(f"v_max3_f32 v{m}, v{S_}, v{S_+1}, v{S_+2}")
            for i in range(3, 15, 2):
                A(f"v_max3_f32 v{m}, v{m}, v{S_+i}, v{S_+i+1}")
            A(f"v_max_f32 v{m}, v{m}, v{S_+15}")
        else:
            for i in range(0, 16, 2):
                A(f"v_max3_f32 v{m}, v{m}, v{S_+i}, v{S_+i+1}")
    A("s_waitcnt lgkmcnt(8)")
    a, b = qk(vS[1], vVa[1], vVb[1], 0); A(a); A(b)
    A("s_waitcnt lgkmcnt(6)")
    a, b = qk(vS[2], vVa[1], vVb[1], 1); A(a); A(b)
    A("s_nop 8")
    tile_max(vM, vS[1], True)
    set_m(vM, 0, vT, False)
    A(f"s_mov_b32 s{sT2}, {16*TILE}")
    A("s_waitcnt lgkmcnt(4)")
    a, b = qk(vS[0], vK1[0], vK2[0], 0); A(a); A(b)
    tile_max(vM, vS[2], True)
    set_m(vM, 1, vT, False)
    for i in range(4):
        A(f"v_mov_b32 v{vVb[1]+i}, 0")
    ST.mark(5)
    A.raw(".p2align 6")
    A.label("L_loop")
    for u in range(16):
        i, q = u // 2, u % 2
        X = vS[u % 4]; Y = vS[(u + 1) % 4]; Z = vS[(u - 1) % 4]
        inx, qn = (u + 1) // 2, (u + 1) % 2
        ip, qp = (u - 1) // 2, (u - 1) % 2
        e = lambda k: A(f"v_exp_f32 v{X+k}, v{X+k}")
        a, b = qk(Y, vK1[inx % 2], vK2[inx % 2], qn)
        if q == 0:
            av, o = (vAVs, 0) if u == 12 else (vAV, (2*i+2)*TILE)
            r1 = f"ds_read_b128 {v(vVb[(i+1)%2],4)}, v{av} offset:{o+OFF_VB}"
            r2 = f"ds_read_b128 {v(vVa[(i+1)%2],4)}, v{av} offset:{o+OFF_VA}"
        else:
            a1, a2, o = (vAK1s, vAK2s, 0) if u == 11 else (vAK1, vAK2, (2*i+4)*TILE)
            r1 = f"ds_read_b128 {v(vK1[i%2],4)}, v{a1} offset:{o+OFF_K1}"
            r2 = f"ds_read_b32 v{vK2[i%2]}, v{a2} offset:{o+OFF_K2}"
        e(0); e(1); A(a); e(2); e(3); e(4); e(5); A(b)
        if u == 7: A(f"s_cmp_eq_u32 s{sIter}, 0")
        if u == 14:
            A(f"s_cmp_eq_u32 s{sIter}, 2")
            A(f"s_cselect_b32 s{sDelta}, {(16*TILE - 62*TILE) & 0xffffffff}, s{sT2}")
        if u == 15:
            A(f"s_add_u32 s{sIter}, s{sIter}, 1")
            A(f"s_cmp_eq_u32 s{sIter}, 1")
        e(6); e(7); e(8); e(9)
        A(f"v_smfmac_f32_32x32x32_bf16 {v(vO[qp],16)}, {v(vVb[ip%2],4)}, {v(Z+8,8)}, v{vIdx}")
        A("s_waitcnt lgkmcnt(0)")
        A(r1)
        e(10); e(11); e(12); e(13)
        A(f"v_smfmac_f32_32x32x32_bf16 {v(vO[q],16)}, {v(vVa[i%2],4)}, {v(X,8)}, v{vIdx}")
        A(r2)
        e(14); e(15)
        if u == 7:
            A("s_cbranch_scc1 L_bar0")
            A.label("L_bar0_ret")
    A(f"""
    v_add_u32 v{vAK1}, {16*TILE}, v{vAK1}
    v_add_u32 v{vAK2}, {16*TILE}, v{vAK2}
    v_add_u32 v{vAV}, {16*TILE}, v{vAV}
    v_add_u32 v{vAK1s}, s{sDelta}, v{vAK1s}
    v_add_u32 v{vAK2s}, s{sDelta}, v{vAK2s}
    v_add_u32 v{vAVs}, s{sDelta}, v{vAVs}
    s_cbranch_scc1 L_loop
    s_cmp_eq_u32 s{sIter}, 4
    s_cbranch_scc1 L_fin
    s_waitcnt lgkmcnt(0)
    s_cmp_eq_u32 s{sIter}, 3
    s_cbranch_scc1 L_prog
    s_barrier                                        ; L3
    s_branch L_loop
    """)
    A.label("L_prog")
    A(f"""
    v_mov_b32 v{vT}, {SELA}
    v_mov_b32 v{vT+1}, 1
    s_mov_b64 exec, 1
    ds_add_u32 v{vT}, v{vT+1} offset:8
    s_mov_b64 exec, -1
    s_branch L_loop
    """)
    A.label("L_bar0")
    A("s_waitcnt lgkmcnt(0)\ns_barrier                                        ; L0\ns_branch L_bar0_ret")
    A.label("L_fin")
    ST.mark(6)
    A(f"v_smfmac_f32_32x32x32_bf16 {v(vO[1],16)}, {v(vVb[1],4)}, {v(vS[3]+8,8)}, v{vIdx}")
    A(f"""
    v_mov_b32 v{vT+5}, {SELA}
    ds_read_b32 v{vT+4}, v{vT+5} offset:4
    s_mov_b32 s{sT}, 0x5f800000             ; 2^64
    s_mov_b32 s{sIter}, 0
    s_nop 4
    s_waitcnt lgkmcnt(0)
    v_cmp_eq_u32 vcc, 0, v{vT+4}
    s_cbranch_vccz L_rdy
    """)
    A.label("L_rdy_spin")
    A(f"""
    s_sleep 1
    ds_read_b32 v{vT+4}, v{vT+5} offset:4
    s_add_u32 s{sIter}, s{sIter}, 1
    s_cmp_gt_u32 s{sIter}, {SPIN_MAX*8}
    s_cbranch_scc1 L_rdy
    s_waitcnt lgkmcnt(0)
    v_cmp_eq_u32 vcc, 0, v{vT+4}
    s_cbranch_vccnz L_rdy_spin
    """)
    A.label("L_rdy")
    A(f"""
    ds_write_b128 v{vEXo}, {v(vO[1],4)}
    v_cndmask_b32 v{vO[1]+9}, 1.0, v{vO[1]+9}, s[{sLo32}:{sLo32+1}]
    ds_write_b128 v{vEXo}, {v(vO[1]+4,4)} offset:1024
    ds_write_b128 v{vEXo}, {v(vO[1]+8,4)} offset:2048
    """)
    A.label("L_pair_spin")
    A(f"""
    ds_read_b128 {v(vS[0]+8,4)}, v{vEXp} offset:2048
    ds_read_b128 {v(vS[0],4)}, v{vEXp}
    ds_read_b128 {v(vS[0]+4,4)}, v{vEXp} offset:1024
    s_add_u32 s{sIter}, s{sIter}, 1
    s_cmp_gt_u32 s{sIter}, {SPIN_MAX*8}
    s_cbranch_scc1 L_pair
    s_waitcnt lgkmcnt(2)
    v_cmp_eq_u32 vcc, 0, v{vS[0]+9}
    s_cmp_eq_u32 vcc_hi, 0
    s_cbranch_scc1 L_pair
    {f"s_sleep {PSL}" if PSL else ""}
    s_branch L_pair_spin
    """)
    A.label("L_pair")
    A("s_waitcnt lgkmcnt(2)")
    O = vO[0]
    for i in range(8, 12):
        A(f"v_add_f32 v{O+i}, v{O+i}, v{vS[0]+i}")
    def l_bcast():
        A(f"""
        v_mov_b32 v{vT+2}, v{O+8}
        v_mov_b32 v{vT+3}, v{O+8}
        s_nop 1
        v_permlane32_swap_b32 v{vT+2}, v{vT+3}
        """)
    l_bcast()
    A("s_waitcnt lgkmcnt(0)")
    for i in range(8):
        A(f"v_add_f32 v{O+i}, v{O+i}, v{vS[0]+i}")
    A(f"v_mul_f32 v{vT}, 0, v{O}")
    A(f"v_mul_f32 v{vT+1}, 0, v{O+1}")
    for i in range(2, 12):
        A(f"v_fma_f32 v{vT + i%2}, 0, v{O+i}, v{vT + i%2}")
    A(f"""
    v_add_f32 v{vT}, v{vT}, v{vT+1}
    v_add_f32 v{vT}, v{vT}, v{vT+3}
    v_cmp_nge_f32 vcc, s{sT}, v{vT}           ; !(2^64 >= l)
    s_cbranch_vccnz L_fallback
    """)
    A.label("L_store")
    A(f"v_rcp_f32 v{vT}, v{vT+3}")
    A(f"s_mov_b32 s{sT}, 0xfffffffe")
    for i in range(12):
        A(f"v_mul_f32 v{O+i}, v{O+i}, v{vT}")
    for i in range(6):
        A(f"v_cvt_pk_bf16_f32 v{vS[0]+i}, v{O+2*i}, v{O+2*i+1}")
    for i in range(6):
        A(f"v_min_u32 v{vS[0]+i}, s{sT}, v{vS[0]+i}")
    A(f"""
    v_cmp_eq_u32 vcc, 3, v{vT+4}
    s_cbranch_vccnz L_st_fast
    buffer_store_dwordx4 {v(vS[0],4)}, v{vSM}, {wsd}, s{sStM} offen sc1
    s_mov_b64 exec, s[{sLo32}:{sLo32+1}]
    buffer_store_dwordx2 {v(vS[0]+4,2)}, v{vSTl}, {wsd}, s{sStT} offen sc1
    s_branch L_st_done
    """)
    A.label("L_st_fast")
    if stamp: A(f"v_writelane_b32 v{vSt}, 1, 13")
    A(f"""
    buffer_store_dwordx4 {v(vS[0],4)}, v{vSM}, {wsd}, s{sStM} offen
    s_mov_b64 exec, s[{sLo32}:{sLo32+1}]
    buffer_store_dwordx2 {v(vS[0]+4,2)}, v{vSTl}, {wsd}, s{sStT} offen
    """)
    A.label("L_st_done")
    A(f"""
    s_mov_b64 exec, -1
    """)
    ST.mark(8)
    A(f"""
    s_cmp_eq_u32 s{sHl}, 0
    s_cbranch_scc1 L_op
    s_barrier
    s_branch L_done
    """)
    A.label("L_op")
    vOF = 8
    vWB = [48, 68, 88]
    vAcc = 108
    vB = list(range(128, 144)) + [vQA[1], vQA[2], vQA[3], vSTl]
    vTB = [vAK1, vAK2, vAV, vGV]
    vXO, g, omg, vUP = vAK1s, vAK2s, vAVs, vEXo
    sPh = sGs
    def xloads(dst):
        A(f"buffer_load_dwordx4 {v(dst,4)}, v{vXO}, {xd}, s{sE2} offen")
        A(f"buffer_load_dwordx4 {v(dst+4,4)}, v{vXO}, {xd}, s{sE2} offen offset:64")
        A(f"buffer_load_dwordx2 {v(dst+8,2)}, v{vEXp}, {xd}, s{sE2} offen offset:128")
    A(f"""
    v_mul_u32_u24 v{vT}, 1280, v{vTok}
    v_lshl_add_u32 v{vXO}, v{vG4}, 4, v{vT}
    v_lshl_add_u32 v{vEXp}, v{vG4}, 3, v{vT}
    """)
    xloads(128)
    A(f"""
    s_lshl_b32 s{sT}, s{sWave}, 4
    v_add_u32 v{vT}, s{sT}, v{vTok}
    v_lshlrev_b32 v{vT+1}, 2, v{vT}
    v_add_u32 v{vT+1}, {GL}, v{vT+1}
    ds_read_b32 v{g}, v{vT+1}
    ds_read_b32 v{vT+6}, v{vT+5}
    v_lshrrev_b32 v{vT+1}, 2, v{vTok}
    v_and_b32 v{vT+2}, 3, v{vLane}
    v_mad_u32_u24 v{vT+3}, v{vHalf}, 12, v{vT+1}
    v_lshl_add_u32 v{vT+3}, v{vG4}, 2, v{vT+3}
    v_mad_u32_u24 v{vT+4}, v{vG4}, 40, v{vT+1}
    v_mul_u32_u24 v{vT+3}, 160, v{vT+3}
    v_mul_u32_u24 v{vT+4}, 160, v{vT+4}
    v_add_u32 v{vT+3}, {WO_L}, v{vT+3}
    v_add_u32 v{vT+4}, {WO_L}, v{vT+4}
    v_lshl_add_u32 v{vTB[0]}, v{vT+2}, 4, v{vT+3}
    v_lshl_add_u32 v{vTB[1]}, v{vT+2}, 3, v{vT+3}
    v_lshl_add_u32 v{vTB[2]}, v{vT+2}, 4, v{vT+4}
    v_lshl_add_u32 v{vTB[3]}, v{vT+2}, 3, v{vT+4}
    s_mov_b32 s{sIter}, 0
    s_mov_b32 s{sPh}, 0
    """)
    for i in range(20):
        A(f"v_mov_b32 v{vAcc+i}, 0")
    A(f"""
    s_waitcnt lgkmcnt(0)
    v_sub_f32 v{omg}, 1.0, v{g}
    v_cmp_eq_u32 s[{sMask}:{sMask+1}], v{vT+6}, v{vT}
    v_cvt_pk_bf16_f32 v{omg}, v{omg}, v{omg}
    v_and_b32 v{omg}, 0xffff0000, v{omg}
    s_waitcnt vmcnt(0)
    """)
    for i in range(9, -1, -1):
        A(f"v_and_b32 v{vB[2*i+1]}, 0xffff0000, v{128+i}")
        A(f"v_lshlrev_b32 v{vB[2*i]}, 16, v{128+i}")
    for i in range(20):
        A(f"v_mul_f32 v{vB[i]}, v{omg}, v{vB[i]}")
    def oload(k):
        so = (sOFs, sStM, sStT)[k // 4]
        A(f"buffer_load_dwordx4 {v(vOF+4*k,4)}, v{vL16}, {wsd}, s{so} offen offset:{(k%4)*1024} sc1")
    def wread(k, nt):
        for sidx in range(2):
            k5 = k % 5
            if k5 < 4: bi, off = 0, k5*6400 + sidx*1280
            else: bi, off = 2, 2560 + sidx*3200
            if nt < 4: col = (nt//2)*64 + (nt % 2)*8
            else: bi += 1; col = 128
            A(f"ds_read_b64_tr_b16 {v(vWB[k%3]+4*nt+2*sidx,2)}, v{vTB[bi]} offset:{(k//5)*25600 + off + col}")
    A.label("L_ph")
    for k in range(3):
        for nt in range(5): wread(k, nt)
    A(f"""
    s_add_u32 s{sStM}, s{sOFs}, 4096
    s_add_u32 s{sStT}, s{sOFs}, 8192
    s_cmp_eq_u32 s{sPh}, 0
    s_cbranch_scc1 L_ph_go
    s_barrier
    """)
    ST.mark(11)
    A.label("L_ph_go")
    for k in range(10): oload(k)
    for seg in range(2):
        A(f"s_waitcnt vmcnt({5 if seg == 0 else 0})")
        A.label(f"L_chk{seg}")
        f = vOF + 20*seg
        A(f"v_max3_u32 v{vT+3}, v{f}, v{f+1}, v{f+2}")
        A(f"v_max3_u32 v{vT+4}, v{f+3}, v{f+4}, v{f+5}")
        for i in range(6, 20, 2):
            t = vT + 3 + (i//2) % 2
            A(f"v_max3_u32 v{t}, v{t}, v{f+i}, v{f+i+1}")
        A(f"""
        v_max_u32 v{vT+3}, v{vT+3}, v{vT+4}
        v_cmp_eq_u32 vcc, -1, v{vT+3}
        s_cbranch_vccz L_ok{seg}
        s_add_u32 s{sIter}, s{sIter}, 1
        s_cmp_gt_u32 s{sIter}, {SPIN_MAX}
        s_cbranch_scc1 L_ok{seg}
        s_cmp_lg_u32 s{sPh}, 0
        s_cbranch_scc1 L_nosl{seg}
        s_sleep {RSL}
        """)
        A.label(f"L_nosl{seg}")
        for k in range(5*seg, 10): oload(k)
        A(f"s_waitcnt vmcnt({5 if seg == 0 else 0})")
        A(f"s_branch L_chk{seg}")
        A.label(f"L_ok{seg}")
        ST.mark(9 if seg == 0 else 17)
        for k in range(5*seg, 5*seg + 5):
            A(f"s_waitcnt lgkmcnt({10 if k < 8 else 0})")
            for nt in range(5):
                A(f"v_mfma_f32_16x16x32_bf16 {v(vAcc+4*nt,4)}, {v(vWB[k%3]+4*nt,4)}, {v(vOF+4*k,4)}, {v(vAcc+4*nt,4)}")
                if k + 3 < 10: wread(k + 3, nt)
    A(f"""
    s_cmp_lg_u32 s{sPh}, 0
    s_cbranch_scc1 L_epi
    s_mov_b32 s{sPh}, 1
    s_add_u32 s{sOFs}, s{sOFs}, 10240
    """)
    for bb in vTB:
        A(f"v_add_u32 v{bb}, 51200, v{bb}")
    A(f"s_mov_b32 s{sT2}, 0")
    A.label("L_rdy2")
    A(f"""
    ds_read_b32 v{vT+1}, v{vT+5} offset:12
    s_add_u32 s{sT2}, s{sT2}, 1
    s_cmp_gt_u32 s{sT2}, {SPIN_MAX*8}
    s_waitcnt lgkmcnt(0)
    s_cbranch_scc1 L_rdy2_done
    v_readfirstlane_b32 s{sT}, v{vT+1}
    s_nop 0
    s_cmp_lg_u32 s{sT}, 0
    s_cbranch_scc1 L_rdy2_done
    s_sleep 4
    s_branch L_rdy2
    """)
    A.label("L_rdy2_done")
    A(f"""
    s_cmp_eq_u64 s[{sMask}:{sMask+1}], 0
    s_cbranch_scc1 L_ph
    v_lshlrev_b32 v{vT+1}, 5, v{vG4}
    v_add_u32 v{vT+1}, {SELA+16}, v{vT+1}
    v_lshlrev_b32 v{vT+2}, 4, v{vG4}
    v_add_u32 v{vT+2}, {SELA+16+256}, v{vT+2}
    """)
    xloads(vOF)
    for p_ in range(2):
        A(f"ds_read_b128 {v(vOF+12+8*p_,4)}, v{vT+1} offset:{128*p_}")
        A(f"ds_read_b128 {v(vOF+16+8*p_,4)}, v{vT+1} offset:{128*p_+16}")
    A(f"ds_read_b128 {v(vOF+28,4)}, v{vT+2}")
    A(f"s_mov_b64 exec, s[{sMask}:{sMask+1}]")
    A("s_waitcnt vmcnt(0) lgkmcnt(0)")
    for i in range(10):
        A(f"v_lshlrev_b32 v{vB[2*i]}, 16, v{vOF+i}")
        A(f"v_and_b32 v{vB[2*i+1]}, 0xffff0000, v{vOF+i}")
    for i in range(20):
        A(f"v_add_f32 v{vB[i]}, v{vB[i]}, v{vOF+12+i}")
        A(f"v_cvt_pk_bf16_f32 v{vB[i]}, v{vB[i]}, v{vB[i]}")
        A(f"v_and_b32 v{vB[i]}, 0xffff0000, v{vB[i]}")
        A(f"v_mul_f32 v{vB[i]}, v{omg}, v{vB[i]}")
    A("s_mov_b64 exec, -1")
    A("s_branch L_ph")
    A.label("L_epi")
    ST.mark(10)
    if stamp: A(f"v_writelane_b32 v{vSt}, s{sIter}, 14")
    A("s_nop 1")
    for grp in ((0, 8), (8, 16), (16, 20)):
        for i in range(*grp):
            A(f"v_fma_f32 v{vAcc+i}, v{g}, v{vAcc+i}, v{vB[i]}")
        for i in range(grp[0]//2, grp[1]//2):
            A(f"v_cvt_pk_bf16_f32 v{vOF+i}, v{vAcc+2*i}, v{vAcc+2*i+1}")
        if grp[0] < 16:
            A(f"buffer_store_dwordx4 {v(vOF+grp[0]//2,4)}, v{vXO}, {dd}, s{sE2} offen offset:{8*grp[0]}")
        else:
            A(f"buffer_store_dwordx2 {v(vOF+8,2)}, v{vEXp}, {dd}, s{sE2} offen offset:128")
    A.label("L_done")
    ST.dump()
    A.label("L_end")
    A("s_endpgm")

    A.label("L_fallback")
    A(f"""
    v_mov_b32 v{vQ2[0]+1}, 0
    v_mov_b32 v{vM}, 0xff800000
    s_mov_b32 s{sT}, {WS_KV}
    """)
    A.label("L_fb1")
    A(f"""
    buffer_load_dwordx4 {v(vK1[0],4)}, v{vL16}, {wsd}, s{sT} offen offset:{OFF_K1} sc1
    buffer_load_dword v{vK2[0]}, v{vL4}, {wsd}, s{sT} offen offset:{OFF_K2} sc1
    s_waitcnt vmcnt(0)
    """)
    a, b = qk(vS[0], vK1[0], vK2[0], 0); A(a); A(b)
    A("s_nop 15")
    tile_max(vM, vS[0], False)
    A(f"""
    s_add_u32 s{sT}, s{sT}, {TILE}
    s_cmp_lt_u32 s{sT}, {WS_KV + KV_BYTES}
    s_cbranch_scc1 L_fb1
    """)
    set_m(vM, 0, vT, True)
    for i in range(16):
        A(f"v_mov_b32 v{O+i}, 0")
    A(f"s_mov_b32 s{sT}, {WS_KV}")
    A.label("L_fb2")
    A(f"""
    buffer_load_dwordx4 {v(vK1[0],4)}, v{vL16}, {wsd}, s{sT} offen offset:{OFF_K1} sc1
    buffer_load_dword v{vK2[0]}, v{vL4}, {wsd}, s{sT} offen offset:{OFF_K2} sc1
    buffer_load_dwordx4 {v(vVa[0],4)}, v{vGV}, {wsd}, s{sT} offen offset:{OFF_VA} sc1
    buffer_load_dwordx4 {v(vVb[0],4)}, v{vGV}, {wsd}, s{sT} offen offset:{OFF_VB} sc1
    s_waitcnt vmcnt(0)
    """)
    a, b = qk(vS[0], vK1[0], vK2[0], 0); A(a); A(b)
    A("s_nop 15")
    for i in range(16):
        A(f"v_exp_f32 v{vS[0]+i}, v{vS[0]+i}")
    A("s_nop 1")
    A(f"v_smfmac_f32_32x32x32_bf16 {v(O,16)}, {v(vVa[0],4)}, {v(vS[0],8)}, v{vIdx}")
    A(f"v_smfmac_f32_32x32x32_bf16 {v(O,16)}, {v(vVb[0],4)}, {v(vS[0]+8,8)}, v{vIdx}")
    A(f"""
    s_nop 15
    s_add_u32 s{sT}, s{sT}, {TILE}
    s_cmp_lt_u32 s{sT}, {WS_KV + KV_BYTES}
    s_cbranch_scc1 L_fb2
    """)
    l_bcast()
    A("s_nop 1")
    A("s_branch L_store")

    H = RegAlloc(8)
    hN = H.alloc("nonce", 4, 4)
    hFA = H.alloc("fa"); hGA = H.alloc("ga"); hOwn = H.alloc("own")
    hKey = H.alloc("key", 2, 2)
    hX = H.alloc("X", 80, 4)
    hD = H.alloc("D", 40, 4)
    assert H.next <= vIdx, (H.next, vIdx)
    hAc = hX + 64
    FST = 2 * TILE
    XSL = FST + 20480
    sF, sIdx, sKey, sSpin, sN = sA, sA + 1, sA + 2, sA + 3, sA + 4
    sH = 76
    sXcc, sFast = 96, 97
    A.label("L_helper")
    A(f"s_setprio {HP}")
    srd(sDD, pDBG, 256)
    A(f"""
    v_mov_b32 v{vT+2}, 0
    s_cmp_lg_u32 s2, 0
    s_cbranch_scc1 L_h_nolead
    s_memrealtime s[{sN}:{sN+1}]
    s_waitcnt lgkmcnt(0)
    s_or_b32 s{sN}, s{sN}, 1
    v_mov_b32 v{hN}, s{sN}
    v_mov_b32 v{hN+1}, s{sN+1}
    s_mov_b64 exec, 1
    buffer_store_dwordx2 {v(hN,2)}, v{vT+2}, {dd}, 0 offen sc1
    s_mov_b64 exec, -1
    """)
    A.label("L_h_nolead")
    A(f"""
    s_cmp_lt_u32 s{sFid}, 236
    s_cbranch_scc1 L_h_noyz
    v_mov_b32 v{hX}, 0
    v_mov_b32 v{hX+1}, 0
    v_mov_b32 v{hX+2}, 0
    v_mov_b32 v{hX+3}, 0
    s_lshl_b32 s{sT}, s{sFid}, 10
    s_add_u32 s{sT}, s{sT}, {WS_Y - 236*1024}
    buffer_store_dwordx4 {v(hX,4)}, v{vL16}, {wsd}, s{sT} offen sc1
    """)
    A.label("L_h_noyz")
    A(f"""
    v_mov_b32 v{vT}, {CNT}
    ds_write2_b32 v{vT}, v{vT+2}, v{vT+2} offset0:0 offset1:1
    s_mov_b32 s{sT}, {18*1024}
    s_waitcnt lgkmcnt(0)
    s_barrier                                        ; F0
    """)
    srd(sKVD, pWS, KV_BYTES, WS_KV)
    hP = [vIdx, vAK1, vAK2, vAV, vM]
    for ph in range(5):
        A(f"""
        v_add_u32 v{vT}, {64*ph}, v{vLane}
        v_mul_u32_u24 v{vT+1}, 205, v{vT}
        v_lshrrev_b32 v{vT+1}, 11, v{vT+1}
        v_mul_u32_u24 v{vT+3}, {1280-160}, v{vT+1}
        v_lshl_add_u32 v{hP[ph]}, v{vLane}, 4, v{vT+3}
        """)
    A(f"v_add_u32 v{hP[4]}, 4096, v{hP[4]}")
    A(f"""
    v_lshrrev_b32 v{vT}, 2, v{vTok}
    v_lshl_add_u32 v{vT}, v{vG4}, 3, v{vT}
    v_lshlrev_b32 v{vT}, 4, v{vT}
    v_and_b32 v{vT+1}, 1, v{vLane}
    v_lshl_add_u32 v{vT}, v{vT+1}, 3, v{vT}
    v_bfe_u32 v{vT+1}, v{vLane}, 1, 1
    v_mul_u32_u24 v{vT+1}, 10240, v{vT+1}
    v_add3_u32 v{vGV}, v{vT}, v{vT+1}, 0
    v_add_u32 v{vGV}, {FST}, v{vGV}
    v_lshlrev_b32 v{vAVs}, 4, v{vG4}
    v_add_u32 v{vAVs}, {XSL}, v{vAVs}
    ; w_down slab tr address: r*1280 + g*32 + (l%4)*8
    v_lshrrev_b32 v{vT}, 2, v{vTok}
    v_mul_u32_u24 v{vT}, 1280, v{vT}
    v_lshl_add_u32 v{vT}, v{vG4}, 5, v{vT}
    v_and_b32 v{vT+1}, 3, v{vLane}
    v_lshl_add_u32 v{vT}, v{vT+1}, 3, v{vT}
    v_add_u32 v{vAK1s}, {FST}, v{vT}
    v_add_u32 v{vAK2s}, {FST}, v{vL16}
    v_mul_u32_u24 v{vEXo}, 3072, v{vLane}
    v_lshlrev_b32 v{hFA}, 5, v{vLane}
    v_and_b32 v{hGA}, 7, v{vLane}
    v_lshlrev_b32 v{hGA}, 5, v{hGA}
    s_lshl_b32 s{sT}, s{sG}, 8
    s_add_u32 s{sT}, s{sT}, {WS_FLAG + 3*8192}
    v_add_u32 v{hGA}, s{sT}, v{hGA}
    s_lshl_b32 s{sT}, s{sFid}, 5
    s_add_u32 s{sT}, s{sT}, {WS_FLAG}
    v_mov_b32 v{hOwn}, s{sT}
    s_mov_b32 s{sT}, {18*1024}
    """)
    A("s_waitcnt vmcnt(0)")
    sig(1)
    A(f"buffer_load_dwordx2 {v(hN,2)}, v{vT+2}, {dd}, 0 offen sc1")
    ST.mark(2)
    A("s_waitcnt vmcnt(0)")
    A(f"s_mov_b32 s{sSpin}, 0")
    A(f"v_cmp_eq_u32 vcc, 0, v{hN}")
    A("s_cbranch_vccz L_h_nonce_done")
    A.label("L_h_nonce")
    A(f"""
    buffer_load_dwordx2 {v(hN,2)}, v{vT+2}, {dd}, 0 offen sc1
    s_add_u32 s{sSpin}, s{sSpin}, 1
    s_cmp_gt_u32 s{sSpin}, {SPIN_MAX}
    s_cbranch_scc1 L_h_nonce_done
    s_waitcnt vmcnt(0)
    v_cmp_eq_u32 vcc, 0, v{hN}
    s_cbranch_vccnz L_h_nonce
    """)
    A.label("L_h_nonce_done")
    A(f"""
    s_waitcnt vmcnt(0)
    s_mov_b32 s{sT2}, 2
    s_mov_b32 s{sSpin}, 0
    """)
    def cntwait(lab, shift, target, sl=1):
        A(f"s_mov_b32 s{sSpin}, 0")
        A.label(f"L_h_cnt{lab}")
        A(f"""
        s_sleep {sl}
        ds_read_b32 v{vT+1}, v{vT}
        s_add_u32 s{sSpin}, s{sSpin}, 1
        s_cmp_gt_u32 s{sSpin}, {SPIN_MAX*8}
        s_cbranch_scc1 L_h_cnt{lab}_done
        s_waitcnt lgkmcnt(0)
        v_readfirstlane_b32 s{sT}, v{vT+1}
        s_nop 0
        s_bfe_u32 s{sT}, s{sT}, {hex(0x100000 | shift)}
        s_cmp_lg_u32 s{sT}, {target}
        s_cbranch_scc1 L_h_cnt{lab}
        """)
        A.label(f"L_h_cnt{lab}_done")
    def publish(word):
        A(f"""
        s_mov_b32 s{sT}, {8192*word}
        s_mov_b64 exec, 1
        buffer_store_dwordx2 {v(hN,2)}, v{hOwn}, {wsd}, s{sT} offen sc1
        s_mov_b64 exec, -1
        """)
    ST.mark(3)
    def poll(word, parts, lab, slow=False, sleep=0):
        A(f"s_mov_b32 s{sSpin}, 0")
        A(f"s_mov_b32 s{sT2}, {WS_FLAG + 8192*word}")
        A(f"s_mov_b32 s{sT}, {WS_FLAG + 8192*word + 4096}")
        A.label(f"L_poll{lab}")
        for i in parts:
            A(f"buffer_load_dwordx2 {v(hAc+2*i,2)}, v{hFA}, {wsd}, s{sT2 if i < 2 else sT} offen offset:{2048*(i%2)} sc1")
        A(f"""
        s_add_u32 s{sSpin}, s{sSpin}, 1
        s_cmp_gt_u32 s{sSpin}, {SPIN_MAX}
        s_cbranch_scc1 L_poll{lab}_done
        s_waitcnt vmcnt(0)
        """)
        A(f"v_cmp_ne_u64 vcc, {v(hAc+2*parts[0],2)}, {v(hN,2)}")
        for i in parts[1:]:
            A(f"v_cmp_ne_u64 s[{sMask}:{sMask+1}], {v(hAc+2*i,2)}, {v(hN,2)}")
            A(f"s_or_b64 vcc, vcc, s[{sMask}:{sMask+1}]")
        if sleep:
            A(f"s_cbranch_vccz L_poll{lab}_done\ns_sleep {sleep}\ns_branch L_poll{lab}")
        else:
            A(f"s_cbranch_vccnz L_poll{lab}")
        A.label(f"L_poll{lab}_done")
    PART = 16 * TILE
    sDq = sH
    def pollkv(lab, nparts, sleep):
        A(f"s_mov_b32 s{sSpin}, 0")
        A.label(f"L_poll{lab}")
        for i in nparts:
            A(f"buffer_load_dwordx4 {v(hX+16+4*i,4)}, v{hFA}, {wsd}, s{sH+4+i} offen sc1")
        A(f"""
        s_add_u32 s{sSpin}, s{sSpin}, 1
        s_cmp_gt_u32 s{sSpin}, {SPIN_MAX}
        s_cbranch_scc1 L_poll{lab}_done
        s_waitcnt vmcnt(0)
        """)
        first = True
        for i in nparts:
            for h2 in range(2):
                if first:
                    A(f"v_cmp_ne_u64 vcc, {v(hX+16+4*i+2*h2,2)}, {v(hN,2)}"); first = False
                else:
                    A(f"v_cmp_ne_u64 s[{sMask}:{sMask+1}], {v(hX+16+4*i+2*h2,2)}, {v(hN,2)}")
                    A(f"s_or_b64 vcc, vcc, s[{sMask}:{sMask+1}]")
        if sleep:
            A(f"s_cbranch_vccz L_poll{lab}_done\ns_sleep {sleep}\ns_branch L_poll{lab}")
        else:
            A(f"s_cbranch_vccnz L_poll{lab}")
        A.label(f"L_poll{lab}_done")
    def kvrun(lab, lds0, n, sD, last_mask=None):
        ng = n // 4
        A(f"s_mov_b32 m0, {lds0}")
        if ng:
            A.label(lab)
            A(f"s_add_u32 s{sT}, m0, s{sD}")
            for j in range(4):
                A(f"buffer_load_dwordx4 v{vL16}, {kvd}, s{sT} offen offset:{j*1024} sc1 lds")
            A(f"""
            s_add_u32 m0, m0, 4096
            s_cmp_lt_u32 m0, {lds0 + ng*4096}
            s_cbranch_scc1 {lab}
            """)
        if n % 4:
            A(f"s_add_u32 s{sT}, m0, s{sD}")
            for j in range(n % 4):
                if last_mask and j == n % 4 - 1: A(f"s_mov_b64 exec, {last_mask}")
                A(f"buffer_load_dwordx4 v{vL16}, {kvd}, s{sT} offen offset:{j*1024} sc1 lds")
            if last_mask: A("s_mov_b64 exec, -1")
    A(f"s_lshr_b32 s{sT2}, s{sFid}, 6")
    if not ROT: A(f"s_mov_b32 s{sT2}, 0")
    for q in range(4):
        A(f"""
        s_add_u32 s{sT}, s{sT2}, {q}
        s_and_b32 s{sT}, s{sT}, 3
        s_lshl_b32 s{sH+4+q}, s{sT}, 11
        s_add_u32 s{sH+4+q}, s{sH+4+q}, {WS_FLAG}
        s_sub_u32 s{sT}, s{sT}, {q}
        s_mul_i32 s{sDq+q}, s{sT}, {PART}
        """)
    cntwait("b", 0, 0x502)
    pollkv("A", [0], PSA)
    ST.mark(4)
    kvrun("L_h_dma0", 0, 32, sDq)
    A(f"""
    s_barrier                                        ; F2a
    s_waitcnt vmcnt(0)
    """)
    ST.mark(10)
    A("s_barrier                                        ; F2")
    kvrun("L_h_dma0b", 32768, 9, sDq)
    pollkv("A2", [1, 2, 3], 0)
    A(f"""
    s_getreg_b32 s{sXcc}, hwreg(HW_REG_XCC_ID)
    s_and_b32 s{sXcc}, s{sXcc}, 0xf
    v_mov_b32 v{hN+2}, s{sXcc}
    v_mov_b32 v{hN+3}, 0
    s_mov_b32 s{sT}, {8192*2}
    s_mov_b64 exec, 1
    buffer_store_dwordx4 {v(hN,4)}, v{hOwn}, {wsd}, s{sT} offen sc1
    s_mov_b64 exec, -1
    """)
    kvrun("L_h_dma1", PART, 41, sDq + 1)
    kvrun("L_h_dma2", 2*PART, 41, sDq + 2)
    A("s_waitcnt vmcnt(30)")
    ST.mark(5)
    A(f"""
    s_cmp_ge_u32 s2, 192
    s_cbranch_scc1 L_h_nod
    s_and_b32 s{sF}, s2, 7
    s_mul_i32 s{sF}, s{sF}, 24
    s_lshr_b32 s{sT}, s2, 3
    s_add_u32 s{sF}, s{sF}, s{sT}
    """)
    srd(sWD, pWD, 1536*1280)
    A(f"s_mul_i32 s{sT}, s{sF}, {8*1280}")
    for n in range(10):
        if n and n % 4 == 0: A(f"s_add_u32 s{sT}, s{sT}, 4096")
        A(f"buffer_load_dwordx4 {v(hD+4*n,4)}, v{vL16}, {wd}, s{sT} offen offset:{(n%4)*1024}")
    A.label("L_h_nod")
    A("s_barrier                                        ; L0")
    kvrun("L_h_dma3", 3*PART, 36, sDq + 3)
    A(f"s_add_u32 s{sDq+3}, s{sDq+3}, {LDS_IMG}")
    kvrun("L_h_dma4", 0, 6, sDq + 3, "0xff")
    poll(2, [0, 1, 2, 3], "K")
    A(f"""
    s_mov_b32 s{sT}, {(-8192) & 0xffffffff}
    v_add_u32 v{vT+1}, s{sT}, v{hGA}
    buffer_load_dword v{vT+2}, v{vT+1}, {wsd}, 0 offen offset:8 sc1
    v_lshlrev_b32 v{vT}, 3, v{vLane}
    s_mov_b32 s{sT}, {WS_KEY}
    buffer_load_dwordx2 {v(hKey,2)}, v{vT}, {wsd}, s{sT} offen sc1
    s_cmp_lg_u32 s2, 0
    s_cbranch_scc1 L_h_noreset
    v_mov_b32 v{hX+4}, 0
    v_mov_b32 v{hX+5}, 0
    s_mov_b64 exec, 1
    buffer_store_dwordx2 {v(hX+4,2)}, v{hX+4}, {dd}, 0 offen sc1
    s_mov_b64 exec, -1
    """)
    A.label("L_h_noreset")
    A(f"""
    v_mov_b32 v{hX}, -1
    v_mov_b32 v{hX+1}, -1
    v_mov_b32 v{hX+2}, -1
    v_mov_b32 v{hX+3}, -1
    s_mul_i32 s{sT}, s{sFid}, 10240
    s_add_u32 s{sT}, s{sT}, {WS_OF}
    s_waitcnt vmcnt(0)
    v_cmp_ne_u32 vcc, s{sXcc}, v{vT+2}
    s_mov_b32 s{sFast}, 0
    {"s_cbranch_vccnz L_h_mk_slow" if XFAST else "s_branch L_h_mk_slow"}
    s_mov_b32 s{sFast}, 1
    """)
    def markers(fl):
        for tq in range(2):
            for j in range(4):
                A(f"buffer_store_dwordx4 {v(hX,4)}, v{vL16}, {wsd}, s{sT} offen offset:{1024*j}{fl}")
            A(f"s_add_u32 s{sT}, s{sT}, 4096")
            A(f"buffer_store_dwordx4 {v(hX,4)}, v{vL16}, {wsd}, s{sT} offen{fl}")
            A(f"s_add_u32 s{sT}, s{sT}, 1024")
    markers("")
    A("s_branch L_h_mk_done")
    A.label("L_h_mk_slow")
    markers(" sc1")
    A.label("L_h_mk_done")
    A(f"""
    v_max_u32 v{hKey}, v{hKey}, v{hKey+1}
    s_nop 1
    v_max_u32_dpp v{hKey}, v{hKey}, v{hKey} row_shr:1 row_mask:0xf bank_mask:0xf
    s_nop 1
    v_max_u32_dpp v{hKey}, v{hKey}, v{hKey} row_shr:2 row_mask:0xf bank_mask:0xf
    s_nop 1
    v_max_u32_dpp v{hKey}, v{hKey}, v{hKey} row_shr:4 row_mask:0xf bank_mask:0xf
    s_nop 1
    v_max_u32_dpp v{hKey}, v{hKey}, v{hKey} row_shr:8 row_mask:0xf bank_mask:0xf
    s_nop 1
    v_readlane_b32 s{sKey}, v{hKey}, 15
    v_readlane_b32 s{sT}, v{hKey}, 31
    v_readlane_b32 s{sT2}, v{hKey}, 47
    v_readlane_b32 s{sIdx}, v{hKey}, 63
    s_nop 3
    s_max_u32 s{sKey}, s{sKey}, s{sT}
    s_max_u32 s{sT2}, s{sT2}, s{sIdx}
    s_max_u32 s{sKey}, s{sKey}, s{sT2}
    s_and_b32 s{sIdx}, s{sKey}, 0x7ff
    s_sub_u32 s{sIdx}, 2047, s{sIdx}
    s_lshl_b32 s{sT}, s{sG}, 8
    s_add_u32 s{sT}, s{sT}, {WS_G}
    s_mov_b32 m0, {GL}
    s_nop 0
    buffer_load_dword v{vL4}, {wsd}, s{sT} offen sc1 lds
    s_mul_i32 s{sT}, s{sIdx}, 1280
    s_mov_b32 m0, {XSL}
    s_nop 0
    buffer_load_dwordx4 v{vL16}, {xd}, s{sT} offen lds
    s_mov_b64 exec, 0xffff
    buffer_load_dwordx4 v{vL16}, {xd}, s{sT} offen offset:1024 lds
    s_mov_b64 exec, -1
    """)
    A(f"""
    s_cmp_ge_u32 s2, 192
    s_cbranch_scc1 L_h_noslab
    s_and_b32 s{sF}, s2, 7
    s_mul_i32 s{sF}, s{sF}, 24
    s_lshr_b32 s{sT}, s2, 3
    s_add_u32 s{sF}, s{sF}, s{sT}
    """)
    srd(sWD, pWG, 640*3072)
    srd(sMD, pWU, 640*3072)
    A(f"""
    s_and_b32 s{sSpin}, s{sF}, 7
    s_mov_b32 s{sH}, 0
    """)
    A.label("L_h_slab")
    A(f"""
    s_lshl_b32 s{sT2}, s{sSpin}, 10
    s_add_u32 m0, s{sT2}, {FST}
    s_mul_i32 s{sT}, s{sSpin}, {64*3072}
    s_lshl_b32 s{sH+1}, s{sF}, 4
    s_add_u32 s{sT}, s{sT}, s{sH+1}
    buffer_load_dwordx4 v{vEXo}, {wd}, s{sT} offen lds
    s_add_u32 m0, s{sT2}, {FST + 10240}
    s_add_u32 s{sSpin}, s{sSpin}, 1
    buffer_load_dwordx4 v{vEXo}, {md}, s{sT} offen lds
    s_cmp_eq_u32 s{sSpin}, 10
    s_cselect_b32 s{sSpin}, 0, s{sSpin}
    s_add_u32 s{sH}, s{sH}, 1
    s_cmp_lt_u32 s{sH}, 10
    s_cbranch_scc1 L_h_slab
    """)
    A.label("L_h_noslab")
    A.label("L_h_l3")
    srd(sWD, pWO, 640*1280)
    sWs, sWl = sA + 7, sSpin
    A(f"""
    s_mul_i32 s{sWs}, s{sM}, 160
    s_mov_b32 s{sWl}, {WO_L}
    """)
    A(f"""
    v_mov_b32 v{vT+1}, 0
    v_mov_b32 v{vT}, {SELA}
    ds_write2_b32 v{vT}, v{vT+1}, v{vT+1} offset0:1 offset1:2
    ds_write_b32 v{vT}, v{vT+1} offset:12
    s_waitcnt lgkmcnt(0)
    """)
    ST.mark(6)
    A("s_barrier                                        ; L3")
    def wo_dma(lab, ph_):
        A(f"s_mul_i32 s{sWs}, s{sM}, 160")
        A(f"s_add_u32 s{sWs}, s{sWs}, {ph_*80*1280}")
        A(f"s_mov_b32 s{sWl}, {WO_L + ph_*51200}")
        A.label(lab)
        for stp in range(3):
            A(f"s_add_u32 m0, s{sWl}, {stp*5120}")
            A(f"s_add_u32 s{sT}, s{sWs}, {stp*32*1280}")
            for ph in range(4 if stp < 2 else 3):
                if stp == 2 and ph == 2: A(f"s_mov_b64 exec, s[{sLo32}:{sLo32+1}]")
                A(f"buffer_load_dwordx4 v{hP[ph]}, {wd}, s{sT} offen offset:{ph*1024} lds")
            if stp < 2:
                A(f"s_add_u32 m0, s{sWl}, {stp*5120 + 4096}")
                A("s_nop 0")
                A(f"buffer_load_dwordx4 v{hP[4]}, {wd}, s{sT} offen lds")
        A(f"""
        s_mov_b64 exec, -1
        s_add_u32 s{sWs}, s{sWs}, {160*1280}
        s_add_u32 s{sWl}, s{sWl}, 12800
        s_cmp_lt_u32 s{sWl}, {WO_L + (ph_+1)*51200}
        s_cbranch_scc1 {lab}
        """)
    def wo_dma_old(lab, end):
        A.label(lab)
        A(f"s_mov_b32 m0, s{sWl}")
        A("s_nop 0")
        for ph in range(4):
            A(f"buffer_load_dwordx4 v{hP[ph]}, {wd}, s{sWs} offen offset:{ph*1024} lds")
        A(f"s_add_u32 m0, s{sWl}, 4096")
        A(f"s_add_u32 s{sWl}, s{sWl}, 5120")
        A(f"buffer_load_dwordx4 v{hP[4]}, {wd}, s{sWs} offen lds")
        A(f"""
        s_add_u32 s{sWs}, s{sWs}, {32*1280}
        s_cmp_lt_u32 s{sWl}, {end}
        s_cbranch_scc1 {lab}
        """)
    if OPF:
        srd(sMD, pOUT, 2048*1280)
        A(f"""
        s_mul_i32 s{sT}, s{sG}, {64*1280}
        v_mul_u32_u24 v{vT+1}, 1280, v{vLane}
        buffer_load_ushort v{hKey}, v{vT+1}, {md}, s{sT} offen
        """)
    wo_dma("L_wo1", 0)
    A("s_waitcnt vmcnt(52)")
    publish(3)
    A(f"""
    s_cmp_ge_u32 s2, 192
    s_cbranch_scc1 L_h_ffn_done
    """)
    hF = hX + 32
    hC = hX + 28
    def freads(ks):
        f = hF + 8*(ks % 4)
        A(f"ds_read_b64_tr_b16 {v(f,2)}, v{vGV} offset:{ks*512}")
        A(f"ds_read_b64_tr_b16 {v(f+2,2)}, v{vGV} offset:{ks*512+64}")
        A(f"ds_read_b128 {v(f+4,4)}, v{vAVs} offset:{ks*64}")
    freads(0); freads(1); freads(2)
    for ks in range(20):
        if ks + 3 < 20:
            freads(ks + 3)
            A("s_waitcnt lgkmcnt(9)")
        else:
            A(f"s_waitcnt lgkmcnt({3*(19-ks)})")
        c = "0" if ks == 0 else v(hC, 4)
        f = hF + 8*(ks % 4)
        A(f"v_mfma_f32_16x16x32_bf16 {v(hC,4)}, {v(f+4,4)}, {v(f,4)}, {c}")
    for n in range(10):
        A(f"ds_write_b128 v{vAK2s}, {v(hD+4*n,4)} offset:{1024*n}")
    g_, u_, t_ = hX, hX + 1, hX + 2
    hA = hX + 4
    A(f"""
    v_mov_b32_dpp v{u_}, v{hC} row_ror:8 row_mask:0xf bank_mask:0xf
    v_mov_b32 v{hA}, 0
    v_cvt_pk_bf16_f32 v{g_}, v{hC}, v{u_}
    v_and_b32 v{u_}, 0xffff0000, v{g_}
    v_lshlrev_b32 v{g_}, 16, v{g_}
    v_mul_f32 v{t_}, {NLOG2E}, v{g_}
    v_exp_f32 v{t_}, v{t_}
    v_mov_b32 v{hA+1}, 0
    v_add_f32 v{t_}, 1.0, v{t_}
    v_rcp_f32 v{t_}, v{t_}
    v_mov_b32 v{hA+2}, 0
    v_mul_f32 v{g_}, v{g_}, v{t_}
    v_cvt_pk_bf16_f32 v{g_}, v{g_}, v{g_}
    v_and_b32 v{g_}, 0xffff0000, v{g_}
    v_mul_f32 v{g_}, v{g_}, v{u_}
    v_mov_b32 v{hA+3}, 0
    s_nop 0
    v_mov_b32_dpp v{u_}, v{g_} quad_perm:[1,0,3,2] row_mask:0xf bank_mask:0xf
    v_cvt_pk_bf16_f32 v{g_}, v{g_}, v{u_}
    s_mov_b32 s{sT}, 0x00100001
    s_mov_b32 s{sT2}, 0x10000100
    v_readlane_b32 s{sH}, v{g_}, 0
    v_readlane_b32 s{sH+1}, v{g_}, 2
    v_readlane_b32 s{sH+2}, v{g_}, 4
    v_readlane_b32 s{sH+3}, v{g_}, 6
    s_mov_b64 exec, s[{sT}:{sT2}]
    s_nop 0
    v_mov_b32 v{hA}, s{sH}
    v_mov_b32 v{hA+1}, s{sH+1}
    v_mov_b32 v{hA+2}, s{sH+2}
    v_mov_b32 v{hA+3}, s{sH+3}
    s_mov_b64 exec, -1
    s_waitcnt lgkmcnt(0)
    """)
    hW = hD
    hY = hX + 8
    for half in range(2):
        for t in range(5*half, 5*half + 5):
            A(f"ds_read_b64_tr_b16 {v(hW+4*t,2)}, v{vAK1s} offset:{128*t}")
            A(f"ds_read_b64_tr_b16 {v(hW+4*t+2,2)}, v{vAK1s} offset:{128*t + 5120}")
        A("s_waitcnt lgkmcnt(0)")
        for t in range(5*half, 5*half + 5):
            A(f"v_mfma_f32_16x16x32_bf16 {v(hY+4*t,4)}, {v(hA,4)}, {v(hW+4*t,4)}, 0")
    A(f"""
    s_and_b32 s{sT}, s2, 7
    s_mul_i32 s{sT}, s{sT}, 2560
    s_add_u32 s{sT}, s{sT}, {WS_Y}
    s_nop 4
    """)
    for i in range(10):
        A(f"buffer_atomic_add_f32 v{hY+4*i}, v{vL4}, {wsd}, s{sT} offen offset:{256*i} sc1")
    A.label("L_h_ffn_done")
    A(f"v_mov_b32 v{vT+1}, 0")
    for w in range(8):
        A(f"ds_write_b32 v{vAK2s}, v{vT+1} offset:{w*3072 + 2048 + 4}")
    hU = hX
    A(f"s_mov_b32 s{sSpin}, 0")
    A.label("L_pollC")
    A(f"""
    buffer_load_dwordx2 {v(hAc,2)}, v{hGA}, {wsd}, 0 offen sc1
    s_add_u32 s{sSpin}, s{sSpin}, 1
    s_cmp_gt_u32 s{sSpin}, {SPIN_MAX}
    s_cbranch_scc1 L_pollC_done
    s_waitcnt vmcnt(0)
    v_cmp_ne_u64 vcc, {v(hAc,2)}, {v(hN,2)}
    s_cbranch_vccnz L_pollC
    """)
    A.label("L_pollC_done")
    A(f"""
    s_waitcnt vmcnt(0)
    v_mov_b32 v{vT}, {SELA}
    s_and_b32 s{sT2}, s{sIdx}, 63
    s_lshr_b32 s{sT}, s{sIdx}, 6
    s_cmp_eq_u32 s{sT}, s{sG}
    s_cselect_b32 s{sT2}, s{sT2}, -1
    v_mov_b32 v{vT+1}, s{sT2}
    s_lshl_b32 s{sT2}, s{sFast}, 1
    s_or_b32 s{sT2}, s{sT2}, 1
    v_mov_b32 v{vT+2}, s{sT2}
    ds_write2_b32 v{vT}, v{vT+1}, v{vT+2} offset0:0 offset1:1
    v_add_u32 v{vT}, 8, v{vT}
    """)
    ST.mark(7)
    publish(1)
    A(f"""
    s_lshr_b32 s{sT}, s{sIdx}, 6
    s_cmp_lg_u32 s{sT}, s{sG}
    s_cbranch_scc1 L_h_nosel
    """)
    poll(1, [0, 1, 2, 3], "B", False, sleep=8)
    A(f"""
    s_and_b32 s{sT}, s{sKey}, 0xfffff800
    s_not_b32 s{sT2}, s{sT}
    s_and_b32 s{sT}, s{sT}, 0x7fffffff
    s_cmp_lt_i32 s{sKey}, 0
    s_cselect_b32 s{sT}, s{sT}, s{sT2}          ; r bits
    v_mov_b32 v{vT+5}, s{sT}
    v_cvt_pk_bf16_f32 v{vT+5}, v{vT+5}, v{vT+5}
    v_and_b32 v{vT+5}, 0xffff0000, v{vT+5}
    v_mul_f32 v{vT+5}, {NLOG2E}, v{vT+5}
    v_exp_f32 v{vT+5}, v{vT+5}
    s_nop 0
    v_add_f32 v{vT+5}, 1.0, v{vT+5}
    v_rcp_f32 v{vT+5}, v{vT+5}
    s_nop 0
    v_cvt_pk_bf16_f32 v{vT+5}, v{vT+5}, v{vT+5}
    v_and_b32 v{vT+5}, 0xffff0000, v{vT+5}
    s_mul_i32 s{sT}, s{sM}, 80
    """)
    for rnd in range(2):
        A(f"""
        v_add_u32 v{vT+2}, s{sT}, v{vLane}
        v_add_u32 v{vT+2}, {64*rnd}, v{vT+2}
        v_min_u32 v{vT+2}, 639, v{vT+2}             ; column
        v_lshlrev_b32 v{vT+3}, 2, v{vT+2}
        s_mov_b32 s{sT2}, {WS_Y}
        """)
        for rep in range(8):
            A(f"buffer_load_dword v{hU+8*rnd+rep}, v{vT+3}, {wsd}, s{sT2} offen sc1")
            A(f"s_add_u32 s{sT2}, s{sT2}, 2560")
    A("s_waitcnt vmcnt(0)")
    for rnd in range(2):
        y = hU + 8*rnd
        for rep in range(1, 8):
            A(f"v_add_f32 v{y}, v{y}, v{y+rep}")
        A(f"""
        v_cvt_pk_bf16_f32 v{y}, v{y}, v{y}
        v_and_b32 v{y}, 0xffff0000, v{y}
        v_mul_f32 v{y}, v{vT+5}, v{y}
        v_cvt_pk_bf16_f32 v{y}, v{y}, v{y}
        v_and_b32 v{y}, 0xffff0000, v{y}
        """)
    A(f"""
    v_add_u32 v{vT+2}, {SELA+16}, v{vL4}
    ds_write_b32 v{vT+2}, v{hU}
    ds_write_b32 v{vT+2}, v{hU+8} offset:256
    s_waitcnt lgkmcnt(0)
    """)
    A.label("L_h_nosel")
    cntwait("p", 0, 8, CSL)
    wo_dma("L_wo2", 1)
    A(f"""
    v_mov_b32 v{vT+1}, 1
    s_waitcnt vmcnt(0)
    ds_write_b32 v{vT}, v{vT+1} offset:4
    """)
    ST.mark(8)
    ST.dump()
    A("s_endpgm")
    A.label("L_code_end")
    return A.text(), NV

NAME = "gated_mix__grouped_kv_mqa__moe_arch_mod__prompt"
def build(stamp=False):
    b, n = gen(NAME + "_kernel", stamp)
    txt = "; generated by gen/fused.py\n"
    txt += "; @launch grid=(256,1,1) block=(576,1,1) lds=163840\n"
    txt += '.amdgcn_target "amdgcn-amd-amdhsa--gfx950"\n.text\n' + b
    txt += '.section .rodata,"a"\n' + kernel_desc(NAME + "_kernel", n)
    return txt
if __name__ == "__main__":
    import sys
    open(sys.argv[1] if len(sys.argv) > 1 else f"fused26.s", "w").write(build())
```

```python
from asmlib import *
from layout import *
import math, struct
def fbits(x):
    return struct.unpack("<I", struct.pack("<f", x))[0]
NLOG2E = hex(fbits(-math.log2(math.e)))
LDS_IMG = 62 * TILE
WS_FLAG = 0x750000
WS_OF = 0x300000
WK, XT, RING, RG, CNT = 0, 32768, 73728, 155648, 163584
QX = RING + 4*16384
EXA = 2 * TILE
WO_L = EXA + 24576
SELA = 162816
GL = SELA + 528
PFL = GL + 256
PB = [EXA, WO_L + 102400]
PP = 336
SPIN_MAX = 20000
CPF = True
TLBW = 0
OPF = False
F2A = True
QST = False
QPRE = 0
QP2 = 2
XE = 0
QEARLY = False
F1B = True
LST = False
PSA = 0
ROT = True
QTRIG = 5
QP = 328
XFAST = True
FSE = True
LP = 1
PDROP = 1
CSL = 5
WPF = True
OSL = 0
NSW = 99
HP = 2
RSL = 4
PSL = 1

def gen(name, stamp=False):
    A = Asm()
    sWSD, sKVD, sXD, sWD, sDD, sMD = 8, 12, 16, 20, 24, 28
    sWave, sG, sM, sTT, sHG, sFid = 32, 33, 34, 35, 36, 37
    sT, sT2 = 38, 39
    pX, pWQ, pWK, pWV, pWO, pWR, pWG, pWU, pWD, pGW, pOUT, pDBG, pWS = 40, 42, 44, 46, 48, 52, 54, 56, 58, 60, 62, 64, 66
    sA = 68
    sXl, sXs = 90, 91
    sLo32 = 4
    sMask = 6
    wsd, kvd, xd, wd, dd, md = (s(x, 4) for x in (sWSD, sKVD, sXD, sWD, sDD, sMD))
    def srd(d, p, size, add=0):
        if add:
            A(f"s_add_u32 s{d}, s{p}, {add}\ns_addc_u32 s{d+1}, s{p+1}, 0")
        else:
            A(f"s_mov_b32 s{d}, s{p}\ns_mov_b32 s{d+1}, s{p+1}")
        A(f"s_mov_b32 s{d+2}, {size}\ns_mov_b32 s{d+3}, 0x00020000")
    R = RegAlloc(1)
    vT = R.alloc("T", 7)
    vQ1 = [R.alloc(f"Q1{i}", 4, 4) for i in range(2)]
    vQ2 = [R.alloc(f"Q2{i}", 2, 2) for i in range(2)]
    vK1 = [R.alloc(f"K1{i}", 4, 4) for i in range(2)]
    vK2 = [R.alloc(f"K2{i}", 2, 2) for i in range(2)]
    vVa = [R.alloc(f"Va{i}", 4, 4) for i in range(2)]
    vVb = [R.alloc(f"Vb{i}", 4, 4) for i in range(2)]
    vS = [R.alloc(f"S{i}", 16, 4) for i in range(4)]
    vO = [R.alloc(f"O{i}", 16, 4) for i in range(2)]
    vIdx = R.alloc("idx"); vLane = R.alloc("lane")
    vAK1 = R.alloc("AK1"); vAK2 = R.alloc("AK2"); vAV = R.alloc("AV")
    vM = R.alloc("M"); vL16 = R.alloc("L16"); vL4 = R.alloc("L4"); vGV = R.alloc("GV")
    vL32 = R.alloc("l32"); vHalf = R.alloc("half"); vTok = R.alloc("tok"); vG4 = R.alloc("g4")
    vAK1s = R.alloc("AK1s"); vAK2s = R.alloc("AK2s"); vAVs = R.alloc("AVs"); vSt = R.alloc("stamp")
    vEXo = R.alloc("EXo"); vEXp = R.alloc("EXp"); vSM = R.alloc("SM"); vSTl = R.alloc("STl")
    vQA = [vM] + [R.alloc(f"QA{i}") for i in range(3)]
    NV = R.next
    BIG = vQ1[0]
    BIGN = vO[1] + 16 - BIG

    A.raw(kernel_header(name))
    class VSt:
        def start(self):
            if stamp: A(f"s_memrealtime s[100:101]\ns_memtime s[94:95]\ns_waitcnt lgkmcnt(0)\nv_mov_b32 v{vSt}, 0\nv_writelane_b32 v{vSt}, s100, 0")
        def mark(self, i):
            if stamp: A(f"s_memtime s[92:93]\ns_waitcnt lgkmcnt(0)\ns_sub_u32 s92, s92, s94\nv_writelane_b32 v{vSt}, s92, {i}")
        def dump(self):
            if stamp:
                A("s_waitcnt vmcnt(0)")
                self.mark(15)
                A(f"""
                s_memrealtime s[92:93]
                s_waitcnt lgkmcnt(0)
                s_sub_u32 s92, s92, s100
                v_writelane_b32 v{vSt}, s92, 1
                s_mul_i32 s92, s2, 9
                s_add_u32 s92, s92, s{sWave}
                s_lshl_b32 s92, s92, 7
                s_add_u32 s92, s92, 0x780000
                s_mov_b64 exec, 0xffffffff
                buffer_store_dword v{vSt}, v{vL4}, {wsd}, s92 offen
                """)
    ST = VSt()
    ST.start()
    A(f"""
    s_cmp_ge_u32 s2, 256
    s_cbranch_scc1 L_end
    s_load_dwordx16 s[40:55], s[0:1], 0
    s_load_dwordx8 s[56:63], s[0:1], 64
    s_load_dwordx4 s[64:67], s[0:1], 96
    """)
    if CPF:
        A(f"s_getpc_b64 s[{sA}:{sA+1}]")
        A.label("L_pc")
        A(f"""
        s_bfe_u32 s{sT}, s2, 0x20003
        s_min_u32 s{sT}, s{sT}, 2
        s_mul_i32 s{sT}, s{sT}, 9216
        v_lshl_add_u32 v{vT+5}, v0, 4, s{sT}
        v_min_u32 v{vT+5}, L_code_end-L_pc-16, v{vT+5}
        global_load_dwordx4 {v(BIG+120,4)}, v{vT+5}, s[{sA}:{sA+1}]
        """)
    A(f"""
    v_lshrrev_b32 v{vT}, 6, v0
    v_and_b32 v{vLane}, 63, v0
    v_readfirstlane_b32 s{sWave}, v{vT}
    v_and_b32 v{vL32}, 31, v0
    v_lshrrev_b32 v{vHalf}, 5, v{vLane}
    v_and_b32 v{vTok}, 15, v0
    v_lshrrev_b32 v{vG4}, 4, v{vLane}
    v_lshlrev_b32 v{vL16}, 4, v{vLane}
    v_lshlrev_b32 v{vL4}, 2, v{vLane}
    s_and_b32 s{sG}, s2, 7
    s_lshl_b32 s{sG}, s{sG}, 2
    s_lshr_b32 s{sT}, s2, 6
    s_add_u32 s{sG}, s{sG}, s{sT}             ; group 0..31
    s_bfe_u32 s{sM}, s2, 0x30003
    s_and_b32 s{sT}, s{sM}, 1
    s_lshl_b32 s{sTT}, s{sG}, 1
    s_add_u32 s{sTT}, s{sTT}, s{sT}
    s_lshr_b32 s{sHG}, s{sM}, 1
    s_lshl_b32 s{sFid}, s{sG}, 3
    s_add_u32 s{sFid}, s{sFid}, s{sM}
    s_mov_b32 s{sLo32}, -1
    s_mov_b32 s{sLo32+1}, 0
    s_lshr_b32 s{sT}, s{sWave}, 2
    s_xor_b32 s{sT}, s{sT}, s{sHG}
    s_xor_b32 s{sT}, s{sT}, 1
    s_and_b32 s{sT}, s{sT}, 1
    s_lshl_b32 s{sT}, s{sT}, 2
    s_and_b32 s{sT2}, s{sWave}, 3
    s_add_u32 s{sXl}, s{sT}, s{sT2}
    s_lshl_b32 s{sT}, s{sXl}, 2
    v_add_u32 v{vT+6}, s{sT}, v{vG4}
    v_and_b32 v{vT+1}, 15, v{vT+6}
    v_xor_b32 v{vT+1}, v{vT+1}, v{vTok}
    v_mul_u32_u24 v{vT+6}, 1280, v{vT+6}
    v_lshl_add_u32 v{vT+6}, v{vT+1}, 4, v{vT+6}
    s_mul_i32 s{sXs}, s{sTT}, {32*1280}
    s_lshl_b32 s{sXl}, s{sXl}, 10
    s_waitcnt lgkmcnt(0)
    """)
    ST.mark(22)
    if TLBW:
        touch = [(pX, 0), (pX, 0x200000), (pWQ, 0), (pWK, 0), (pWV, 0), (pWS, WS_KV), (pDBG, 0), (pWS, 0x300000), (pWS, 0x400000),
                 (pWO, 0), (pOUT, 0), (pOUT, 0x200000), (pWG, 0), (pWU, 0), (pWD, 0), (pWR, 0), (pGW, 0)][:TLBW]
        A(f"s_cmp_lg_u32 s{sWave}, 8\ns_cbranch_scc1 L_notouch")
        A(f"v_mov_b32 v{BIG+124}, s{pX}\nv_mov_b32 v{BIG+125}, s{pX+1}")
        for i, (p, off) in enumerate(touch):
            if off:
                A(f"s_add_u32 s{sT}, s{p}, {off}\ns_addc_u32 s{sT2}, s{p+1}, 0")
                A(f"v_writelane_b32 v{BIG+124}, s{sT}, {i}\nv_writelane_b32 v{BIG+125}, s{sT2}, {i}")
            else:
                A(f"v_writelane_b32 v{BIG+124}, s{p}, {i}\nv_writelane_b32 v{BIG+125}, s{p+1}, {i}")
        A(f"global_load_ubyte v{BIG+126}, {v(BIG+124,2)}, off")
        A.label("L_notouch")
    srd(sXD, pX, 2048*1280)
    def xdma():
        for cb in range(5):
            A(f"s_add_u32 m0, s{sXl}, {XT + cb*8192 - cb*256}")
            A("s_nop 0")
            A(f"buffer_load_dwordx4 v{vT+6}, {xd}, s{sXs} offen offset:{cb*256} lds")
    A(f"""
    s_cmp_ge_u32 s{sHG}, 2
    s_cselect_b32 s{sMD}, s{pWV}, s{pWK}
    s_cselect_b32 s{sMD+1}, s{pWV+1}, s{pWK+1}
    s_mov_b32 s{sMD+2}, 25600
    s_mov_b32 s{sMD+3}, 0x00020000
    s_sub_u32 s{sT}, s{sWave}, 4
    s_cmp_lt_u32 s{sT}, 4
    s_cbranch_scc0 L_nox1
    """)
    xdma()
    A("s_branch L_first_done")
    A.label("L_nox1")
    A(f"""
    s_min_u32 s{sT}, s{sWave}, 4
    s_mul_i32 s{sT}, s{sT}, 5120
    s_add_u32 m0, s{sT}, {WK}
    s_add_u32 s{sT2}, s{sT}, 4096
    """)
    for j in range(4):
        A(f"buffer_load_dwordx4 v{vL16}, {md}, s{sT} offen offset:{j*1024} lds")
    A(f"""
    s_add_u32 m0, s{sT2}, {WK}
    s_nop 0
    buffer_load_dwordx4 v{vL16}, {md}, s{sT2} offen lds
    """)
    if XE == 2:
        A(f"s_cmp_eq_u32 s{sWave}, 8\ns_cbranch_scc1 L_first_done")
        xdma()
    A.label("L_first_done")
    srd(sWSD, pWS, WS_SIZE)
    A(f"""
    s_cmp_eq_u32 s{sWave}, 8
    s_cbranch_scc1 L_helper
    """)
    sPart, sHl, sStM, sStT, sOFs, sE2, sGs = 81, 82, 83, 84, 85, 86, 87
    sIter, sDelta = 88, 89
    sO2, sO3 = 98, 99
    def sig(val):
        A(f"""
        v_mov_b32 v{vT}, {CNT}
        v_mov_b32 v{vT+1}, {val}
        s_mov_b64 exec, 1
        ds_add_u32 v{vT}, v{vT+1} offset:4
        s_mov_b64 exec, -1
        """)
    def await_(lab, shift, target):
        A(f"s_mov_b32 s{sT2}, 0")
        A.label(f"L_aw{lab}")
        A(f"""
        ds_read_b32 v{vT+1}, v{vT} offset:4
        s_add_u32 s{sT2}, s{sT2}, 1
        s_cmp_gt_u32 s{sT2}, {SPIN_MAX*8}
        s_waitcnt lgkmcnt(0)
        s_cbranch_scc1 L_aw{lab}_done
        v_readfirstlane_b32 s{sT}, v{vT+1}
        s_nop 0
        s_bfe_u32 s{sT}, s{sT}, {hex(0x80000 | shift)}
        s_cmp_eq_u32 s{sT}, {target}
        s_cbranch_scc1 L_aw{lab}_done
        s_sleep 1
        s_branch L_aw{lab}
        """)
        A.label(f"L_aw{lab}_done")
    def zinit():
        for q in range(2):
            for i in range(16):
                A(f"v_mov_b32 v{vO[q]+i}, 0")
        for i in range(8, 16):
            A(f"v_mov_b32 v{vS[3]+i}, 0")
    def setup():
        A(f"""
        s_and_b32 s{sPart}, s{sWave}, 1
        v_lshlrev_b32 v{vT+3}, 4, v{vL32}
        v_mul_u32_u24 v{vGV}, 336, v{vHalf}
        v_add_u32 v{vGV}, v{vGV}, v{vT+3}
        v_cmp_lt_u32 vcc, 20, v{vL32}
        v_mov_b32 v{vT+3}, 0x1000000
        s_mul_i32 s{sT2}, s{sPart}, {TILE}
        v_cndmask_b32 v{vGV}, v{vGV}, v{vT+3}, vcc
        v_add_u32 v{vAK1}, s{sT2}, v{vL16}
        v_add_u32 v{vAK2}, s{sT2}, v{vL4}
        v_add_u32 v{vAV}, s{sT2}, v{vGV}
        s_mul_i32 s{sT}, s{sWave}, 40
        s_xor_b32 s{sT2}, s{sWave}, 1
        s_mul_i32 s{sT2}, s{sT2}, 40
        v_mul_u32_u24 v{vT}, {QP}, v{vL32}
        v_add_u32 v{vT}, {QX}, v{vT}
        v_lshl_add_u32 v{vT+1}, v{vHalf}, 4, v{vT}       ; Q1 part
        v_lshl_add_u32 v{vT+2}, v{vHalf}, 2, v{vT}       ; Q2 part
        v_add_u32 v{vQA[0]}, s{sT2}, v{vT+1}
        v_add_u32 v{vQA[1]}, s{sT2}, v{vT+2}
        v_add_u32 v{vQA[2]}, s{sT}, v{vT+1}
        v_add_u32 v{vQA[3]}, s{sT}, v{vT+2}
        v_add_u32 v{vAK1s}, {14*TILE}, v{vAK1}
        v_add_u32 v{vAK2s}, {14*TILE}, v{vAK2}
        v_add_u32 v{vAVs}, {14*TILE}, v{vAV}
        v_mov_b32 v{vIdx}, 0xdddddddd
        s_mul_i32 s{sT}, s{sWave}, 3072
        s_xor_b32 s{sT2}, s{sWave}, 1
        s_mul_i32 s{sT2}, s{sT2}, 3072
        s_add_u32 s{sT}, s{sT}, {EXA}
        s_add_u32 s{sT2}, s{sT2}, {EXA}
        v_add_u32 v{vEXo}, s{sT}, v{vL16}
        v_add_u32 v{vEXp}, s{sT2}, v{vL16}
        s_lshr_b32 s{sHl}, s{sWave}, 2             ; ph
        s_mul_i32 s{sT2}, s{sHl}, 10240
        s_lshr_b32 s{sT}, s{sHG}, 1
        s_mul_i32 s{sT}, s{sT}, 5120
        s_add_u32 s{sT2}, s{sT2}, s{sT}
        s_and_b32 s{sT}, s{sHG}, 1
        s_lshl_b32 s{sT}, s{sT}, 2
        s_and_b32 s{sGs}, s{sWave}, 3
        s_add_u32 s{sT}, s{sT}, s{sGs}
        s_lshl_b32 s{sStM}, s{sT}, 9
        s_add_u32 s{sStM}, s{sStM}, s{sT2}
        s_lshr_b32 s{sT}, s{sT}, 1
        s_lshl_b32 s{sT}, s{sT}, 8
        s_add_u32 s{sStT}, s{sT2}, s{sT}
        s_lshl_b32 s{sT}, s{sPart}, 3
        s_add_u32 s{sStT}, s{sStT}, s{sT}
        s_add_u32 s{sStT}, s{sStT}, 4096
        s_mul_i32 s{sT}, s{sTT}, {2*20480}
        s_add_u32 s{sT}, s{sT}, {WS_OF}
        s_add_u32 s{sStM}, s{sStM}, s{sT}
        s_add_u32 s{sStT}, s{sStT}, s{sT}
        v_lshrrev_b32 v{vSTl}, 4, v{vL32}
        v_mul_u32_u24 v{vSTl}, 20480, v{vSTl}
        v_lshl_add_u32 v{vSTl}, v{vTok}, 4, v{vSTl}
        v_lshl_add_u32 v{vSM}, v{vHalf}, 8, v{vSTl}
        s_and_b32 s{sT}, s{sWave}, 3
        s_lshl_b32 s{sT2}, s{sG}, 2
        s_add_u32 s{sT2}, s{sT2}, s{sT}
        s_mul_i32 s{sOFs}, s{sT2}, 20480
        s_add_u32 s{sOFs}, s{sOFs}, {WS_OF}
        s_mul_i32 s{sT}, s{sHl}, 10240
        s_add_u32 s{sOFs}, s{sOFs}, s{sT}
        s_mul_i32 s{sE2}, s{sT2}, {16*1280}
        s_mul_i32 s{sT2}, s{sM}, 160
        s_add_u32 s{sE2}, s{sE2}, s{sT2}
        s_mov_b32 s{sIter}, 0
        """)
        srd(sDD, pOUT, 2048*1280)
    setup()
    ST.mark(23)
    A(f"""
    s_cmp_eq_u32 s{sWave}, 4
    s_cbranch_scc1 L_rgw
    s_sub_u32 s{sT}, s{sWave}, 5
    s_cmp_lt_u32 s{sT}, 2
    s_cbranch_scc1 L_kvw
    """)

    vXA = BIG
    vTRA = BIG + 8; vSRC = BIG + 10
    vAcc = BIG + 16
    sB, sDl, sRing, sSo, sQc = sA, sA + 5, sA + 10, sA + 11, sA + 12
    sPb, sH0, sH1 = 96, 97, 98
    srd(sWD, pWQ, 640*1280)
    A(f"""
    ; cb0 = ((id>>6)*2 + (m&1)) % 5
    s_lshr_b32 s{sT}, s2, 6
    s_lshl_b32 s{sT}, s{sT}, 1
    s_and_b32 s{sT2}, s{sM}, 1
    s_add_u32 s{sT}, s{sT}, s{sT2}
    s_sub_u32 s{sT2}, s{sT}, 5
    s_cmp_ge_u32 s{sT}, 5
    s_cselect_b32 s{sT}, s{sT2}, s{sT}
    s_cselect_b32 s{sPb}, 1, 0
    s_min_u32 s{sRing}, s{sWave}, 4
    s_lshl_b32 s{sRing}, s{sRing}, 14
    s_add_u32 s{sRing}, s{sRing}, {RING}
    s_lshl_b32 s{sDl}, s{sT}, 13
    s_add_u32 s{sDl}, s{sDl}, {XT}
    s_and_b32 s{sQc}, s{sHG}, 1
    s_cmp_eq_u32 s{sWave}, 7
    s_cbranch_scc1 L_qn
    """)
    cq = math.log2(math.e) / math.sqrt(20.0)
    def qproj(wide):
        if wide:
            vFR = [BIG + 48 + 24*i for i in range(3)]
            A(f"""
            s_lshl_b32 s{sQc}, s{sQc}, 6
            s_lshr_b32 s{sT2}, s{sWave}, 1
            s_lshl_b32 s{sT2}, s{sT2}, 7
            s_add_u32 s{sQc}, s{sQc}, s{sT2}
            s_mul_i32 s{sSo}, s{sHG}, 320
            s_add_u32 s{sSo}, s{sSo}, s{sQc}
            s_and_b32 s{sT2}, s{sWave}, 1
            s_mul_i32 s{sB}, s{sT2}, 81920
            s_add_u32 s{sSo}, s{sSo}, s{sB}
            s_lshl_b32 s{sT2}, s{sT2}, 6
            s_add_u32 s{sQc}, s{sQc}, s{sT2}
            v_lshrrev_b32 v{vSRC}, 3, v{vLane}
            v_mul_u32_u24 v{vSRC}, 1280, v{vSRC}
            v_and_b32 v{vT+1}, 7, v{vLane}
            v_and_b32 v{vT+2}, 1, v{vG4}
            v_lshlrev_b32 v{vT+2}, 2, v{vT+2}
            v_xor_b32 v{vT+1}, v{vT+1}, v{vT+2}
            v_lshl_add_u32 v{vSRC}, v{vT+1}, 4, v{vSRC}
            """)
            step, half = 8*1280 - 1024, 40960
        else:
            vFR = [BIG + 32 + 32*i for i in range(3)]
            A(f"""
            s_xor_b32 s{sQc}, s{sQc}, 1
            s_lshl_b32 s{sQc}, s{sQc}, 8
            s_mul_i32 s{sSo}, s{sHG}, 320
            s_add_u32 s{sSo}, s{sSo}, s{sQc}
            v_lshrrev_b32 v{vSRC}, 2, v{vLane}
            v_mul_u32_u24 v{vSRC}, 1280, v{vSRC}
            v_and_b32 v{vT+1}, 3, v{vLane}
            v_lshl_add_u32 v{vSRC}, v{vT+1}, 4, v{vSRC}
            """)
            step, half = 16*1280 - 1024, 81920
        assert vFR[2] + (24 if wide else 32) <= BIG + BIGN
        for k in range(1, 4):
            A(f"v_add_u32 v{vSRC+k}, {k*step}, v{vSRC}")
        A(f"s_mul_i32 s{sH0}, s{sPb}, {half}")
        A(f"s_sub_u32 s{sH1}, {half}, s{sH0}")
        A(f"s_mov_b32 s{sT2}, 8192")
        for b in range(5):
            A(f"s_mul_i32 s{sB+b}, s{sT}, {128*1280}")
            A(f"s_add_u32 s{sB+b}, s{sB+b}, s{sSo}")
            if b < 4:
                A(f"""
                s_add_u32 s{sT}, s{sT}, 1
                s_cmp_eq_u32 s{sT}, 5
                s_cselect_b32 s{sT}, 0, s{sT}
                s_cselect_b32 s{sDl+b+1}, {(-32768) & 0xffffffff}, s{sT2}
                """)
        def qdma(j):
            A(f"s_add_u32 m0, s{sRing}, {(j % 4)*4096}")
            A(f"s_add_u32 s{sSo}, s{sB + j//2}, s{sH1 if j % 2 else sH0}")
            for st in range(4):
                A(f"buffer_load_dwordx4 v{vSRC+st}, {wd}, s{sSo} offen offset:{st*1024} lds")
        A(f"""
        v_and_b32 v{vT+1}, 15, v{vL32}
        s_lshl_b32 s{sT}, s{sPb}, {2 if wide else 3}
        v_xor_b32 v{vT+1}, s{sT}, v{vT+1}
        v_lshlrev_b32 v{vT+2}, 8, v{vL32}
        v_add_u32 v{vT+2}, s{sDl}, v{vT+2}
        """)
        if wide:
            A(f"""
            s_and_b32 s{sT2}, s{sWave}, 1
            s_lshl_b32 s{sT}, s{sT2}, 3
            v_add_u32 v{vT+4}, s{sT}, v{vHalf}
            s_lshl_b32 s{sT2}, s{sT2}, 6
            """)
            for st in range(4):
                A(f"v_add_u32 v{vT+3}, {2*st}, v{vT+4}")
                A(f"v_xor_b32 v{vT+3}, v{vT+3}, v{vT+1}")
                A(f"v_lshl_add_u32 v{vXA+st}, v{vT+3}, 4, v{vT+2}")
            A(f"""
            ; tr addr: (8*(G/2) + r)*128 + ((kh*64 + (G%2)*32 + (i%4)*8) ^ (64*(r>>1)))
            v_lshrrev_b32 v{vT+1}, 2, v{vTok}
            v_lshl_add_u32 v{vT+1}, v{vHalf}, 3, v{vT+1}
            v_lshlrev_b32 v{vT+1}, 7, v{vT+1}
            v_and_b32 v{vT+2}, 1, v{vG4}
            v_lshl_add_u32 v{vT+1}, v{vT+2}, 5, v{vT+1}
            v_and_b32 v{vT+2}, 3, v{vLane}
            v_lshl_add_u32 v{vT+1}, v{vT+2}, 3, v{vT+1}
            v_lshrrev_b32 v{vT+2}, 3, v{vTok}
            v_lshl_add_u32 v{vT+1}, v{vT+2}, 6, v{vT+1}
            v_xor_b32 v{vT+1}, s{sT2}, v{vT+1}
            v_add_u32 v{vTRA}, s{sRing}, v{vT+1}
            v_xor_b32 v{vTRA+1}, 64, v{vTRA}
            """)
        else:
            for st in range(8):
                A(f"v_add_u32 v{vT+3}, {2*st}, v{vHalf}")
                A(f"v_xor_b32 v{vT+3}, v{vT+3}, v{vT+1}")
                A(f"v_lshl_add_u32 v{vXA+st}, v{vT+3}, 4, v{vT+2}")
            A(f"""
            v_lshrrev_b32 v{vT+1}, 2, v{vTok}
            v_lshl_add_u32 v{vT+1}, v{vHalf}, 3, v{vT+1}
            v_lshlrev_b32 v{vT+1}, 6, v{vT+1}
            v_and_b32 v{vT+2}, 1, v{vG4}
            v_lshl_add_u32 v{vT+1}, v{vT+2}, 5, v{vT+1}
            v_and_b32 v{vT+2}, 3, v{vLane}
            v_lshl_add_u32 v{vT+1}, v{vT+2}, 3, v{vT+1}
            v_add_u32 v{vTRA}, s{sRing}, v{vT+1}
            """)
        if wide and XE == 1: xdma()
        for j in range(QPRE): qdma(j)
        ST.mark(24)
        A("s_barrier")
        A(f"s_waitcnt vmcnt({4*QPRE + (5 if (wide and XE) else 0)})")
        sig(1 if wide else 0x101)
        if wide and not XE:
            xdma()
        for j in range(QPRE, QP2): qdma(j)
        ST.mark(25)
        if wide:
            A(f"s_waitcnt vmcnt({4*QP2 if XE else 4*(QP2-QPRE)})")
            sig(0x100)
        A(f"""
        v_mov_b32 v{vT+5}, {CNT}
        v_mov_b32 v{vT+6}, 256
        """)
        for j in range(QP2, 4): qdma(j)
        await_("qw" if wide else "qn", 8, 8)
        ST.mark(2)
        def qreads(j, st):
            if wide:
                t, tl = st // 2, st % 2
                f = vFR[j % 3] + 12*t
                if tl == 0:
                    xa = vXA + (j % 2)*2 + t
                    if j >= 2: A(f"v_add_u32 v{xa}, s{sDl + j//2}, v{xa}")
                    A(f"ds_read_b128 {v(f+8,4)}, v{xa}")
                A(f"ds_read_b64_tr_b16 {v(f+4*tl,2)}, v{vTRA+tl} offset:{(j%4)*4096 + t*2048}")
                A(f"ds_read_b64_tr_b16 {v(f+4*tl+2,2)}, v{vTRA+tl} offset:{(j%4)*4096 + t*2048 + 512}")
            else:
                f = vFR[j % 3] + 8*st
                xa = vXA + (j % 2)*4 + st
                if j >= 2: A(f"v_add_u32 v{xa}, s{sDl + j//2}, v{xa}")
                A(f"ds_read_b64_tr_b16 {v(f,2)}, v{vTRA} offset:{(j%4)*4096 + st*1024}")
                A(f"ds_read_b64_tr_b16 {v(f+2,2)}, v{vTRA} offset:{(j%4)*4096 + st*1024 + 256}")
                A(f"ds_read_b128 {v(f+4,4)}, v{xa}")
        nr = 10 if wide else 12
        A("s_waitcnt vmcnt(12)")
        for st in range(4): qreads(0, st)
        A("s_waitcnt vmcnt(8)")
        for st in range(4): qreads(1, st)
        for j in range(10):
            if j in (1, 3, 5, 8): ST.mark(28 + (1, 3, 5, 8).index(j))
            if not wide and j == NSW: A("s_setprio 0")
            A(f"s_waitcnt lgkmcnt({nr if j < 9 else 0})")
            if j + 4 < 10: qdma(j + 4)
            if j == QTRIG:
                A(f"s_mov_b64 exec, 1\nds_add_u32 v{vT+5}, v{vT+6}\ns_mov_b64 exec, -1")
            if j + 2 < 10:
                A(f"s_waitcnt vmcnt({4*(min(10, j+5) - (j+3))})")
            for st in range(4):
                if wide:
                    t, tl = st // 2, st % 2
                    f = vFR[j % 3] + 12*t
                    acc = vAcc + 16*tl
                    c = "0" if (j == 0 and t == 0) else v(acc, 16)
                    A(f"v_mfma_f32_32x32x16_bf16 {v(acc,16)}, {v(f+4*tl,4)}, {v(f+8,4)}, {c}")
                else:
                    f = vFR[j % 3] + 8*st
                    c = "0" if (j == 0 and st == 0) else v(vAcc, 16)
                    A(f"v_mfma_f32_32x32x16_bf16 {v(vAcc,16)}, {v(f,4)}, {v(f+4,4)}, {c}")
                if j + 2 < 10: qreads(j + 2, st)
        o = vFR[1]
        A(f"""
        s_mov_b32 s{sT}, {hex(fbits(cq))}
        v_mul_u32_u24 v{vT}, {QP}, v{vL32}
        v_lshl_add_u32 v{vT}, v{vHalf}, 3, v{vT}
        s_add_u32 s{sT2}, s{sQc}, {QX}
        v_add_u32 v{vT}, s{sT2}, v{vT}
        v_add_u32 v{vT+1}, s{sRing}, v{vL16}
        s_xor_b32 s{sT2}, s{sWave}, 1
        s_lshl_b32 s{sT2}, s{sT2}, 14
        s_add_u32 s{sT2}, s{sT2}, {RING}
        v_add_u32 v{vT+2}, s{sT2}, v{vL16}
        s_nop 2
        """)
        if wide:
            for k in range(4):
                A(f"ds_write_b128 v{vT+1}, {v(vAcc+16+4*k,4)} offset:{1024*k}")
            ST.mark(3)
            zinit()
            A("s_waitcnt lgkmcnt(0)")
            A("s_barrier                                        ; F2a")
            for k in range(4):
                A(f"ds_read_b128 {v(vAcc+16+4*k,4)}, v{vT+2} offset:{1024*k}")
            for k in range(4):
                A(f"s_waitcnt lgkmcnt({3-k})")
                for r in range(4):
                    A(f"v_add_f32 v{vAcc+4*k+r}, v{vAcc+4*k+r}, v{vAcc+16+4*k+r}")
        for i in range(16):
            A(f"v_mul_f32 v{vAcc+i}, s{sT}, v{vAcc+i}")
        for a in range(4):
            A(f"v_cvt_pk_bf16_f32 v{o+2*a}, v{vAcc+4*a}, v{vAcc+4*a+1}")
            A(f"v_cvt_pk_bf16_f32 v{o+2*a+1}, v{vAcc+4*a+2}, v{vAcc+4*a+3}")
            A(f"ds_write_b64 v{vT}, {v(o+2*a,2)} offset:{16*a}")
        A("s_branch L_f2" if wide else "s_branch L_f2a")
    qproj(True)
    A.label("L_qn")
    A("s_setprio 1")
    qproj(False)

    A.label("L_kvw")
    A("s_setprio 3")
    vNc = BIG + 104
    vXB = BIG
    vTE = BIG + 8
    vAc2 = BIG + 12
    vF = BIG + 20
    A(f"""
    s_and_b32 s{sT}, s{sHG}, 1
    s_lshl_b32 s{sT}, s{sT}, 12
    s_add_u32 s{sT}, s{sT}, {XT}
    v_lshlrev_b32 v{vT+2}, 8, v{vTok}
    v_add_u32 v{vT+2}, s{sT}, v{vT+2}
    """)
    for k in range(4):
        A(f"v_add_u32 v{vT+3}, {4*k}, v{vG4}")
        A(f"v_xor_b32 v{vT+3}, v{vT+3}, v{vTok}")
        A(f"v_lshl_add_u32 v{vXB+k}, v{vT+3}, 4, v{vT+2}")
    A(f"""
    v_lshrrev_b32 v{vT}, 2, v{vTok}
    v_lshl_add_u32 v{vT}, v{vG4}, 3, v{vT}
    v_mul_u32_u24 v{vT}, 40, v{vT}
    v_and_b32 v{vT+1}, 3, v{vLane}
    v_lshl_add_u32 v{vT}, v{vT+1}, 3, v{vT}
    s_sub_u32 s{sT}, s{sWave}, 5
    s_lshl_b32 s{sT}, s{sT}, 5
    s_add_u32 s{sT}, s{sT}, {WK}
    v_add_u32 v{vTE}, s{sT}, v{vT}
    s_lshl_b32 s{sT}, s{sFid}, 5
    s_lshl_b32 s{sT2}, s{sWave}, 3
    s_add_u32 s{sT}, s{sT}, s{sT2}
    s_add_u32 s{sT}, s{sT}, {WS_FLAG - 40}
    v_mov_b32 v{vNc+3}, s{sT}
    """)
    srd(sKVD, pDBG, 256)
    A(f"v_mov_b32 v{vNc+2}, 0")
    A("s_barrier                                        ; F0")
    A("s_waitcnt vmcnt(0)")
    ST.mark(25)
    sig(0x101)
    A(f"buffer_load_dwordx2 {v(vNc,2)}, v{vNc+2}, {kvd}, 0 offen sc1")
    await_("kv", 0, 9)
    ST.mark(2)
    def kv_reads(bt):
        for j in range(5):
            ks = 5*bt + j
            f = vF + (bt % 2)*40 + 8*j
            A(f"ds_read_b64_tr_b16 {v(f,2)}, v{vTE} offset:{ks*1280}")
            A(f"ds_read_b64_tr_b16 {v(f+2,2)}, v{vTE} offset:{ks*1280+160}")
            A(f"ds_read_b128 {v(f+4,4)}, v{vXB + ks%4} offset:{(ks//4)*8192}")
    def kv_main(isV):
        kv_reads(0)
        for bt in range(4):
            A("s_waitcnt lgkmcnt(0)")
            if bt < 3: kv_reads(bt + 1)
            for j in range(5):
                f = vF + (bt % 2)*40 + 8*j
                a, b = (v(f+4,4), v(f,4)) if isV else (v(f,4), v(f+4,4))
                c = "0" if (bt == 0 and j == 0) else v(vAc2, 4)
                A(f"v_mfma_f32_16x16x32_bf16 {v(vAc2,4)}, {a}, {b}, {c}")
    A(f"""
    s_mul_i32 s{sA}, s{sTT}, {TILE}
    s_add_u32 s{sA}, s{sA}, {WS_KV}
    s_and_b32 s{sA+1}, s{sHG}, 1                     ; th
    s_cmp_ge_u32 s{sHG}, 2
    s_cbranch_scc1 L_vw
    """)
    kv_main(False)
    A(f"""
    s_lshl_b32 s{sT2}, s{sA+1}, 4
    v_add_u32 v{vT}, s{sT2}, v{vTok}              ; kk
    v_lshl_add_u32 v{vT+2}, v{vHalf}, 5, v{vT}
    v_lshlrev_b32 v{vT+2}, 4, v{vT+2}
    v_and_b32 v{vT+1}, 1, v{vG4}
    v_lshl_add_u32 v{vT+2}, v{vT+1}, 3, v{vT+2}   ; K1 offset
    v_lshlrev_b32 v{vT+3}, 2, v{vT}               ; K2 offset
    s_nop 1
    v_cvt_pk_bf16_f32 v{vF}, v{vAc2}, v{vAc2+1}
    v_cvt_pk_bf16_f32 v{vF+1}, v{vAc2+2}, v{vAc2+3}
    s_cmp_eq_u32 s{sWave}, 6
    s_cbranch_scc1 L_k2
    buffer_store_dwordx2 {v(vF,2)}, v{vT+2}, {wsd}, s{sA} offen sc1
    s_branch L_pub
    """)
    A.label("L_k2")
    A(f"""
    s_mov_b64 exec, 0xffff
    buffer_store_dword v{vF}, v{vT+3}, {wsd}, s{sA} offen offset:{OFF_K2} sc1
    buffer_store_dword v{vF+1}, v{vT+3}, {wsd}, s{sA} offen offset:{OFF_K2+128} sc1
    s_mov_b64 exec, -1
    s_branch L_pub
    """)
    A.label("L_vw")
    kv_main(True)
    A(f"""
    s_mul_i32 s{sT2}, s{sA+1}, 672
    s_add_u32 s{sA}, s{sA}, s{sT2}
    v_mul_u32_u24 v{vT+2}, 336, v{vHalf}
    v_lshl_add_u32 v{vT+2}, v{vTok}, 4, v{vT+2}
    v_and_b32 v{vT+1}, 1, v{vG4}
    v_lshl_add_u32 v{vT+2}, v{vT+1}, 3, v{vT+2}   ; ha*336 + dv*16 + (g%2)*8
    v_mov_b32 v{vT+4}, 0x3f803f80
    v_cmp_eq_u32 vcc, 4, v{vTok}
    v_cvt_pk_bf16_f32 v{vF}, v{vAc2}, v{vAc2+1}
    v_cvt_pk_bf16_f32 v{vF+1}, v{vAc2+2}, v{vAc2+3}
    s_cmp_eq_u32 s{sWave}, 6
    s_cbranch_scc1 L_v2
    buffer_store_dwordx2 {v(vF,2)}, v{vT+2}, {wsd}, s{sA} offen offset:{OFF_VA} sc1
    s_branch L_pub
    """)
    A.label("L_v2")
    A(f"""
    v_cndmask_b32 v{vF}, v{vF}, v{vT+4}, vcc
    v_cndmask_b32 v{vF+1}, v{vF+1}, v{vT+4}, vcc
    v_cmp_gt_u32 vcc, 5, v{vTok}
    s_and_saveexec_b64 s[{sMask}:{sMask+1}], vcc
    buffer_store_dwordx2 {v(vF,2)}, v{vT+2}, {wsd}, s{sA} offen offset:{OFF_VA+256} sc1
    s_mov_b64 exec, -1
    s_branch L_pub
    """)
    A.label("L_rgw")
    A("s_barrier                                        ; F0")
    A("s_waitcnt vmcnt(0)")
    sig(0x101)
    A(f"""
    s_cmp_lg_u32 s{sHG}, 0
    s_cbranch_scc1 L_rg_none
    """)
    for (p, off) in ((pWR, 0), (pGW, 2048)):
        srd(sMD, p, 1280)
        for h in range(2):
            A(f"s_mov_b32 m0, {RG + off}")
            A("s_nop 0")
            A(f"buffer_load_dwordx4 v{vL16}, {md}, 0 offen offset:{1024*h} lds")
    A(f"v_lshlrev_b32 v{vT+2}, 8, v{vTok}")
    A(f"v_add_u32 v{vT+2}, {XT}, v{vT+2}")
    for k in range(4):
        A(f"v_add_u32 v{vT+3}, {4*k}, v{vG4}")
        A(f"v_xor_b32 v{vT+3}, v{vT+3}, v{vTok}")
        A(f"v_lshl_add_u32 v{vXB+k}, v{vT+3}, 4, v{vT+2}")
    A(f"""
    v_cmp_eq_u32 vcc, 1, v{vTok}
    v_mov_b32 v{vT}, {RG}
    v_mov_b32 v{vT+1}, {RG+2048}
    v_cndmask_b32 v{vT}, v{vT}, v{vT+1}, vcc
    v_lshl_add_u32 v{vTE}, v{vG4}, 4, v{vT}
    """)
    A(f"v_mov_b32 v{vT}, {CNT}")
    await_("rg", 8, 8)
    ST.mark(2)
    A("s_waitcnt vmcnt(0)")
    def rg_reads(bt):
        for j in range(4):
            ks = 4*bt + j
            f = vF + (bt % 2)*48 + 12*j
            A(f"ds_read_b128 {v(f,4)}, v{vTE} offset:{ks*64}")
            A(f"ds_read_b128 {v(f+4,4)}, v{vXB + j} offset:{bt*8192}")
            A(f"ds_read_b128 {v(f+8,4)}, v{vXB + j} offset:{bt*8192+4096}")
    rg_reads(0)
    for bt in range(5):
        A("s_waitcnt lgkmcnt(0)")
        if bt < 4: rg_reads(bt + 1)
        for j in range(4):
            f = vF + (bt % 2)*48 + 12*j
            for h in range(2):
                c = "0" if (bt == 0 and j == 0) else v(vAc2+4*h, 4)
                A(f"v_mfma_f32_16x16x32_bf16 {v(vAc2+4*h,4)}, {v(f,4)}, {v(f+4+4*h,4)}, {c}")
    A(f"""
    s_lshl_b32 s{sT}, s{sTT}, 5
    v_add_u32 v{vT}, s{sT}, v{vTok}
    v_sub_u32 v{vT+1}, 2047, v{vT}
    v_lshlrev_b32 v{vT}, 2, v{vT}
    s_mov_b32 s{sT2}, {WS_G}
    s_lshl_b32 s{sT}, s{sTT}, 3
    s_add_u32 s{sT}, s{sT}, {WS_KEY}
    v_mov_b32 v{vT+4}, 0
    s_nop 1
    """)
    for h in range(2):
        r = vAc2 + 4*h; gl = r + 1; k = vT + 2; g = vT + 3
        A(f"""
        v_ashrrev_i32 v{k}, 31, v{r}
        v_or_b32 v{k}, 0x80000000, v{k}
        v_xor_b32 v{k}, v{k}, v{r}
        v_and_b32 v{k}, 0xfffff800, v{k}
        v_or_b32 v{k}, v{k}, v{vT+1}
        v_cvt_pk_bf16_f32 v{g}, v{gl}, v{gl}
        v_subrev_u32 v{vT+1}, 16, v{vT+1}
        v_max_u32_dpp v{k}, v{k}, v{k} row_shr:1 row_mask:0xf bank_mask:0xf
        v_and_b32 v{g}, 0xffff0000, v{g}
        v_mul_f32 v{g}, {NLOG2E}, v{g}
        v_max_u32_dpp v{k}, v{k}, v{k} row_shr:2 row_mask:0xf bank_mask:0xf
        v_exp_f32 v{g}, v{g}
        s_nop 0
        v_max_u32_dpp v{k}, v{k}, v{k} row_shr:4 row_mask:0xf bank_mask:0xf
        v_add_f32 v{g}, 1.0, v{g}
        v_rcp_f32 v{g}, v{g}
        v_max_u32_dpp v{k}, v{k}, v{k} row_shr:8 row_mask:0xf bank_mask:0xf
        v_cvt_pk_bf16_f32 v{g}, v{g}, v{g}
        v_and_b32 v{g}, 0xffff0000, v{g}
        s_mov_b64 exec, 0xffff
        buffer_store_dword v{g}, v{vT}, {wsd}, s{sT2} offen offset:{64*h} sc1
        s_mov_b64 exec, 0x8000
        buffer_store_dword v{k}, v{vT+4}, {wsd}, s{sT} offen offset:{4*h} sc1
        s_mov_b64 exec, -1
        """)
    A("s_waitcnt vmcnt(0)\ns_setprio 0\ns_branch L_f2a")
    A.label("L_pub")
    A(f"""
    v_mov_b32 v{vT}, {CNT}
    v_mov_b32 v{vT+1}, 1
    s_mov_b64 exec, 1
    ds_add_u32 v{vT}, v{vT+1}
    s_mov_b32 s{sT}, 0
    s_waitcnt vmcnt(0)
    v_cmp_eq_u32 vcc, 0, v{vNc}
    s_cbranch_vccz L_pub_go
    """)
    A.label("L_pub_tag")
    A(f"""
    buffer_load_dwordx2 {v(vNc,2)}, v{vNc+2}, {kvd}, 0 offen sc1
    s_add_u32 s{sT}, s{sT}, 1
    s_cmp_gt_u32 s{sT}, {SPIN_MAX}
    s_waitcnt vmcnt(0)
    s_cbranch_scc1 L_pub_go
    v_cmp_eq_u32 vcc, 0, v{vNc}
    s_cbranch_vccnz L_pub_tag
    """)
    A.label("L_pub_go")
    A(f"""
    buffer_store_dwordx2 {v(vNc,2)}, v{vNc+3}, {wsd}, 0 offen sc1
    s_mov_b64 exec, -1
    s_setprio 0
    s_branch L_f2a
    """)
    A.label("L_rg_none")
    ST.mark(2)

    A.label("L_f2a")
    A("s_setprio 0")
    ST.mark(3)
    zinit()
    A("s_barrier                                        ; F2a")
    A.label("L_f2")
    A(f"""
    s_waitcnt lgkmcnt(0)
    s_barrier
    """)
    ST.mark(4)
    if LP: A(f"s_setprio {LP}")
    A(f"""
    ds_read2_b64 {v(vQ1[0],4)}, v{vQA[0]} offset0:0 offset1:1
    ds_read_b32 v{vQ2[0]}, v{vQA[1]} offset:32
    ds_read_b128 {v(vVa[1],4)}, v{vL16} offset:{OFF_K1}
    ds_read_b32 v{vVb[1]}, v{vL4} offset:{OFF_K2}
    ds_read2_b64 {v(vQ1[1],4)}, v{vQA[2]} offset0:0 offset1:1
    ds_read_b32 v{vQ2[1]}, v{vQA[3]} offset:32
    ds_read_b128 {v(vK1[0],4)}, v{vAK1} offset:{OFF_K1}
    ds_read_b32 v{vK2[0]}, v{vAK2} offset:{OFF_K2}
    ds_read_b128 {v(vVa[0],4)}, v{vAV} offset:{OFF_VA}
    ds_read_b128 {v(vVb[0],4)}, v{vAV} offset:{OFF_VB}
    ds_read_b128 {v(vK1[1],4)}, v{vAK1} offset:{2*TILE+OFF_K1}
    ds_read_b32 v{vK2[1]}, v{vAK2} offset:{2*TILE+OFF_K2}
    v_mov_b32 v{vVb[1]+1}, 0
    v_mov_b32 v{vQ2[0]+1}, 0
    v_mov_b32 v{vQ2[1]+1}, 0
    v_mov_b32 v{vK2[0]+1}, 0x3f803f80
    v_mov_b32 v{vK2[1]+1}, 0x3f803f80
    """)
    def qk(dst, k1, k2, q):
        return (f"v_mfma_f32_32x32x8_bf16 {v(dst,16)}, {v(k2,2)}, {v(vQ2[q],2)}, 0",
                f"v_mfma_f32_32x32x16_bf16 {v(dst,16)}, {v(k1,4)}, {v(vQ1[q],4)}, {v(dst,16)}")
    def set_m(m, q, t, exact):
        if exact:
            A(f"""
            v_mov_b32 v{t}, v{m}
            s_nop 1
            v_permlane32_swap_b32 v{m}, v{t}
            s_nop 1
            v_max_f32 v{m}, v{m}, v{t}
            """)
        A(f"v_xor_b32 v{m}, 0x80000000, v{m}")
        if exact:
            A(f"""
            v_and_b32 v{t}, 0xffff0000, v{m}         ; hi
            v_sub_f32 v{t+1}, v{m}, v{t}             ; r1
            v_and_b32 v{t+2}, 0xffff0000, v{t+1}     ; mid
            v_sub_f32 v{t+1}, v{t+1}, v{t+2}         ; r2
            v_lshrrev_b32 v{t}, 16, v{t}
            v_or_b32 v{t}, v{t}, v{t+2}
            v_lshrrev_b32 v{t+1}, 16, v{t+1}
            v_cndmask_b32 v{vQ2[q]+1}, v{t+1}, v{t}, s[{sLo32}:{sLo32+1}]
            """)
        else:
            A(f"""
            v_lshrrev_b32 v{t}, 16, v{m}
            v_cndmask_b32 v{vQ2[q]+1}, 0, v{t}, s[{sLo32}:{sLo32+1}]
            """)
    def tile_max(m, S_, init):
        if init:
            A(f"v_max3_f32 v{m}, v{S_}, v{S_+1}, v{S_+2}")
            for i in range(3, 15, 2):
                A(f"v_max3_f32 v{m}, v{m}, v{S_+i}, v{S_+i+1}")
            A(f"v_max_f32 v{m}, v{m}, v{S_+15}")
        else:
            for i in range(0, 16, 2):
                A(f"v_max3_f32 v{m}, v{m}, v{S_+i}, v{S_+i+1}")
    A("s_waitcnt lgkmcnt(8)")
    a, b = qk(vS[1], vVa[1], vVb[1], 0); A(a); A(b)
    A("s_waitcnt lgkmcnt(6)")
    a, b = qk(vS[2], vVa[1], vVb[1], 1); A(a); A(b)
    A("s_nop 8")
    tile_max(vM, vS[1], True)
    set_m(vM, 0, vT, False)
    A(f"s_mov_b32 s{sT2}, {16*TILE}")
    A("s_waitcnt lgkmcnt(4)")
    a, b = qk(vS[0], vK1[0], vK2[0], 0); A(a); A(b)
    tile_max(vM, vS[2], True)
    set_m(vM, 1, vT, False)
    for i in range(4):
        A(f"v_mov_b32 v{vVb[1]+i}, 0")
    ST.mark(5)
    A.raw(".p2align 6")
    A.label("L_loop")
    for u in range(16):
        i, q = u // 2, u % 2
        X = vS[u % 4]; Y = vS[(u + 1) % 4]; Z = vS[(u - 1) % 4]
        inx, qn = (u + 1) // 2, (u + 1) % 2
        ip, qp = (u - 1) // 2, (u - 1) % 2
        e = lambda k: A(f"v_exp_f32 v{X+k}, v{X+k}")
        a, b = qk(Y, vK1[inx % 2], vK2[inx % 2], qn)
        if q == 0:
            av, o = (vAVs, 0) if u == 12 else (vAV, (2*i+2)*TILE)
            r1 = f"ds_read_b128 {v(vVb[(i+1)%2],4)}, v{av} offset:{o+OFF_VB}"
            r2 = f"ds_read_b128 {v(vVa[(i+1)%2],4)}, v{av} offset:{o+OFF_VA}"
        else:
            a1, a2, o = (vAK1s, vAK2s, 0) if u == 11 else (vAK1, vAK2, (2*i+4)*TILE)
            r1 = f"ds_read_b128 {v(vK1[i%2],4)}, v{a1} offset:{o+OFF_K1}"
            r2 = f"ds_read_b32 v{vK2[i%2]}, v{a2} offset:{o+OFF_K2}"
        e(0); e(1); A(a); e(2); e(3); e(4); e(5); A(b)
        if u == 7: A(f"s_cmp_eq_u32 s{sIter}, 0")
        if u == 14:
            A(f"s_cmp_eq_u32 s{sIter}, 2")
            A(f"s_cselect_b32 s{sDelta}, {(16*TILE - 62*TILE) & 0xffffffff}, s{sT2}")
        if u == 15:
            A(f"s_add_u32 s{sIter}, s{sIter}, 1")
            A(f"s_cmp_eq_u32 s{sIter}, 1")
        e(6); e(7); e(8); e(9)
        A(f"v_smfmac_f32_32x32x32_bf16 {v(vO[qp],16)}, {v(vVb[ip%2],4)}, {v(Z+8,8)}, v{vIdx}")
        A("s_waitcnt lgkmcnt(0)")
        A(r1)
        e(10); e(11); e(12); e(13)
        A(f"v_smfmac_f32_32x32x32_bf16 {v(vO[q],16)}, {v(vVa[i%2],4)}, {v(X,8)}, v{vIdx}")
        A(r2)
        e(14); e(15)
        if u == 7:
            A("s_cbranch_scc1 L_bar0")
            A.label("L_bar0_ret")
    A(f"""
    v_add_u32 v{vAK1}, {16*TILE}, v{vAK1}
    v_add_u32 v{vAK2}, {16*TILE}, v{vAK2}
    v_add_u32 v{vAV}, {16*TILE}, v{vAV}
    v_add_u32 v{vAK1s}, s{sDelta}, v{vAK1s}
    v_add_u32 v{vAK2s}, s{sDelta}, v{vAK2s}
    v_add_u32 v{vAVs}, s{sDelta}, v{vAVs}
    s_cbranch_scc1 L_loop
    s_cmp_eq_u32 s{sIter}, 4
    s_cbranch_scc1 L_fin
    s_waitcnt lgkmcnt(0)
    s_cmp_eq_u32 s{sIter}, 3
    s_cbranch_scc1 L_prog
    s_barrier                                        ; L3
    s_branch L_loop
    """)
    A.label("L_prog")
    A(f"""
    v_mov_b32 v{vT+5}, {SELA}
    v_mov_b32 v{vT+1}, 1
    s_mov_b64 exec, 1
    ds_add_u32 v{vT+5}, v{vT+1} offset:8
    s_mov_b64 exec, -1
    ds_read_b32 v{vT+4}, v{vT+5} offset:4
    s_lshl_b32 s{sT}, s{sWave}, 2
    s_add_u32 s{sT}, s{sT}, {PFL}
    v_mov_b32 v{vT}, s{sT}
    v_xor_b32 v{vT+6}, 4, v{vT}                      ; partner's
    s_branch L_loop
    """)
    A.label("L_bar0")
    A("s_waitcnt lgkmcnt(0)\ns_barrier                                        ; L0\ns_branch L_bar0_ret")
    A.label("L_fin")
    ST.mark(6)
    A(f"v_smfmac_f32_32x32x32_bf16 {v(vO[1],16)}, {v(vVb[1],4)}, {v(vS[3]+8,8)}, v{vIdx}")
    A(f"""
    v_cmp_eq_u32 vcc, 0, v{vT+4}
    s_mov_b32 s{sIter}, 0
    s_cbranch_vccz L_rdy
    """)
    A.label("L_rdy_spin")
    A(f"""
    s_sleep 1
    ds_read_b32 v{vT+4}, v{vT+5} offset:4
    s_add_u32 s{sIter}, s{sIter}, 1
    s_cmp_gt_u32 s{sIter}, {SPIN_MAX*8}
    s_cbranch_scc1 L_rdy
    s_waitcnt lgkmcnt(0)
    v_cmp_eq_u32 vcc, 0, v{vT+4}
    s_cbranch_vccnz L_rdy_spin
    """)
    A.label("L_rdy")
    A(f"""
    ds_write_b128 v{vEXo}, {v(vO[0],4)}
    ds_write_b128 v{vEXo}, {v(vO[0]+4,4)} offset:1024
    ds_write_b128 v{vEXo}, {v(vO[0]+8,4)} offset:2048
    ds_write_b32 v{vT}, v{vT+1}
    s_mov_b32 s{sT}, 0x5f800000             ; 2^64
    s_mov_b32 s{sT2}, 0x1f800000            ; 2^-64
    """)
    A.label("L_pair_spin")
    A(f"""
    ds_read_b32 v{vT+2}, v{vT+6}
    ds_read_b128 {v(vS[0]+8,4)}, v{vEXp} offset:2048
    ds_read_b128 {v(vS[0],4)}, v{vEXp}
    ds_read_b128 {v(vS[0]+4,4)}, v{vEXp} offset:1024
    s_add_u32 s{sIter}, s{sIter}, 1
    s_cmp_gt_u32 s{sIter}, {SPIN_MAX*8}
    s_cbranch_scc1 L_pair
    s_waitcnt lgkmcnt(3)
    v_cmp_eq_u32 vcc, 0, v{vT+2}
    s_cbranch_vccz L_pair
    {f"s_sleep {PSL}" if PSL else ""}
    s_branch L_pair_spin
    """)
    A.label("L_pair")
    A("s_waitcnt lgkmcnt(2)")
    O = vO[1]
    for i in range(8, 12):
        A(f"v_add_f32 v{O+i}, v{O+i}, v{vS[0]+i}")
    def l_bcast():
        A(f"""
        v_mov_b32 v{vT+2}, v{O+8}
        v_mov_b32 v{vT+3}, v{O+8}
        s_nop 1
        v_permlane32_swap_b32 v{vT+2}, v{vT+3}
        """)
    l_bcast()
    A("s_waitcnt lgkmcnt(0)")
    for i in range(8):
        A(f"v_add_f32 v{O+i}, v{O+i}, v{vS[0]+i}")
    A(f"v_maximum3_f32 v{vT}, abs(v{O}), abs(v{O+1}), abs(v{O+2})")
    A(f"v_maximum3_f32 v{vT+1}, abs(v{O+3}), abs(v{O+4}), abs(v{O+5})")
    A(f"v_maximum3_f32 v{vT}, v{vT}, abs(v{O+6}), abs(v{O+7})")
    A(f"v_maximum3_f32 v{vT+1}, v{vT+1}, abs(v{O+8}), abs(v{O+9})")
    A(f"v_maximum3_f32 v{vT}, v{vT}, abs(v{O+10}), abs(v{O+11})")
    A(f"""
    v_add_f32 v{vT}, v{vT}, v{vT+1}
    v_fma_f32 v{vT}, 0, v{vT}, v{vT+3}
    v_cmp_nge_f32 vcc, s{sT}, v{vT}           ; !(2^64 >= l)
    v_cmp_gt_f32 s[{sMask}:{sMask+1}], s{sT2}, v{vT}     ; 2^-64 > l
    s_or_b64 vcc, vcc, s[{sMask}:{sMask+1}]
    s_cbranch_vccnz L_fallback
    """)
    A.label("L_store")
    A(f"v_rcp_f32 v{vT}, v{vT+3}")
    A(f"s_mov_b32 s{sT}, 0xfffffffe")
    for i in range(12):
        A(f"v_mul_f32 v{O+i}, v{O+i}, v{vT}")
    for i in range(6):
        A(f"v_cvt_pk_bf16_f32 v{vS[0]+i}, v{O+2*i}, v{O+2*i+1}")
    for i in range(6):
        A(f"v_min_u32 v{vS[0]+i}, s{sT}, v{vS[0]+i}")
    A(f"""
    v_cmp_eq_u32 vcc, 3, v{vT+4}
    s_cbranch_vccnz L_st_fast
    buffer_store_dwordx4 {v(vS[0],4)}, v{vSM}, {wsd}, s{sStM} offen sc1
    s_mov_b64 exec, s[{sLo32}:{sLo32+1}]
    buffer_store_dwordx2 {v(vS[0]+4,2)}, v{vSTl}, {wsd}, s{sStT} offen sc1
    s_branch L_st_done
    """)
    A.label("L_st_fast")
    if stamp: A(f"v_writelane_b32 v{vSt}, 1, 13")
    A(f"""
    buffer_store_dwordx4 {v(vS[0],4)}, v{vSM}, {wsd}, s{sStM} offen
    s_mov_b64 exec, s[{sLo32}:{sLo32+1}]
    buffer_store_dwordx2 {v(vS[0]+4,2)}, v{vSTl}, {wsd}, s{sStT} offen
    """)
    A.label("L_st_done")
    A(f"""
    s_mov_b64 exec, -1
    """)
    ST.mark(8)
    vOF = 8
    vWB = [48, 68, 88]
    vAcc = 108
    vTB = [vAK1, vAK2, vAV, vGV]
    vXO, g, omg, vTA = vAK1s, vAK2s, vAVs, vEXo
    TAR = WO_L + 102400
    YC = PFL + 32
    def ldswait(lab, addr, off, target, sl):
        A(f"s_mov_b32 s{sT2}, 0")
        A.label(f"L_lw{lab}")
        A(f"""
        ds_read_b32 v{vT+1}, v{addr} offset:{off}
        s_add_u32 s{sT2}, s{sT2}, 1
        s_cmp_gt_u32 s{sT2}, {SPIN_MAX*8}
        s_waitcnt lgkmcnt(0)
        s_cbranch_scc1 L_lw{lab}_done
        v_readfirstlane_b32 s{sT}, v{vT+1}
        s_nop 0
        s_cmp_eq_u32 s{sT}, {target}
        s_cbranch_scc1 L_lw{lab}_done
        {f"s_sleep {sl}" if sl else ""}
        s_branch L_lw{lab}
        """)
        A.label(f"L_lw{lab}_done")
    def oload(k):
        so = (sOFs, sStM, sStT)[k // 4]
        A(f"buffer_load_dwordx4 {v(vOF+4*k,4)}, v{vL16}, {wsd}, s{so} offen offset:{(k%4)*1024} sc1")
    def wread(k, nt):
        for sidx in range(2):
            k5 = k % 5
            if k5 < 4: bi, off = 0, k5*6400 + sidx*1280
            else: bi, off = 2, 2560 + sidx*3200
            if nt < 4: col = (nt//2)*64 + (nt % 2)*8
            else: bi += 1; col = 128
            A(f"ds_read_b64_tr_b16 {v(vWB[k%3]+4*nt+2*sidx,2)}, v{vTB[bi]} offset:{(k//5)*25600 + off + col}")
    A(f"""
    s_add_u32 s{sStM}, s{sOFs}, 4096
    s_add_u32 s{sStT}, s{sOFs}, 8192
    s_cmp_eq_u32 s{sHl}, 0
    s_cbranch_scc1 L_ph_ld
    v_mov_b32 v{vT+1}, 1
    s_mov_b64 exec, 1
    ds_add_u32 v{vT+5}, v{vT+1} offset:{YC-SELA}
    s_mov_b64 exec, -1
    """)
    ldswait("y", vT+5, YC-SELA, 4, 0)
    ST.mark(11)
    A.label("L_ph_ld")
    A(f"""
    s_cmp_lg_u32 s{sHl}, 0
    s_cbranch_scc1 L_ph_ld2
    s_setprio 0
    {f"s_sleep {OSL}" if OSL else ""}
    """)
    A.label("L_ph_ld2")
    for k in range(10): oload(k)
    A(f"""
    s_and_b32 s{sT}, s{sWave}, 3
    s_lshl_b32 s{sT}, s{sT}, 4
    v_add_u32 v{vT}, s{sT}, v{vTok}
    v_lshlrev_b32 v{vT+1}, 2, v{vT}
    v_add_u32 v{vT+1}, {GL}, v{vT+1}
    ds_read_b32 v{g}, v{vT+1}
    ds_read_b32 v{vT+6}, v{vT+5}
    s_mul_i32 s{sT}, s{sT}, 320
    s_add_u32 s{sT}, s{sT}, {TAR}
    v_add_u32 v{vTA}, s{sT}, v{vL16}
    s_mul_i32 s{sT}, s{sHl}, 51200
    s_add_u32 s{sT}, s{sT}, {WO_L}
    v_lshrrev_b32 v{vT+1}, 2, v{vTok}
    v_and_b32 v{vT+2}, 3, v{vLane}
    v_mad_u32_u24 v{vT+3}, v{vHalf}, 12, v{vT+1}
    v_lshl_add_u32 v{vT+3}, v{vG4}, 2, v{vT+3}
    v_mad_u32_u24 v{vT+4}, v{vG4}, 40, v{vT+1}
    v_mul_u32_u24 v{vT+3}, 160, v{vT+3}
    v_mul_u32_u24 v{vT+4}, 160, v{vT+4}
    v_add_u32 v{vT+3}, s{sT}, v{vT+3}
    v_add_u32 v{vT+4}, s{sT}, v{vT+4}
    v_lshl_add_u32 v{vTB[0]}, v{vT+2}, 4, v{vT+3}
    v_lshl_add_u32 v{vTB[1]}, v{vT+2}, 3, v{vT+3}
    v_lshl_add_u32 v{vTB[2]}, v{vT+2}, 4, v{vT+4}
    v_lshl_add_u32 v{vTB[3]}, v{vT+2}, 3, v{vT+4}
    v_mul_u32_u24 v{vT+1}, 1280, v{vTok}
    v_lshl_add_u32 v{vXO}, v{vG4}, 4, v{vT+1}
    v_lshl_add_u32 v{vEXp}, v{vG4}, 3, v{vT+1}
    s_and_b32 s{sT}, s{sWave}, 3
    s_lshl_b32 s{sT}, s{sT}, 2
    v_add_u32 v{vSM}, s{sT}, v{vT+5}
    s_mov_b32 s{sIter}, 0
    s_waitcnt lgkmcnt(0)
    v_cmp_eq_u32 s[{sMask}:{sMask+1}], v{vT+6}, v{vT}
    s_cmp_eq_u32 s{sHl}, 0
    s_cbranch_scc1 L_ph
    """)
    ldswait("w", vT+5, 12, 1, 1)
    A.label("L_ph")
    for k in range(3):
        for nt in range(5): wread(k, nt)
    for seg in range(2):
        A(f"s_waitcnt vmcnt({5 if seg == 0 else 0})")
        A.label(f"L_chk{seg}")
        f = vOF + 20*seg
        A(f"v_max3_u32 v{vT+3}, v{f}, v{f+1}, v{f+2}")
        A(f"v_max3_u32 v{vT+4}, v{f+3}, v{f+4}, v{f+5}")
        for i in range(6, 20, 2):
            t = vT + 3 + (i//2) % 2
            A(f"v_max3_u32 v{t}, v{t}, v{f+i}, v{f+i+1}")
        A(f"""
        v_max_u32 v{vT+3}, v{vT+3}, v{vT+4}
        v_cmp_eq_u32 vcc, -1, v{vT+3}
        s_cbranch_vccz L_ok{seg}
        s_add_u32 s{sIter}, s{sIter}, 1
        s_cmp_gt_u32 s{sIter}, {SPIN_MAX}
        s_cbranch_scc1 L_ok{seg}
        s_cmp_lg_u32 s{sHl}, 0
        s_cbranch_scc1 L_nosl{seg}
        s_sleep {RSL}
        """)
        A.label(f"L_nosl{seg}")
        for k in range(5*seg, 10): oload(k)
        A(f"s_waitcnt vmcnt({5 if seg == 0 else 0})")
        A(f"s_branch L_chk{seg}")
        A.label(f"L_ok{seg}")
        ST.mark(9 if seg == 0 else 17)
        if seg == 1:
            A(f"s_cmp_lg_u32 s{sHl}, 0\ns_cbranch_scc1 L_nox")
            A(f"buffer_load_dwordx4 {v(128,4)}, v{vXO}, {xd}, s{sE2} offen")
            A(f"buffer_load_dwordx4 {v(132,4)}, v{vXO}, {xd}, s{sE2} offen offset:64")
            A(f"buffer_load_dwordx2 {v(136,2)}, v{vEXp}, {xd}, s{sE2} offen offset:128")
            A.label("L_nox")
        for k in range(5*seg, 5*seg + 5):
            A(f"s_waitcnt lgkmcnt({10 if k < 8 else 0})")
            for nt in range(5):
                c = "0" if k == 0 else v(vAcc+4*nt, 4)
                A(f"v_mfma_f32_16x16x32_bf16 {v(vAcc+4*nt,4)}, {v(vWB[k%3]+4*nt,4)}, {v(vOF+4*k,4)}, {c}")
                if k + 3 < 10: wread(k + 3, nt)
    ST.mark(10)
    if stamp: A(f"v_writelane_b32 v{vSt}, s{sIter}, 14")
    A(f"""
    s_cmp_lg_u32 s{sHl}, 0
    s_cbranch_scc1 L_epi
    s_waitcnt vmcnt(0)
    s_cmp_eq_u64 s[{sMask}:{sMask+1}], 0
    s_cbranch_scc1 L_nosel
    """)
    ldswait("u", vT+5, 12, 1, 2)
    A(f"""
    v_lshlrev_b32 v{vT+1}, 5, v{vG4}
    v_add_u32 v{vT+1}, {SELA+16}, v{vT+1}
    v_lshlrev_b32 v{vT+2}, 4, v{vG4}
    v_add_u32 v{vT+2}, {SELA+16+256}, v{vT+2}
    """)
    for p_ in range(2):
        A(f"ds_read_b128 {v(vOF+12+8*p_,4)}, v{vT+1} offset:{128*p_}")
        A(f"ds_read_b128 {v(vOF+16+8*p_,4)}, v{vT+1} offset:{128*p_+16}")
    A(f"ds_read_b128 {v(vOF+28,4)}, v{vT+2}")
    A(f"s_mov_b64 exec, s[{sMask}:{sMask+1}]")
    A("s_waitcnt lgkmcnt(0)")
    for i in range(10):
        A(f"v_lshlrev_b32 v{vOF}, 16, v{128+i}")
        A(f"v_and_b32 v{vOF+1}, 0xffff0000, v{128+i}")
        A(f"v_add_f32 v{vOF}, v{vOF}, v{vOF+12+2*i}")
        A(f"v_add_f32 v{vOF+1}, v{vOF+1}, v{vOF+13+2*i}")
        A(f"v_cvt_pk_bf16_f32 v{128+i}, v{vOF}, v{vOF+1}")
    A("s_mov_b64 exec, -1")
    A.label("L_nosel")
    A(f"""
    v_sub_f32 v{omg}, 1.0, v{g}
    v_cvt_pk_bf16_f32 v{omg}, v{omg}, v{omg}
    v_and_b32 v{omg}, 0xffff0000, v{omg}
    """)
    for i in range(10):
        A(f"v_lshlrev_b32 v{vOF+2*i}, 16, v{128+i}")
        A(f"v_and_b32 v{vOF+2*i+1}, 0xffff0000, v{128+i}")
    for i in range(20):
        A(f"v_mul_f32 v{vOF+i}, v{omg}, v{vOF+i}")
    for i in range(20):
        A(f"v_fma_f32 v{vAcc+i}, v{g}, v{vAcc+i}, v{vOF+i}")
    ldswait("t", vT+5, YC-SELA, 4, 1)
    for nt in range(5):
        A(f"ds_write_b128 v{vTA}, {v(vAcc+4*nt,4)} offset:{1024*nt}")
    A(f"""
    v_mov_b32 v{vT+1}, 1
    ds_write_b32 v{vSM}, v{vT+1} offset:{YC+4-SELA}
    s_branch L_done
    """)
    A.label("L_epi")
    A(f"s_mov_b32 s{sT2}, 0")
    A.label("L_tin")
    A(f"ds_read_b32 v{vT+1}, v{vSM} offset:{YC+4-SELA}")
    for nt in range(5):
        A(f"ds_read_b128 {v(vOF+12+4*nt,4)}, v{vTA} offset:{1024*nt}")
    A(f"""
    s_add_u32 s{sT2}, s{sT2}, 1
    s_cmp_gt_u32 s{sT2}, {SPIN_MAX*8}
    s_cbranch_scc1 L_tin_done
    s_waitcnt lgkmcnt(5)
    v_cmp_eq_u32 vcc, 0, v{vT+1}
    s_cbranch_vccnz L_tin
    """)
    A.label("L_tin_done")
    for gi, grp in enumerate(((0, 8), (8, 16), (16, 20))):
        A(f"s_waitcnt lgkmcnt({(3, 1, 0)[gi]})")
        for i in range(*grp):
            A(f"v_fma_f32 v{vAcc+i}, v{g}, v{vAcc+i}, v{vOF+12+i}")
        for i in range(grp[0]//2, grp[1]//2):
            A(f"v_cvt_pk_bf16_f32 v{vOF+i}, v{vAcc+2*i}, v{vAcc+2*i+1}")
        if grp[0] < 16:
            A(f"buffer_store_dwordx4 {v(vOF+grp[0]//2,4)}, v{vXO}, {dd}, s{sE2} offen offset:{8*grp[0]}")
        else:
            A(f"buffer_store_dwordx2 {v(vOF+8,2)}, v{vEXp}, {dd}, s{sE2} offen offset:128")
    A.label("L_done")
    ST.dump()
    A.label("L_end")
    A("s_endpgm")

    A.label("L_fallback")
    A(f"""
    v_mov_b32 v{vQ2[1]+1}, 0
    v_mov_b32 v{vM}, 0xff800000
    s_mov_b32 s{sT}, {WS_KV}
    """)
    A.label("L_fb1")
    A(f"""
    buffer_load_dwordx4 {v(vK1[0],4)}, v{vL16}, {wsd}, s{sT} offen offset:{OFF_K1} sc1
    buffer_load_dword v{vK2[0]}, v{vL4}, {wsd}, s{sT} offen offset:{OFF_K2} sc1
    s_waitcnt vmcnt(0)
    """)
    a, b = qk(vS[0], vK1[0], vK2[0], 1); A(a); A(b)
    A("s_nop 15")
    tile_max(vM, vS[0], False)
    A(f"""
    s_add_u32 s{sT}, s{sT}, {TILE}
    s_cmp_lt_u32 s{sT}, {WS_KV + KV_BYTES}
    s_cbranch_scc1 L_fb1
    """)
    set_m(vM, 1, vT, True)
    for i in range(16):
        A(f"v_mov_b32 v{O+i}, 0")
    A(f"s_mov_b32 s{sT}, {WS_KV}")
    A.label("L_fb2")
    A(f"""
    buffer_load_dwordx4 {v(vK1[0],4)}, v{vL16}, {wsd}, s{sT} offen offset:{OFF_K1} sc1
    buffer_load_dword v{vK2[0]}, v{vL4}, {wsd}, s{sT} offen offset:{OFF_K2} sc1
    buffer_load_dwordx4 {v(vVa[0],4)}, v{vGV}, {wsd}, s{sT} offen offset:{OFF_VA} sc1
    buffer_load_dwordx4 {v(vVb[0],4)}, v{vGV}, {wsd}, s{sT} offen offset:{OFF_VB} sc1
    s_waitcnt vmcnt(0)
    """)
    a, b = qk(vS[0], vK1[0], vK2[0], 1); A(a); A(b)
    A("s_nop 15")
    for i in range(16):
        A(f"v_exp_f32 v{vS[0]+i}, v{vS[0]+i}")
    A("s_nop 1")
    A(f"v_smfmac_f32_32x32x32_bf16 {v(O,16)}, {v(vVa[0],4)}, {v(vS[0],8)}, v{vIdx}")
    A(f"v_smfmac_f32_32x32x32_bf16 {v(O,16)}, {v(vVb[0],4)}, {v(vS[0]+8,8)}, v{vIdx}")
    A(f"""
    s_nop 15
    s_add_u32 s{sT}, s{sT}, {TILE}
    s_cmp_lt_u32 s{sT}, {WS_KV + KV_BYTES}
    s_cbranch_scc1 L_fb2
    """)
    l_bcast()
    A("s_nop 1")
    A("s_branch L_store")

    H = RegAlloc(8)
    hN = H.alloc("nonce", 4, 4)
    hFA = H.alloc("fa"); hGA = H.alloc("ga"); hOwn = H.alloc("own")
    hKey = H.alloc("key", 2, 2)
    hX = H.alloc("X", 80, 4)
    hD = H.alloc("D", 40, 4)
    assert H.next <= vIdx, (H.next, vIdx)
    hAc = hX + 64
    FST = 2 * TILE
    XSL = FST + 20480
    sF, sIdx, sKey, sSpin, sN = sA, sA + 1, sA + 2, sA + 3, sA + 4
    sH = 76
    sXcc, sFast = 96, 97
    A.label("L_helper")
    A(f"s_setprio {HP}")
    srd(sDD, pDBG, 256)
    A(f"""
    v_mov_b32 v{vT+2}, 0
    s_cmp_lg_u32 s2, 0
    s_cbranch_scc1 L_h_nolead
    s_memrealtime s[{sN}:{sN+1}]
    s_waitcnt lgkmcnt(0)
    s_or_b32 s{sN}, s{sN}, 1
    v_mov_b32 v{hN}, s{sN}
    v_mov_b32 v{hN+1}, s{sN+1}
    s_mov_b64 exec, 1
    buffer_store_dwordx2 {v(hN,2)}, v{vT+2}, {dd}, 0 offen sc1
    s_mov_b64 exec, -1
    """)
    A.label("L_h_nolead")
    A(f"""
    s_cmp_lt_u32 s{sFid}, 236
    s_cbranch_scc1 L_h_noyz
    v_mov_b32 v{hX}, 0
    v_mov_b32 v{hX+1}, 0
    v_mov_b32 v{hX+2}, 0
    v_mov_b32 v{hX+3}, 0
    s_lshl_b32 s{sT}, s{sFid}, 10
    s_add_u32 s{sT}, s{sT}, {WS_Y - 236*1024}
    buffer_store_dwordx4 {v(hX,4)}, v{vL16}, {wsd}, s{sT} offen sc1
    """)
    A.label("L_h_noyz")
    A(f"""
    v_mov_b32 v{vT}, {CNT}
    ds_write2_b32 v{vT}, v{vT+2}, v{vT+2} offset0:0 offset1:1
    s_mov_b32 s{sT}, {18*1024}
    s_waitcnt lgkmcnt(0)
    s_barrier                                        ; F0
    """)
    srd(sKVD, pWS, KV_BYTES, WS_KV)
    hP = [vIdx, vAK1, vAK2, vAV, vM]
    for ph in range(5):
        A(f"""
        v_add_u32 v{vT}, {64*ph}, v{vLane}
        v_mul_u32_u24 v{vT+1}, 205, v{vT}
        v_lshrrev_b32 v{vT+1}, 11, v{vT+1}
        v_mul_u32_u24 v{vT+3}, {1280-160}, v{vT+1}
        v_lshl_add_u32 v{hP[ph]}, v{vLane}, 4, v{vT+3}
        """)
    A(f"v_add_u32 v{hP[4]}, 4096, v{hP[4]}")
    A(f"""
    v_lshrrev_b32 v{vT}, 2, v{vTok}
    v_lshl_add_u32 v{vT}, v{vG4}, 3, v{vT}
    v_lshlrev_b32 v{vT}, 4, v{vT}
    v_and_b32 v{vT+1}, 1, v{vLane}
    v_lshl_add_u32 v{vT}, v{vT+1}, 3, v{vT}
    v_bfe_u32 v{vT+1}, v{vLane}, 1, 1
    v_mul_u32_u24 v{vT+1}, 10240, v{vT+1}
    v_add3_u32 v{vGV}, v{vT}, v{vT+1}, 0
    v_add_u32 v{vGV}, {FST}, v{vGV}
    v_lshlrev_b32 v{vAVs}, 4, v{vG4}
    v_add_u32 v{vAVs}, {XSL}, v{vAVs}
    ; w_down slab tr address: r*1280 + g*32 + (l%4)*8
    v_lshrrev_b32 v{vT}, 2, v{vTok}
    v_mul_u32_u24 v{vT}, 1280, v{vT}
    v_lshl_add_u32 v{vT}, v{vG4}, 5, v{vT}
    v_and_b32 v{vT+1}, 3, v{vLane}
    v_lshl_add_u32 v{vT}, v{vT+1}, 3, v{vT}
    v_add_u32 v{vAK1s}, {FST}, v{vT}
    v_add_u32 v{vAK2s}, {FST}, v{vL16}
    v_mul_u32_u24 v{vEXo}, 3072, v{vLane}
    v_lshlrev_b32 v{hFA}, 5, v{vLane}
    v_and_b32 v{hGA}, 7, v{vLane}
    v_lshlrev_b32 v{hGA}, 5, v{hGA}
    s_lshl_b32 s{sT}, s{sG}, 8
    s_add_u32 s{sT}, s{sT}, {WS_FLAG + 3*8192}
    v_add_u32 v{hGA}, s{sT}, v{hGA}
    s_lshl_b32 s{sT}, s{sFid}, 5
    s_add_u32 s{sT}, s{sT}, {WS_FLAG}
    v_mov_b32 v{hOwn}, s{sT}
    s_mov_b32 s{sT}, {18*1024}
    """)
    A("s_waitcnt vmcnt(0)")
    sig(1)
    A(f"buffer_load_dwordx2 {v(hN,2)}, v{vT+2}, {dd}, 0 offen sc1")
    ST.mark(2)
    A("s_waitcnt vmcnt(0)")
    A(f"s_mov_b32 s{sSpin}, 0")
    A(f"v_cmp_eq_u32 vcc, 0, v{hN}")
    A("s_cbranch_vccz L_h_nonce_done")
    A.label("L_h_nonce")
    A(f"""
    buffer_load_dwordx2 {v(hN,2)}, v{vT+2}, {dd}, 0 offen sc1
    s_add_u32 s{sSpin}, s{sSpin}, 1
    s_cmp_gt_u32 s{sSpin}, {SPIN_MAX}
    s_cbranch_scc1 L_h_nonce_done
    s_waitcnt vmcnt(0)
    v_cmp_eq_u32 vcc, 0, v{hN}
    s_cbranch_vccnz L_h_nonce
    """)
    A.label("L_h_nonce_done")
    A(f"""
    s_waitcnt vmcnt(0)
    s_mov_b32 s{sT2}, 2
    s_mov_b32 s{sSpin}, 0
    """)
    def cntwait(lab, shift, target, sl=1):
        A(f"s_mov_b32 s{sSpin}, 0")
        A.label(f"L_h_cnt{lab}")
        A(f"""
        s_sleep {sl}
        ds_read_b32 v{vT+1}, v{vT}
        s_add_u32 s{sSpin}, s{sSpin}, 1
        s_cmp_gt_u32 s{sSpin}, {SPIN_MAX*8}
        s_cbranch_scc1 L_h_cnt{lab}_done
        s_waitcnt lgkmcnt(0)
        v_readfirstlane_b32 s{sT}, v{vT+1}
        s_nop 0
        s_bfe_u32 s{sT}, s{sT}, {hex(0x100000 | shift)}
        s_cmp_lg_u32 s{sT}, {target}
        s_cbranch_scc1 L_h_cnt{lab}
        """)
        A.label(f"L_h_cnt{lab}_done")
    def publish(word):
        A(f"""
        s_mov_b32 s{sT}, {8192*word}
        s_mov_b64 exec, 1
        buffer_store_dwordx2 {v(hN,2)}, v{hOwn}, {wsd}, s{sT} offen sc1
        s_mov_b64 exec, -1
        """)
    ST.mark(3)
    def poll(word, parts, lab, slow=False, sleep=0):
        A(f"s_mov_b32 s{sSpin}, 0")
        A(f"s_mov_b32 s{sT2}, {WS_FLAG + 8192*word}")
        A(f"s_mov_b32 s{sT}, {WS_FLAG + 8192*word + 4096}")
        A.label(f"L_poll{lab}")
        for i in parts:
            A(f"buffer_load_dwordx2 {v(hAc+2*i,2)}, v{hFA}, {wsd}, s{sT2 if i < 2 else sT} offen offset:{2048*(i%2)} sc1")
        A(f"""
        s_add_u32 s{sSpin}, s{sSpin}, 1
        s_cmp_gt_u32 s{sSpin}, {SPIN_MAX}
        s_cbranch_scc1 L_poll{lab}_done
        s_waitcnt vmcnt(0)
        """)
        A(f"v_cmp_ne_u64 vcc, {v(hAc+2*parts[0],2)}, {v(hN,2)}")
        for i in parts[1:]:
            A(f"v_cmp_ne_u64 s[{sMask}:{sMask+1}], {v(hAc+2*i,2)}, {v(hN,2)}")
            A(f"s_or_b64 vcc, vcc, s[{sMask}:{sMask+1}]")
        if sleep:
            A(f"s_cbranch_vccz L_poll{lab}_done\ns_sleep {sleep}\ns_branch L_poll{lab}")
        else:
            A(f"s_cbranch_vccnz L_poll{lab}")
        A.label(f"L_poll{lab}_done")
    PART = 16 * TILE
    sDq = sH
    def pollkv(lab, nparts, sleep):
        A(f"s_mov_b32 s{sSpin}, 0")
        A.label(f"L_poll{lab}")
        for i in nparts:
            A(f"buffer_load_dwordx4 {v(hX+16+4*i,4)}, v{hFA}, {wsd}, s{sH+4+i} offen sc1")
        A(f"""
        s_add_u32 s{sSpin}, s{sSpin}, 1
        s_cmp_gt_u32 s{sSpin}, {SPIN_MAX}
        s_cbranch_scc1 L_poll{lab}_done
        s_waitcnt vmcnt(0)
        """)
        first = True
        for i in nparts:
            for h2 in range(2):
                if first:
                    A(f"v_cmp_ne_u64 vcc, {v(hX+16+4*i+2*h2,2)}, {v(hN,2)}"); first = False
                else:
                    A(f"v_cmp_ne_u64 s[{sMask}:{sMask+1}], {v(hX+16+4*i+2*h2,2)}, {v(hN,2)}")
                    A(f"s_or_b64 vcc, vcc, s[{sMask}:{sMask+1}]")
        if sleep:
            A(f"s_cbranch_vccz L_poll{lab}_done\ns_sleep {sleep}\ns_branch L_poll{lab}")
        else:
            A(f"s_cbranch_vccnz L_poll{lab}")
        A.label(f"L_poll{lab}_done")
    def kvrun(lab, lds0, n, sD, last_mask=None):
        ng = n // 4
        A(f"s_mov_b32 m0, {lds0}")
        if ng:
            A.label(lab)
            A(f"s_add_u32 s{sT}, m0, s{sD}")
            for j in range(4):
                A(f"buffer_load_dwordx4 v{vL16}, {kvd}, s{sT} offen offset:{j*1024} sc1 lds")
            A(f"""
            s_add_u32 m0, m0, 4096
            s_cmp_lt_u32 m0, {lds0 + ng*4096}
            s_cbranch_scc1 {lab}
            """)
        if n % 4:
            A(f"s_add_u32 s{sT}, m0, s{sD}")
            for j in range(n % 4):
                if last_mask and j == n % 4 - 1: A(f"s_mov_b64 exec, {last_mask}")
                A(f"buffer_load_dwordx4 v{vL16}, {kvd}, s{sT} offen offset:{j*1024} sc1 lds")
            if last_mask: A("s_mov_b64 exec, -1")
    A(f"s_lshr_b32 s{sT2}, s{sFid}, 6")
    if not ROT: A(f"s_mov_b32 s{sT2}, 0")
    for q in range(4):
        A(f"""
        s_add_u32 s{sT}, s{sT2}, {q}
        s_and_b32 s{sT}, s{sT}, 3
        s_lshl_b32 s{sH+4+q}, s{sT}, 11
        s_add_u32 s{sH+4+q}, s{sH+4+q}, {WS_FLAG}
        s_sub_u32 s{sT}, s{sT}, {q}
        s_mul_i32 s{sDq+q}, s{sT}, {PART}
        """)
    cntwait("b", 0, 0x502)
    pollkv("A", [0], PSA)
    ST.mark(4)
    kvrun("L_h_dma0", 0, 32, sDq)
    A(f"""
    s_barrier                                        ; F2a
    s_waitcnt vmcnt(0)
    """)
    ST.mark(10)
    A("s_barrier                                        ; F2")
    kvrun("L_h_dma0b", 32768, 9, sDq)
    pollkv("A2", [1, 2, 3], 0)
    A(f"""
    s_getreg_b32 s{sXcc}, hwreg(HW_REG_XCC_ID)
    s_and_b32 s{sXcc}, s{sXcc}, 0xf
    s_lshl_b32 s{sXcc}, s{sXcc}, 8
    v_xor_b32 v{hN+2}, s{sXcc}, v{hN}
    v_mov_b32 v{hN+3}, 0
    s_mov_b32 s{sT}, {8192*2}
    s_mov_b64 exec, 1
    buffer_store_dwordx4 {v(hN,4)}, v{hOwn}, {wsd}, s{sT} offen sc1
    s_mov_b64 exec, -1
    """)
    kvrun("L_h_dma1", PART, 41, sDq + 1)
    kvrun("L_h_dma2", 2*PART, 41, sDq + 2)
    A("s_waitcnt vmcnt(30)")
    ST.mark(5)
    A(f"""
    s_cmp_ge_u32 s2, 192
    s_cbranch_scc1 L_h_nod
    s_and_b32 s{sF}, s2, 7
    s_mul_i32 s{sF}, s{sF}, 24
    s_lshr_b32 s{sT}, s2, 3
    s_add_u32 s{sF}, s{sF}, s{sT}
    """)
    srd(sWD, pWD, 1536*1280)
    A(f"s_mul_i32 s{sT}, s{sF}, {8*1280}")
    for n in range(10):
        if n and n % 4 == 0: A(f"s_add_u32 s{sT}, s{sT}, 4096")
        A(f"buffer_load_dwordx4 {v(hD+4*n,4)}, v{vL16}, {wd}, s{sT} offen offset:{(n%4)*1024}")
    A.label("L_h_nod")
    A("s_barrier                                        ; L0")
    kvrun("L_h_dma3", 3*PART, 36, sDq + 3)
    A(f"s_add_u32 s{sDq+3}, s{sDq+3}, {LDS_IMG}")
    kvrun("L_h_dma4", 0, 6, sDq + 3, "0xff")
    poll(2, [0, 1, 2, 3], "K")
    A(f"""
    s_mov_b32 s{sT}, {(-8192) & 0xffffffff}
    v_add_u32 v{vT+1}, s{sT}, v{hGA}
    buffer_load_dword v{vT+2}, v{vT+1}, {wsd}, 0 offen offset:8 sc1
    v_lshlrev_b32 v{vT}, 3, v{vLane}
    s_mov_b32 s{sT}, {WS_KEY}
    buffer_load_dwordx2 {v(hKey,2)}, v{vT}, {wsd}, s{sT} offen sc1
    s_cmp_lg_u32 s2, 0
    s_cbranch_scc1 L_h_noreset
    v_mov_b32 v{hX+4}, 0
    v_mov_b32 v{hX+5}, 0
    s_mov_b64 exec, 1
    buffer_store_dwordx2 {v(hX+4,2)}, v{hX+4}, {dd}, 0 offen sc1
    s_mov_b64 exec, -1
    """)
    A.label("L_h_noreset")
    A(f"""
    v_mov_b32 v{hX}, -1
    v_mov_b32 v{hX+1}, -1
    v_mov_b32 v{hX+2}, -1
    v_mov_b32 v{hX+3}, -1
    s_mul_i32 s{sT}, s{sFid}, 10240
    s_add_u32 s{sT}, s{sT}, {WS_OF}
    s_waitcnt vmcnt(0)
    v_cmp_ne_u32 vcc, v{hN+2}, v{vT+2}
    s_mov_b32 s{sFast}, 0
    {"s_cbranch_vccnz L_h_mk_slow" if XFAST else "s_branch L_h_mk_slow"}
    s_mov_b32 s{sFast}, 1
    """)
    def markers(fl):
        for tq in range(2):
            for j in range(4):
                A(f"buffer_store_dwordx4 {v(hX,4)}, v{vL16}, {wsd}, s{sT} offen offset:{1024*j}{fl}")
            A(f"s_add_u32 s{sT}, s{sT}, 4096")
            A(f"buffer_store_dwordx4 {v(hX,4)}, v{vL16}, {wsd}, s{sT} offen{fl}")
            A(f"s_add_u32 s{sT}, s{sT}, 1024")
    markers("")
    A("s_branch L_h_mk_done")
    A.label("L_h_mk_slow")
    markers(" sc1")
    A.label("L_h_mk_done")
    A(f"""
    v_max_u32 v{hKey}, v{hKey}, v{hKey+1}
    s_nop 1
    v_max_u32_dpp v{hKey}, v{hKey}, v{hKey} row_shr:1 row_mask:0xf bank_mask:0xf
    s_nop 1
    v_max_u32_dpp v{hKey}, v{hKey}, v{hKey} row_shr:2 row_mask:0xf bank_mask:0xf
    s_nop 1
    v_max_u32_dpp v{hKey}, v{hKey}, v{hKey} row_shr:4 row_mask:0xf bank_mask:0xf
    s_nop 1
    v_max_u32_dpp v{hKey}, v{hKey}, v{hKey} row_shr:8 row_mask:0xf bank_mask:0xf
    s_nop 1
    v_readlane_b32 s{sKey}, v{hKey}, 15
    v_readlane_b32 s{sT}, v{hKey}, 31
    v_readlane_b32 s{sT2}, v{hKey}, 47
    v_readlane_b32 s{sIdx}, v{hKey}, 63
    s_nop 3
    s_max_u32 s{sKey}, s{sKey}, s{sT}
    s_max_u32 s{sT2}, s{sT2}, s{sIdx}
    s_max_u32 s{sKey}, s{sKey}, s{sT2}
    s_and_b32 s{sIdx}, s{sKey}, 0x7ff
    s_sub_u32 s{sIdx}, 2047, s{sIdx}
    s_lshl_b32 s{sT}, s{sG}, 8
    s_add_u32 s{sT}, s{sT}, {WS_G}
    s_mov_b32 m0, {GL}
    s_nop 0
    buffer_load_dword v{vL4}, {wsd}, s{sT} offen sc1 lds
    s_mul_i32 s{sT}, s{sIdx}, 1280
    s_mov_b32 m0, {XSL}
    s_nop 0
    buffer_load_dwordx4 v{vL16}, {xd}, s{sT} offen lds
    s_mov_b64 exec, 0xffff
    buffer_load_dwordx4 v{vL16}, {xd}, s{sT} offen offset:1024 lds
    s_mov_b64 exec, -1
    """)
    A(f"""
    s_cmp_ge_u32 s2, 192
    s_cbranch_scc1 L_h_noslab
    s_and_b32 s{sF}, s2, 7
    s_mul_i32 s{sF}, s{sF}, 24
    s_lshr_b32 s{sT}, s2, 3
    s_add_u32 s{sF}, s{sF}, s{sT}
    """)
    srd(sWD, pWG, 640*3072)
    srd(sMD, pWU, 640*3072)
    A(f"""
    s_and_b32 s{sSpin}, s{sF}, 7
    s_mov_b32 s{sH}, 0
    """)
    A.label("L_h_slab")
    A(f"""
    s_lshl_b32 s{sT2}, s{sSpin}, 10
    s_add_u32 m0, s{sT2}, {FST}
    s_mul_i32 s{sT}, s{sSpin}, {64*3072}
    s_lshl_b32 s{sH+1}, s{sF}, 4
    s_add_u32 s{sT}, s{sT}, s{sH+1}
    buffer_load_dwordx4 v{vEXo}, {wd}, s{sT} offen lds
    s_add_u32 m0, s{sT2}, {FST + 10240}
    s_add_u32 s{sSpin}, s{sSpin}, 1
    buffer_load_dwordx4 v{vEXo}, {md}, s{sT} offen lds
    s_cmp_eq_u32 s{sSpin}, 10
    s_cselect_b32 s{sSpin}, 0, s{sSpin}
    s_add_u32 s{sH}, s{sH}, 1
    s_cmp_lt_u32 s{sH}, 10
    s_cbranch_scc1 L_h_slab
    """)
    A.label("L_h_noslab")
    A.label("L_h_l3")
    srd(sWD, pWO, 640*1280)
    sWs, sWl = sA + 7, sSpin
    A(f"""
    s_mul_i32 s{sWs}, s{sM}, 160
    s_mov_b32 s{sWl}, {WO_L}
    """)
    A(f"""
    v_mov_b32 v{vT+1}, 0
    v_mov_b32 v{vT}, {SELA}
    ds_write2_b32 v{vT}, v{vT+1}, v{vT+1} offset0:1 offset1:2
    ds_write_b32 v{vT}, v{vT+1} offset:12
    v_add_u32 v{vT}, {PFL}, v{vL4}
    s_mov_b64 exec, 0xffff
    ds_write_b32 v{vT}, v{vT+1}
    s_mov_b64 exec, -1
    s_waitcnt lgkmcnt(0)
    """)
    ST.mark(6)
    A("s_barrier                                        ; L3")
    def wo_dma(lab, ph_, pf=False):
        A(f"s_mul_i32 s{sWs}, s{sM}, 160")
        A(f"s_add_u32 s{sWs}, s{sWs}, {ph_*80*1280}")
        A(f"s_mov_b32 s{sWl}, {WO_L + ph_*51200}")
        A.label(lab)
        for stp in range(3):
            A(f"s_add_u32 m0, s{sWl}, {stp*5120}")
            A(f"s_add_u32 s{sT}, s{sWs}, {stp*32*1280}")
            for ph in range(4 if stp < 2 else 3):
                if stp == 2 and ph == 2: A(f"s_mov_b64 exec, s[{sLo32}:{sLo32+1}]")
                if pf: A(f"buffer_load_dword v{hX+60}, v{hP[ph]}, {wd}, s{sT} offen offset:{ph*1024}")
                else: A(f"buffer_load_dwordx4 v{hP[ph]}, {wd}, s{sT} offen offset:{ph*1024} lds")
            if stp < 2:
                A(f"s_add_u32 m0, s{sWl}, {stp*5120 + 4096}")
                A("s_nop 0")
                if pf: A(f"buffer_load_dword v{hX+60}, v{hP[4]}, {wd}, s{sT} offen")
                else: A(f"buffer_load_dwordx4 v{hP[4]}, {wd}, s{sT} offen lds")
        A(f"""
        s_mov_b64 exec, -1
        s_add_u32 s{sWs}, s{sWs}, {160*1280}
        s_add_u32 s{sWl}, s{sWl}, 12800
        s_cmp_lt_u32 s{sWl}, {WO_L + (ph_+1)*51200}
        s_cbranch_scc1 {lab}
        """)
    def wo_dma_old(lab, end):
        A.label(lab)
        A(f"s_mov_b32 m0, s{sWl}")
        A("s_nop 0")
        for ph in range(4):
            A(f"buffer_load_dwordx4 v{hP[ph]}, {wd}, s{sWs} offen offset:{ph*1024} lds")
        A(f"s_add_u32 m0, s{sWl}, 4096")
        A(f"s_add_u32 s{sWl}, s{sWl}, 5120")
        A(f"buffer_load_dwordx4 v{hP[4]}, {wd}, s{sWs} offen lds")
        A(f"""
        s_add_u32 s{sWs}, s{sWs}, {32*1280}
        s_cmp_lt_u32 s{sWl}, {end}
        s_cbranch_scc1 {lab}
        """)
    if OPF:
        srd(sMD, pOUT, 2048*1280)
        A(f"""
        s_mul_i32 s{sT}, s{sG}, {64*1280}
        v_mul_u32_u24 v{vT+1}, 1280, v{vLane}
        buffer_load_ushort v{hKey}, v{vT+1}, {md}, s{sT} offen
        """)
    wo_dma("L_wo1", 0)
    A("s_waitcnt vmcnt(52)")
    publish(3)
    A(f"""
    s_cmp_ge_u32 s2, 192
    s_cbranch_scc1 L_h_ffn_done
    """)
    hF = hX + 32
    hC = hX + 28
    def freads(ks):
        f = hF + 8*(ks % 4)
        A(f"ds_read_b64_tr_b16 {v(f,2)}, v{vGV} offset:{ks*512}")
        A(f"ds_read_b64_tr_b16 {v(f+2,2)}, v{vGV} offset:{ks*512+64}")
        A(f"ds_read_b128 {v(f+4,4)}, v{vAVs} offset:{ks*64}")
    freads(0); freads(1); freads(2)
    for ks in range(20):
        if ks + 3 < 20:
            freads(ks + 3)
            A("s_waitcnt lgkmcnt(9)")
        else:
            A(f"s_waitcnt lgkmcnt({3*(19-ks)})")
        c = "0" if ks == 0 else v(hC, 4)
        f = hF + 8*(ks % 4)
        A(f"v_mfma_f32_16x16x32_bf16 {v(hC,4)}, {v(f+4,4)}, {v(f,4)}, {c}")
    for n in range(10):
        A(f"ds_write_b128 v{vAK2s}, {v(hD+4*n,4)} offset:{1024*n}")
    g_, u_, t_ = hX, hX + 1, hX + 2
    hA = hX + 4
    A(f"""
    v_mov_b32_dpp v{u_}, v{hC} row_ror:8 row_mask:0xf bank_mask:0xf
    v_mov_b32 v{hA}, 0
    v_cvt_pk_bf16_f32 v{g_}, v{hC}, v{u_}
    v_and_b32 v{u_}, 0xffff0000, v{g_}
    v_lshlrev_b32 v{g_}, 16, v{g_}
    v_mul_f32 v{t_}, {NLOG2E}, v{g_}
    v_exp_f32 v{t_}, v{t_}
    v_mov_b32 v{hA+1}, 0
    v_add_f32 v{t_}, 1.0, v{t_}
    v_rcp_f32 v{t_}, v{t_}
    v_mov_b32 v{hA+2}, 0
    v_mul_f32 v{g_}, v{g_}, v{t_}
    v_cvt_pk_bf16_f32 v{g_}, v{g_}, v{g_}
    v_and_b32 v{g_}, 0xffff0000, v{g_}
    v_mul_f32 v{g_}, v{g_}, v{u_}
    v_mov_b32 v{hA+3}, 0
    s_nop 0
    v_mov_b32_dpp v{u_}, v{g_} quad_perm:[1,0,3,2] row_mask:0xf bank_mask:0xf
    v_cvt_pk_bf16_f32 v{g_}, v{g_}, v{u_}
    s_mov_b32 s{sT}, 0x00100001
    s_mov_b32 s{sT2}, 0x10000100
    v_readlane_b32 s{sH}, v{g_}, 0
    v_readlane_b32 s{sH+1}, v{g_}, 2
    v_readlane_b32 s{sH+2}, v{g_}, 4
    v_readlane_b32 s{sH+3}, v{g_}, 6
    s_mov_b64 exec, s[{sT}:{sT2}]
    s_nop 0
    v_mov_b32 v{hA}, s{sH}
    v_mov_b32 v{hA+1}, s{sH+1}
    v_mov_b32 v{hA+2}, s{sH+2}
    v_mov_b32 v{hA+3}, s{sH+3}
    s_mov_b64 exec, -1
    s_waitcnt lgkmcnt(0)
    """)
    hW = hD
    hY = hX + 8
    for half in range(2):
        for t in range(5*half, 5*half + 5):
            A(f"ds_read_b64_tr_b16 {v(hW+4*t,2)}, v{vAK1s} offset:{128*t}")
            A(f"ds_read_b64_tr_b16 {v(hW+4*t+2,2)}, v{vAK1s} offset:{128*t + 5120}")
        A("s_waitcnt lgkmcnt(0)")
        for t in range(5*half, 5*half + 5):
            A(f"v_mfma_f32_16x16x32_bf16 {v(hY+4*t,4)}, {v(hA,4)}, {v(hW+4*t,4)}, 0")
    A(f"""
    s_and_b32 s{sT}, s2, 7
    s_mul_i32 s{sT}, s{sT}, 2560
    s_add_u32 s{sT}, s{sT}, {WS_Y}
    s_nop 4
    """)
    for i in range(10):
        A(f"buffer_atomic_add_f32 v{hY+4*i}, v{vL4}, {wsd}, s{sT} offen offset:{256*i} sc1")
    A.label("L_h_ffn_done")
    hU = hX
    A(f"s_mov_b32 s{sSpin}, 0")
    A.label("L_pollC")
    A(f"""
    buffer_load_dwordx2 {v(hAc,2)}, v{hGA}, {wsd}, 0 offen sc1
    s_add_u32 s{sSpin}, s{sSpin}, 1
    s_cmp_gt_u32 s{sSpin}, {SPIN_MAX}
    s_cbranch_scc1 L_pollC_done
    s_waitcnt vmcnt(0)
    v_cmp_ne_u64 vcc, {v(hAc,2)}, {v(hN,2)}
    s_cbranch_vccnz L_pollC
    """)
    A.label("L_pollC_done")
    A(f"""
    s_waitcnt vmcnt(0)
    v_mov_b32 v{vT}, {SELA}
    s_and_b32 s{sT2}, s{sIdx}, 63
    s_lshr_b32 s{sT}, s{sIdx}, 6
    s_cmp_eq_u32 s{sT}, s{sG}
    s_cselect_b32 s{sT2}, s{sT2}, -1
    v_mov_b32 v{vT+1}, s{sT2}
    s_lshl_b32 s{sT2}, s{sFast}, 1
    s_or_b32 s{sT2}, s{sT2}, 1
    v_mov_b32 v{vT+2}, s{sT2}
    ds_write2_b32 v{vT}, v{vT+1}, v{vT+2} offset0:0 offset1:1
    v_add_u32 v{vT}, 8, v{vT}
    """)
    ST.mark(7)
    publish(1)
    A(f"""
    s_lshr_b32 s{sT}, s{sIdx}, 6
    s_cmp_lg_u32 s{sT}, s{sG}
    s_cbranch_scc1 L_h_nosel
    """)
    poll(1, [0, 1, 2, 3], "B", False, sleep=8)
    A(f"""
    s_and_b32 s{sT}, s{sKey}, 0xfffff800
    s_not_b32 s{sT2}, s{sT}
    s_and_b32 s{sT}, s{sT}, 0x7fffffff
    s_cmp_lt_i32 s{sKey}, 0
    s_cselect_b32 s{sT}, s{sT}, s{sT2}          ; r bits
    v_mov_b32 v{vT+5}, s{sT}
    v_cvt_pk_bf16_f32 v{vT+5}, v{vT+5}, v{vT+5}
    v_and_b32 v{vT+5}, 0xffff0000, v{vT+5}
    v_mul_f32 v{vT+5}, {NLOG2E}, v{vT+5}
    v_exp_f32 v{vT+5}, v{vT+5}
    s_nop 0
    v_add_f32 v{vT+5}, 1.0, v{vT+5}
    v_rcp_f32 v{vT+5}, v{vT+5}
    s_nop 0
    v_cvt_pk_bf16_f32 v{vT+5}, v{vT+5}, v{vT+5}
    v_and_b32 v{vT+5}, 0xffff0000, v{vT+5}
    s_mul_i32 s{sT}, s{sM}, 80
    """)
    for rnd in range(2):
        A(f"""
        v_add_u32 v{vT+2}, s{sT}, v{vLane}
        v_add_u32 v{vT+2}, {64*rnd}, v{vT+2}
        v_min_u32 v{vT+2}, 639, v{vT+2}             ; column
        v_lshlrev_b32 v{vT+3}, 2, v{vT+2}
        s_mov_b32 s{sT2}, {WS_Y}
        """)
        for rep in range(8):
            A(f"buffer_load_dword v{hU+8*rnd+rep}, v{vT+3}, {wsd}, s{sT2} offen sc1")
            A(f"s_add_u32 s{sT2}, s{sT2}, 2560")
    A("s_waitcnt vmcnt(0)")
    for rnd in range(2):
        y = hU + 8*rnd
        for rep in range(1, 8):
            A(f"v_add_f32 v{y}, v{y}, v{y+rep}")
        A(f"""
        v_cvt_pk_bf16_f32 v{y}, v{y}, v{y}
        v_and_b32 v{y}, 0xffff0000, v{y}
        v_mul_f32 v{y}, v{vT+5}, v{y}
        v_cvt_pk_bf16_f32 v{y}, v{y}, v{y}
        v_and_b32 v{y}, 0xffff0000, v{y}
        """)
    A(f"""
    v_add_u32 v{vT+2}, {SELA+16}, v{vL4}
    ds_write_b32 v{vT+2}, v{hU}
    ds_write_b32 v{vT+2}, v{hU+8} offset:256
    s_waitcnt lgkmcnt(0)
    """)
    A.label("L_h_nosel")
    if WPF: wo_dma("L_wo2p", 1, True)
    cntwait("p", 0, 8, CSL)
    wo_dma("L_wo2", 1)
    A(f"""
    v_mov_b32 v{vT+1}, 1
    s_waitcnt vmcnt(0)
    ds_write_b32 v{vT}, v{vT+1} offset:4
    """)
    ST.mark(8)
    ST.dump()
    A("s_endpgm")
    A.label("L_code_end")
    return A.text(), NV

NAME = "gated_mix__grouped_kv_mqa__moe_arch_mod__prompt"
def build(stamp=False):
    b, n = gen(NAME + "_kernel", stamp)
    txt = "; generated by gen/fused.py\n"
    txt += "; @launch grid=(256,1,1) block=(576,1,1) lds=163840\n"
    txt += '.amdgcn_target "amdgcn-amd-amdhsa--gfx950"\n.text\n' + b
    txt += '.section .rodata,"a"\n' + kernel_desc(NAME + "_kernel", n)
    return txt
if __name__ == "__main__":
    import sys
    open(sys.argv[1] if len(sys.argv) > 1 else f"fused32.s", "w").write(build())
```
